```python
import torch

def _softmax(x, axis=-1):
    return torch.softmax(x, dim=axis)

def _gelu(x):
    return torch.nn.functional.gelu(x, approximate='tanh')

def _silu(x):
    return torch.nn.functional.silu(x)

def _sigmoid(x):
    return torch.sigmoid(x)

def _layernorm(x, axis=-1, eps=1e-05):
    m = x.mean(dim=axis, keepdim=True)
    v = x.var(dim=axis, keepdim=True, unbiased=False)
    return (x - m) / torch.sqrt(v + eps)

def _scatter_add(tgt, idx, src, axis=0):
    return tgt.clone().index_add_(axis, idx, src)

def _segment_sum(src, seg, n):
    out = torch.zeros((n,) + src.shape[1:], dtype=src.dtype)
    return out.index_add_(0, seg, src)

def _pad(x, pw):
    flat = tuple((v for pair in reversed(pw) for v in pair))
    return torch.nn.functional.pad(x, flat)
kernel_name = 'adaLN_cond__ssm_conv_h3__glu_gated_bilinear__prompt'

def setup_inputs():

    _w = lambda a: (lambda t: t.to(torch.bfloat16) if t.is_floating_point() else t)(torch.as_tensor(a))

    def _A_setup():
        B, S, D = (1, 2048, 512)
        ks = 4
        return {'q': _w((lambda *s: torch.randn(*s, dtype=torch.bfloat16) * 0.05)(B, S, D)), 'k': _w((lambda *s: torch.randn(*s, dtype=torch.bfloat16) * 0.8)(B, S, D)), 'v': _w((lambda *s: torch.randn(*s, dtype=torch.bfloat16) * 0.8)(B, S, D)), 'shift_k': _w((lambda *s: torch.randn(*s, dtype=torch.bfloat16) * 0.8)(D, ks) * 0.5), 'ssm_k': _w((lambda *s: torch.randn(*s, dtype=torch.bfloat16) * 0.8)(D, S) * (1.0 / S ** 0.5)), 'ssm_D': _w((lambda *s: torch.randn(*s, dtype=torch.bfloat16) * 0.8)(D))}
    _A_in = _A_setup()

    def _B_setup():
        B, S, D, F = (1, 2048, 512, 1792)
        return {'x': _w((lambda *s: torch.randn(*s, dtype=torch.bfloat16) * 0.05)(B, S, D)), 'w_gate': _w((lambda *s: torch.randn(*s, dtype=torch.bfloat16) * 0.8)(D, F) * D ** (-0.5)), 'w_up': _w((lambda *s: torch.randn(*s, dtype=torch.bfloat16) * 0.8)(D, F) * D ** (-0.5)), 'w_down': _w((lambda *s: torch.randn(*s, dtype=torch.bfloat16) * 0.8)(F, D) * F ** (-0.5))}
    _B_in = _B_setup()
    return {'A_q': _A_in['q'], 'A_k': _A_in['k'], 'A_v': _A_in['v'], 'A_shift_k': _A_in['shift_k'], 'A_ssm_k': _A_in['ssm_k'], 'A_ssm_D': _A_in['ssm_D'], 'B_x': _B_in['x'], 'B_w_gate': _B_in['w_gate'], 'B_w_up': _B_in['w_up'], 'B_w_down': _B_in['w_down'], 'c': _w((lambda *s: torch.randn(*s, dtype=torch.bfloat16) * 0.2)(1, 512) * 8.0), 'w_mod': _w((lambda *s: torch.randn(*s, dtype=torch.bfloat16) * 0.2)(512, 6 * 512) * 512 ** (-0.5) * 8.0)}

def reference(A_q, A_k, A_v, A_shift_k, A_ssm_k, A_ssm_D, B_x, B_w_gate, B_w_up, B_w_down, c, w_mod):

    def _A_ref(q, k, v, shift_k, ssm_k, ssm_D):
        B, S, D = q.shape
        ks = shift_k.shape[-1]
        k_pad = _pad(k, ((0, 0), (ks - 1, 0), (0, 0)))
        k_shift = torch.zeros_like(k)
        for t in range(ks):
            k_shift = k_shift + k_pad[:, t:t + S, :] * shift_k[:, ks - 1 - t][None, None, :]
        kv = k_shift * v
        L = 2 * S
        kv_pad = _pad(kv, ((0, 0), (0, S), (0, 0)))
        kf_pad = _pad(ssm_k, ((0, 0), (0, S)))
        kv_f = (lambda x, axes=(-2, -1): torch.fft.rfft2(x.float(), dim=axes))(kv_pad[:, None, :, :], axes=(1, 2))
        kf_f = (lambda x, axes=(-2, -1): torch.fft.rfft2(x.float(), dim=axes))(kf_pad[:, None, :], axes=(1, 2))
        kf_f = (lambda x, *d: x.permute(*d))(kf_f, 1, 2, 0)
        y_f = kv_f * kf_f[None, :, :, :]
        y = (lambda x, s, axes=(-2, -1): torch.fft.irfft2(x, s=s, dim=axes).to(torch.bfloat16))(y_f, (1, L), axes=(1, 2))[:, 0, :S, :]
        y = y + kv * ssm_D[None, None, :]
        return q * y

    def _B_ref(x, w_gate, w_up, w_down):
        g = torch.einsum('bsd,df->bsf', x, w_gate)
        u = torch.einsum('bsd,df->bsf', x, w_up)
        h = g * u
        return torch.einsum('bsf,fd->bsd', h, w_down)
    x = A_q
    mod = (_silu(c) @ w_mod).reshape(c.shape[0], 6, 1, -1)
    sa, ca, ga, sb, cb, gb = (mod[:, 0].clone(), mod[:, 1].clone(), mod[:, 2].clone(), mod[:, 3].clone(), mod[:, 4].clone(), mod[:, 5].clone())
    h = _layernorm(x, axis=-1) * (1 + ca) + sa
    x = x + ga * _A_ref(h, A_k, A_v, A_shift_k, A_ssm_k, A_ssm_D)
    h = _layernorm(x, axis=-1) * (1 + cb) + sb
    x = x + gb * _B_ref(h, B_w_gate, B_w_up, B_w_down)
    return x
```

```python
import re

TRANS = ("v_exp_f32", "v_log_f32", "v_rcp_f32", "v_rsq_f32", "v_sqrt_f32", "v_sin_f32", "v_cos_f32", "v_rcp_iflag_f32")
REG_RE = re.compile(r"^(-|abs\()?([vas])(\d+|\[\d+:\d+\])\)?$")

def regs_of(op):
    op = op.strip()
    if op in ("vcc",): return [("s", "vcc")]
    if op in ("exec",): return [("s", "exec")]
    if op == "m0": return [("s", "m0")]
    m = REG_RE.match(op)
    if not m: return []
    k = m.group(2); r = m.group(3)
    if r.startswith("["):
        lo, hi = map(int, r[1:-1].split(":"))
        return [(k, i) for i in range(lo, hi + 1)]
    return [(k, int(r))]

def split_ops(text):
    text = text.split(";")[0].strip()
    parts = text.split(None, 1)
    mn = parts[0]
    if len(parts) == 1: return mn, [], ""
    rest = parts[1]
    ops = [x.strip() for x in re.split(r",(?![^\[]*\])", rest)]
    last = ops[-1].split()
    mods = " ".join(last[1:]) if len(last) > 1 else ""
    ops[-1] = last[0] if last else ""
    return mn, ops, mods

class Ins:
    def __init__(self, text):
        self.text = text
        mn, ops, mods = split_ops(text)
        self.mn, self.ops, self.mods = mn, ops, mods
        self.dst, self.src = [], []
        self.kind = "other"
        R = regs_of
        if mn.startswith("v_mfma"):
            self.kind = "mfma"
            self.passes = 8 if "32x32x16" in mn else 4 if "16x16x32" in mn else None
            assert self.passes
            self.dst = R(ops[0]); self.a = R(ops[1]) + R(ops[2]); self.c = R(ops[3]); self.src = self.a + self.c
        elif mn.startswith("v_"):
            self.kind = "valu"
            if mn.startswith("v_cmp"):
                self.dst = R(ops[0]); self.src = sum((R(o) for o in ops[1:]), [])
            elif mn.startswith("v_permlane") and "swap" in mn:
                self.dst = R(ops[0]) + R(ops[1]); self.src = list(self.dst)
            elif mn.startswith(("v_add_co", "v_sub_co", "v_addc_co", "v_subb_co")):
                self.dst = R(ops[0]) + R(ops[1]); self.src = sum((R(o) for o in ops[2:]), [])
            elif mn.startswith("v_nop"):
                pass
            else:
                self.dst = R(ops[0]); self.src = sum((R(o) for o in ops[1:]), [])
                if mn.startswith(("v_fmac", "v_dot2c", "v_writelane")) or "dpp" in mn or "sdwa" in mn:
                    self.src += self.dst
        elif mn.startswith(("buffer_load", "global_load")):
            self.kind = "vmem"
            if "lds" in mn or " lds" in (" " + mods):
                self.dma = True
                self.src = sum((R(o) for o in ops), []) + [("s", "m0")]
            else:
                self.dst = R(ops[0]); self.src = sum((R(o) for o in ops[1:]), [])
        elif mn.startswith(("buffer_store", "global_store", "buffer_atomic", "global_atomic")):
            self.kind = "vmem"
            self.src = sum((R(o) for o in ops), [])
            self.wide = mn.endswith(("x3", "x4"))
            self.data = R(ops[0]) if mn.startswith("buffer") else R(ops[1])
        elif mn.startswith(("buffer_wbl2", "buffer_inv")):
            self.kind = "vmem"
        elif mn.startswith("ds_"):
            self.kind = "ds"
            if mn.startswith(("ds_read", "ds_bpermute", "ds_permute", "ds_swizzle")):
                self.dst = R(ops[0]); self.src = sum((R(o) for o in ops[1:]), [])
            else:
                self.src = sum((R(o) for o in ops), [])
        elif mn.startswith("s_"):
            self.kind = "salu"
            if mn.startswith(("s_load", "s_buffer_load", "s_memtime", "s_memrealtime")):
                self.kind = "smem"
            if mn.startswith(("s_cmp", "s_cbranch", "s_branch", "s_waitcnt", "s_barrier", "s_nop", "s_endpgm", "s_sleep", "s_setprio", "s_bitcmp")):
                self.src = sum((R(o) for o in ops), [])
            else:
                self.dst = R(ops[0]) if ops else []
                self.src = sum((R(o) for o in ops[1:]), [])

class Asm:
    def __init__(self):
        self.out = []
        self.clock = 0
        self.ev = {}
        self.snap = {}
        self.vm = 0
        self.lg = 0
        self.nnop = 0
        self.ninstr = 0

    def raw(self, s): self.out.append(s)
    def c(self, s): self.out.append("    ; " + s)

    def age(self, reg, kind):
        e = self.ev.get((reg, kind))
        if e is None: return None
        return self.clock - e[0] - 1, e[1]

    def need(self, ins):
        n = 0
        def req(reg, kind, ws):
            nonlocal n
            a = self.age(reg, kind)
            if a is not None and a[0] < ws: n = max(n, ws - a[0])
        k = ins.kind
        mn = ins.mn
        isv = lambda r: r[0] in "va"
        if k == "mfma":
            for r in ins.src:
                req(r, "valu_w", 2)
                req(r, "dot_w", 3)
            for r in ins.a:
                a = self.age(r, "mfma_w")
                if a: req(r, "mfma_w", a[1][0] + 4)
            for r in ins.c + ins.dst:
                a = self.age(r, "mfma_w")
                if a:
                    p, d = a[1]
                    if not (d == tuple(ins.c) and p == ins.passes): req(r, "mfma_w", p + 2)
        else:
            if k in ("valu", "vmem", "ds"):
                for r in ins.src + ins.dst:
                    if not isv(r): continue
                    a = self.age(r, "mfma_w")
                    if a: req(r, "mfma_w", a[1][0] + 4)
                    a = self.age(r, "dot_w")
                    if a and not (mn == a[1] and r in ins.dst and r not in regs_of(ins.ops[1]) + regs_of(ins.ops[2])):
                        req(r, "dot_w", 3)
            if k == "valu":
                for r in ins.dst:
                    if isv(r):
                        a = self.age(r, "mfma_c")
                        if a: req(r, "mfma_c", a[1] - 1)
                        req(r, "wstore", 2)
                for r in ins.src:
                    if isv(r):
                        if "dpp" in mn or mn.startswith("v_permlane"): req(r, "valu_w", 2); req(r, "ld_w", 0)
                        if mn.startswith(("v_readlane", "v_readfirstlane")): req(r, "valu_w", 1)
                        if not mn.startswith(TRANS): req(r, "trans_w", 1)
                        req(r, "sdwa_w", 1)
                    else:
                        req(r, "valu_sw", 4 if mn.startswith(("v_readlane", "v_writelane")) else 2)
                if mn.startswith(("v_cndmask", "v_addc", "v_subb")) : req(("s", "vcc"), "valu_sw", 2)
            if k in ("vmem", "ds"):
                for r in ins.dst:
                    req(r, "wstore", 1)
                for r in ins.src:
                    if isv(r): req(r, "trans_w", 1)
            if k == "vmem":
                for r in ins.src:
                    if not isv(r): req(r, "valu_sw", 5)
                if getattr(ins, "dma", False): req(("s", "m0"), "salu_w", 1)
            if k in ("salu", "smem"):
                for r in ins.src:
                    req(r, "valu_sw", 1)
                if mn.startswith("s_cbranch_vcc"): req(("s", "vcc"), "valu_sw", 1)
        return n

    def record(self, ins):
        t = self.clock
        k = ins.kind
        if k == "mfma":
            for r in ins.dst: self.ev[(r, "mfma_w")] = (t, (ins.passes, tuple(ins.dst)))
            for r in ins.c: self.ev[(r, "mfma_c")] = (t, ins.passes)
        elif k == "valu":
            for r in ins.dst:
                if r[0] in "va":
                    self.ev[(r, "valu_w")] = (t, None)
                    if ins.mn.startswith(TRANS): self.ev[(r, "trans_w")] = (t, None)
                    if ins.mn.startswith("v_dot"): self.ev[(r, "dot_w")] = (t, ins.mn)
                    if "sdwa" in ins.mn or ("op_sel" in ins.mods and not ins.mn.startswith("v_pk_")): self.ev[(r, "sdwa_w")] = (t, None)
                else:
                    self.ev[(r, "valu_sw")] = (t, None)
        elif k == "salu":
            for r in ins.dst: self.ev[(r, "salu_w")] = (t, None)
        elif k == "vmem" and getattr(ins, "wide", False):
            for r in ins.data: self.ev[(r, "wstore")] = (t, None)

    def __call__(self, text):
        ins = Ins(text)
        n = self.need(ins)
        while n > 0:
            m = min(n, 16)
            self.out.append(f"    s_nop {m-1}")
            self.clock += m; n -= m; self.nnop += 1
        self.out.append("    " + text)
        self.ninstr += 1
        self.record(ins)
        if ins.mn == "s_nop": self.clock += int(ins.ops[0]) + 1
        else: self.clock += 1
        if ins.mn.startswith(("s_cbranch", "s_branch")):
            self.snap.setdefault(ins.ops[0], []).append({k: (self.clock - v[0], v[1]) for k, v in self.ev.items() if self.clock - v[0] < 32})
        tok = None
        if ins.kind == "vmem":
            self.vm += 1; tok = ("vm", self.vm)
        elif ins.kind == "ds":
            self.lg += 1; tok = ("lg", self.lg)
        return tok

    def label(self, name):
        self.out.append(name + ":")
        for s in self.snap.get(name, []):
            for k, (age, ex) in s.items():
                cur = self.ev.get(k)
                if cur is None or self.clock - cur[0] > age:
                    self.ev[k] = (self.clock - age, ex)

    def wait(self, *toks):
        vm = [t[1] for t in toks if t and t[0] == "vm"]
        lg = [t[1] for t in toks if t and t[0] == "lg"]
        s = []
        if vm: s.append(f"vmcnt({min(63, self.vm - max(vm))})")
        if lg: s.append(f"lgkmcnt({min(15, self.lg - max(lg))})")
        if s: self("s_waitcnt " + " ".join(s))

    def text(self): return "\n".join(self.out) + "\n"
```

```python
import sys
from dsl import Asm
NAME = "adaLN_cond__ssm_conv_h3__glu_gated_bilinear__prompt"

WS_KV, WS_QT, WS_Z, WS_X1, WS_HH = 0x0, 0x200000, 0x400000, 0x600000, 0x800000
WS_W1T, WS_WDT, WS_ST, WS_MODP = 0x1000000, 0x1400000, 0x1600000, 0x1610000
WS_SIZE = 0x2000000
SC = "sc1"
LC = ""

P_Q, P_K, P_V, P_SH, P_SK, P_SD, P_WG, P_WU, P_WD, P_C, P_WM, P_OUT, P_DBG, P_WS = 16, 18, 20, 22, 24, 26, 30, 32, 34, 36, 38, 40, 42, 44

def srd(a, d, p, nbytes):
    a(f"s_mov_b32 s{d}, s{p}")
    a(f"s_mov_b32 s{d+1}, s{p+1}")
    a(f"s_mov_b32 s{d+2}, {hex(nbytes)}")
    a(f"s_mov_b32 s{d+3}, 0x20000")

def prologue(a, endlabel):
    a("s_cmp_ge_u32 s2, 256")
    a(f"s_cbranch_scc1 {endlabel}")
    a("s_load_dwordx16 s[16:31], s[0:1], 0")
    a("s_load_dwordx8 s[32:39], s[0:1], 64")
    a("s_load_dwordx4 s[40:43], s[0:1], 96")
    a("s_load_dwordx2 s[44:45], s[0:1], 112")
    a("v_lshrrev_b32 v1, 6, v0")
    a("v_readfirstlane_b32 s3, v1")
    a("v_and_b32 v1, 63, v0")
    a("s_and_b32 s46, s2, 7")
    a("s_lshr_b32 s47, s2, 3")
    a("s_waitcnt lgkmcnt(0)")
    srd(a, 4, P_WS, WS_SIZE)

def bfround(a, x, t):
    a(f"v_cvt_pk_bf16_f32 v{t}, v{x}, v{x}")
    a(f"v_lshlrev_b32 v{x}, 16, v{t}")

def ln_finish(a, s, q, t):
    a(f"v_mul_f32 v{s}, 0x3b000000, v{s}")
    a(f"v_mul_f32 v{q}, 0x3b000000, v{q}")
    a(f"v_fma_f32 v{q}, -v{s}, v{s}, v{q}")
    a(f"v_max_f32 v{q}, 0, v{q}")
    bfround(a, q, t)
    a(f"v_add_f32 v{q}, 0x3727c5ac, v{q}")
    bfround(a, q, t)
    a(f"v_sqrt_f32 v{q}, v{q}")
    bfround(a, q, t)
    a(f"v_rcp_f32 v{q}, v{q}")
    bfround(a, s, t)

def tr_addr(a, d, t):
    a(f"v_lshrrev_b32 v{d}, 5, v1")
    a(f"v_lshlrev_b32 v{d}, 8, v{d}")
    a(f"v_bfe_u32 v{t}, v1, 2, 2")
    a(f"v_lshl_add_u32 v{d}, v{t}, 6, v{d}")
    a(f"v_bfe_u32 v{t}, v1, 4, 1")
    a(f"v_lshl_add_u32 v{d}, v{t}, 5, v{d}")
    a(f"v_and_b32 v{t}, 3, v1")
    a(f"v_lshl_add_u32 v{d}, v{t}, 3, v{d}")

def phase0(a):
    L_SH = 0
    L_WT = 20480
    srd(a, 8, P_K, 0x200000)
    srd(a, 12, P_V, 0x200000)
    srd(a, 48, P_Q, 0x200000)
    srd(a, 52, P_SH, 4096)
    a("s_lshr_b32 s60, s47, 2")
    a("s_lshl_b32 s61, s46, 3")
    a("s_add_u32 s60, s60, s61")
    a("s_and_b32 s61, s47, 3")
    a("s_lshl_b32 s62, s60, 15")
    a("s_lshl_b32 s63, s61, 8")
    a("s_add_u32 s62, s62, s63")
    a("s_lshl_b32 s63, s3, 6")
    a("s_add_u32 s62, s62, s63")
    a("v_and_b32 v5, 15, v1")
    a("v_lshrrev_b32 v6, 4, v1")
    a("v_lshlrev_b32 v2, 13, v6")
    a("v_lshl_add_u32 v2, v5, 2, v2")
    a("v_add_u32 v2, s62, v2")
    a("v_subrev_u32 v3, 3072, v2")
    a("v_add_u32 v4, 4096, v2")
    tk = []
    for i in range(11):
        base, off = (3, i) if i < 3 else (2, i - 3) if i < 7 else (4, i - 7)
        tk.append(a(f"buffer_load_dword v{10+i}, v{base}, s[8:11], 0 offen offset:{off*1024}"))
    for i in range(8):
        base, off = (2, i) if i < 4 else (4, i - 4)
        tk.append(a(f"buffer_load_dword v{21+i}, v{base}, s[12:15], 0 offen offset:{off*1024}"))
    a("s_lshl_b32 s63, s61, 2")
    a("s_add_u32 s63, s63, s3")
    a("s_lshl_b32 s64, s63, 4")
    a("s_lshl_b32 s63, s64, 4")
    a("v_lshlrev_b32 v7, 4, v5")
    tsh = a("buffer_load_dwordx4 v[32:35], v7, s[52:55], s63 offen")
    tq = []
    for i in range(8):
        base, off = (2, i) if i < 4 else (4, i - 4)
        tq.append(a(f"buffer_load_dword v{36+i}, v{base}, s[48:51], 0 offen offset:{off*1024}"))
    a("s_lshl_b32 s65, s60, 2")
    a("s_add_u32 s65, s65, s61")
    a("s_lshl_b32 s65, s65, 2")
    a("s_add_u32 s65, s65, s3")
    a("s_lshl_b32 s65, s65, 1")
    a("s_lshl_b32 s66, s65, 10")
    a("v_lshrrev_b32 v8, 5, v1")
    a("v_and_b32 v9, 31, v1")
    a("v_lshlrev_b32 v9, 4, v9")
    a("v_lshl_add_u32 v9, v8, 10, v9")
    a("buffer_load_dwordx4 v[120:123], v9, s[48:51], s66 offen")
    tst = a("buffer_load_dwordx4 v[124:127], v9, s[48:51], s66 offen offset:512")
    a.wait(tsh)
    a("s_mov_b32 s67, 0xffff0000")
    for i in range(11):
        a(f"v_lshlrev_b32 v{50+2*i}, 16, v{10+i}")
        a(f"v_and_b32 v{51+2*i}, s67, v{10+i}")
    for i in range(8):
        a(f"v_lshlrev_b32 v{72+2*i}, 16, v{21+i}")
        a(f"v_and_b32 v{73+2*i}, s67, v{21+i}")
    for j in range(4):
        for c in range(2):
            src = 32 + 2 * c + (j >> 1)
            if j & 1: a(f"v_and_b32 v{88+2*j+c}, s67, v{src}")
            else: a(f"v_lshlrev_b32 v{88+2*j+c}, 16, v{src}")
    P = lambda r: f"v[{r}:{r+1}]"
    for j in (3, 2, 1, 0):
        for i in range(8):
            if j == 3: a(f"v_pk_mul_f32 {P(96+2*i)}, {P(50+2*(i+3-j))}, {P(88+2*j)}")
            else: a(f"v_pk_fma_f32 {P(96+2*i)}, {P(50+2*(i+3-j))}, {P(88+2*j)}, {P(96+2*i)}")
    for i in range(8):
        a(f"v_pk_mul_f32 {P(96+2*i)}, {P(96+2*i)}, {P(72+2*i)}")
    for c in range(2):
        for d in range(4):
            a(f"v_cvt_pk_bf16_f32 v{112+4*c+d}, v{96+2*(7-2*d)+c}, v{96+2*(6-2*d)+c}")
    a("s_mul_i32 s68, s3, 4608")
    a("v_mul_u32_u24 v44, 144, v5")
    a("v_add_u32 v44, s68, v44")
    a("v_sub_u32 v45, 3, v6")
    a("v_lshl_add_u32 v45, v45, 4, v44")
    a("v_lshl_add_u32 v46, v6, 5, v44")
    a("ds_write_b128 v45, v[112:115]")
    w1 = a("ds_write_b128 v45, v[116:119] offset:64")
    a("v_lshrrev_b32 v47, 3, v1")
    a("v_mul_u32_u24 v47, 144, v47")
    a("v_and_b32 v48, 7, v1")
    a("v_lshl_add_u32 v47, v48, 4, v47")
    a("v_add_u32 v47, s68, v47")
    a("v_lshlrev_b32 v48, 4, v1")
    a.wait(w1)
    r0 = a("ds_read_b128 v[112:115], v47")
    r1 = a(f"ds_read_b128 v[116:119], v47 offset:{8*144}")
    a("s_lshl_b32 s69, s60, 8")
    a("s_add_u32 s69, s69, s64")
    a("s_lshl_b32 s69, s69, 7")
    a(f"s_add_u32 s70, s69, {WS_QT}")
    if WS_KV: a(f"s_add_u32 s69, s69, {WS_KV}")
    a.wait(r0)
    a(f"buffer_store_dwordx4 v[112:115], v48, s[4:7], s69 offen {SC}")
    a.wait(r1)
    a(f"buffer_store_dwordx4 v[116:119], v48, s[4:7], s69 offen offset:1024 {SC}")
    a.wait(tq[-1])
    a("ds_write_b128 v46, v[36:39] offset:2304")
    w1 = a("ds_write_b128 v46, v[40:43] offset:2320")
    a.wait(w1)
    r0 = a("ds_read_b128 v[36:39], v47 offset:2304")
    r1 = a(f"ds_read_b128 v[40:43], v47 offset:{2304+8*144}")
    a.wait(r0)
    a(f"buffer_store_dwordx4 v[36:39], v48, s[4:7], s70 offen {SC}")
    a.wait(r1)
    a(f"buffer_store_dwordx4 v[40:43], v48, s[4:7], s70 offen offset:1024 {SC}")
    a.wait(tst)
    a("v_mov_b32 v50, 0")
    a("v_mov_b32 v51, 0")
    a("s_mov_b32 s71, 0x3f803f80")
    for i in range(8):
        a(f"v_dot2c_f32_bf16 v50, s71, v{120+i}")
        a(f"v_dot2c_f32_bf16 v51, v{120+i}, v{120+i}")
    for dpp in ("quad_perm:[1,0,3,2] row_mask:0xf", "quad_perm:[2,3,0,1] row_mask:0xf", "row_half_mirror row_mask:0xf",
                "row_mirror row_mask:0xf", "row_bcast:15 row_mask:0xa"):
        a(f"v_add_f32_dpp v50, v50, v50 {dpp} bank_mask:0xf")
        a(f"v_add_f32_dpp v51, v51, v51 {dpp} bank_mask:0xf")
    ln_finish(a, 50, 51, 52)
    a("v_mul_f32 v53, v50, v51")
    a("v_sub_f32 v53, 0, v53")
    a("v_mov_b32 v52, v51")
    a("v_lshlrev_b32 v8, 3, v8")
    a("s_lshl_b32 s66, s65, 3")
    a(f"s_add_u32 s66, s66, {WS_ST}")
    a("s_mov_b32 exec_lo, 0x10000")
    a("s_mov_b32 exec_hi, 0x10000")
    a(f"buffer_store_dwordx2 v[52:53], v8, s[4:7], s66 offen {SC}")
    a("s_mov_b64 exec, -1")
    a("s_cmp_ge_u32 s2, 224")
    a("s_cbranch_scc1 L_p0_nowt")
    srd(a, 8, P_WG, 512 * 3584)
    srd(a, 12, P_WU, 512 * 3584)
    srd(a, 48, P_WD, 1792 * 1024)
    a("s_lshl_b32 s60, s2, 2")
    a("s_add_u32 s60, s60, s3")
    a(f"s_mul_hi_u32 s61, s60, {(1 << 32) // 28 + 1}")
    a("s_mul_i32 s62, s61, 28")
    a("s_sub_u32 s62, s60, s62")
    a(f"s_mul_i32 s63, s61, {16*3584}")
    a("s_lshl_b32 s64, s62, 7")
    a("s_add_u32 s63, s63, s64")
    a("s_lshr_b32 s65, s60, 3")
    a("s_and_b32 s66, s60, 7")
    a("s_lshl_b32 s67, s65, 14")
    a("s_lshl_b32 s68, s66, 7")
    a("s_add_u32 s67, s67, s68")
    a("v_lshrrev_b32 v2, 2, v1")
    a("v_and_b32 v3, 3, v1")
    a("v_lshlrev_b32 v3, 4, v3")
    a("v_mul_u32_u24 v4, 3584, v2")
    a("v_add_u32 v4, v4, v3")
    a("v_lshl_add_u32 v5, v2, 10, v3")
    a(f"s_mul_i32 s68, s3, 6144")
    a(f"s_add_u32 s68, s68, {L_WT}")
    td = []
    for n, (sr, vo, so) in enumerate(((8, 4, 63), (12, 4, 63), (48, 5, 67))):
        for t in range(2):
            a(f"s_add_u32 m0, s68, {n*2048 + t*(1024-64)}")
            td.append(a(f"buffer_load_dwordx4 v{vo}, s[{sr}:{sr+3}], s{so} offen offset:{t*64} lds"))
    tr_addr(a, 6, 7)
    a("v_add_u32 v6, s68, v6")
    a("s_lshl_b32 s69, s62, 17")
    a("s_lshl_b32 s70, s61, 10")
    a("s_add_u32 s69, s69, s70")
    a(f"s_add_u32 s69, s69, {WS_W1T}")
    a("s_mul_i32 s70, s66, 112")
    a("s_add_u32 s70, s70, s65")
    a("s_lshl_b32 s70, s70, 11")
    a(f"s_add_u32 s70, s70, {WS_WDT}")
    for n in range(3):
        for t in range(2):
            f = n * 2 + t
            a.wait(td[f])
            a(f"ds_read_b64_tr_b16 v[{56+4*f}:{57+4*f}], v6 offset:{f*1024}")
            r = a(f"ds_read_b64_tr_b16 v[{58+4*f}:{59+4*f}], v6 offset:{f*1024+512}")
            if n < 2:
                a(f"s_add_u32 s71, s69, {t*65536 + n*32768}")
            else:
                a(f"s_add_u32 s71, s70, {t*1024}")
            a.wait(r)
            a(f"buffer_store_dwordx4 v[{56+4*f}:{59+4*f}], v48, s[4:7], s71 offen {SC}")
    a.label("L_p0_nowt")
    a("s_cmp_lt_u32 s2, 64")
    a("s_cbranch_scc1 L_p0_nomod")
    srd(a, 8, P_WM, 512 * 6144)
    srd(a, 12, P_C, 1024)
    a("s_sub_u32 s60, s2, 64")
    a("s_lshr_b32 s61, s60, 2")
    a("s_and_b32 s62, s60, 3")
    a(f"s_mul_i32 s63, s62, {128*6144}")
    a("s_lshl_b32 s64, s61, 2")
    a("s_add_u32 s64, s64, s3")
    a("s_lshl_b32 s65, s64, 5")
    a("s_add_u32 s63, s63, s65")
    a("v_lshrrev_b32 v2, 1, v1")
    a("v_and_b32 v3, 1, v1")
    a("v_mul_u32_u24 v4, 6144, v2")
    a("v_lshl_add_u32 v4, v3, 4, v4")
    a("v_lshlrev_b32 v5, 1, v2")
    a("s_lshl_b32 s65, s62, 8")
    tc = [a(f"buffer_load_ushort v{10+i}, v5, s[12:15], s65 offen offset:{64*i}") for i in range(4)]
    tw = []
    for i in range(4):
        tw.append(a(f"buffer_load_dwordx4 v[{16+4*i}:{19+4*i}], v4, s[8:11], s63 offen"))
        a(f"s_add_u32 s63, s63, {32*6144}")
    a.wait(tc[-1])
    a("s_mov_b32 s67, 0xffff0000")
    for i in range(4):
        a(f"v_lshlrev_b32 v{10+i}, 16, v{10+i}")
        a(f"v_mul_f32 v{32+i}, 0xbfb8aa3b, v{10+i}")
    for i in range(4): a(f"v_exp_f32 v{32+i}, v{32+i}")
    for i in range(4): a(f"v_add_f32 v{32+i}, 1.0, v{32+i}")
    for i in range(4): a(f"v_rcp_f32 v{32+i}, v{32+i}")
    for i in range(4): a(f"v_mul_f32 v{10+i}, v{10+i}, v{32+i}")
    for i in range(4): bfround(a, 10 + i, 32 + i)
    for i in range(4):
        a.wait(tw[i])
        for d in range(4):
            a(f"v_lshlrev_b32 v36, 16, v{16+4*i+d}")
            a(f"v_and_b32 v37, s67, v{16+4*i+d}")
            if i == 0:
                a(f"v_mul_f32 v{40+2*d}, v36, v{10+i}")
                a(f"v_mul_f32 v{41+2*d}, v37, v{10+i}")
            else:
                a(f"v_fmac_f32 v{40+2*d}, v36, v{10+i}")
                a(f"v_fmac_f32 v{41+2*d}, v37, v{10+i}")
    for p in range(4):
        a(f"v_permlane32_swap_b32 v{40+p}, v{44+p}")
    for p in range(4):
        a(f"v_add_f32 v{40+p}, v{40+p}, v{44+p}")
    for p in range(2):
        a(f"v_permlane16_swap_b32 v{40+p}, v{42+p}")
    for p in range(2):
        a(f"v_add_f32 v{40+p}, v{40+p}, v{42+p}")
    for rr in (8, 4, 2):
        for p in range(2):
            a(f"v_add_f32_dpp v{40+p}, v{40+p}, v{40+p} row_ror:{rr} row_mask:0xf bank_mask:0xf")
    a("v_lshrrev_b32 v2, 4, v1")
    a("v_lshlrev_b32 v2, 3, v2")
    a("v_lshl_add_u32 v2, v3, 5, v2")
    a(f"s_mul_i32 s63, s62, 12288")
    a("s_lshl_b32 s65, s64, 6")
    a("s_add_u32 s63, s63, s65")
    a(f"s_add_u32 s63, s63, {WS_MODP}")
    a("s_mov_b32 exec_lo, 0x00030003")
    a("s_mov_b32 exec_hi, 0x00030003")
    a(f"buffer_store_dwordx2 v[40:41], v2, s[4:7], s63 offen {SC}")
    a("s_mov_b64 exec, -1")
    a.label("L_p0_nomod")

def phase1(a):
    L_K, L_U, L_EX = 0, 8448, 17920
    srd(a, 8, P_SK, 0x200000)
    a("s_lshr_b32 s60, s3, 1")
    a("s_and_b32 s61, s3, 1")
    a("s_lshl_b32 s62, s2, 2")
    a(f"s_load_dword s72, s[{P_SD}:{P_SD+1}], s62")
    a("v_lshlrev_b32 v2, 4, v1")
    a("s_lshl_b32 s62, s2, 13")
    a("s_lshl_b32 s63, s3, 11")
    a("s_add_u32 s62, s62, s63")
    a("s_mul_i32 s63, s60, 4160")
    a("s_lshl_b32 s64, s61, 11")
    a("s_add_u32 s65, s63, s64")
    a(f"s_add_u32 m0, s65, {L_K + 32}")
    a("buffer_load_dwordx4 v2, s[8:11], s62 offen lds")
    tkern = a("buffer_load_dwordx4 v2, s[8:11], s62 offen offset:1024 lds")
    a("v_lshrrev_b32 v3, 2, v1")
    a("v_sub_u32 v3, 15, v3")
    a("v_lshlrev_b32 v3, 15, v3")
    a("v_and_b32 v4, 3, v1")
    a("v_lshl_add_u32 v3, v4, 4, v3")
    a("s_lshl_b32 s62, s2, 7")
    a("s_lshl_b32 s66, s60, 6")
    a("s_add_u32 s62, s62, s66")
    a("s_lshl_b32 s66, s61, 20")
    a("s_sub_u32 s62, s62, s66")
    a(f"s_add_u32 s62, s62, {WS_KV + 48*32768}")
    a("s_mul_i32 s66, s60, 4608")
    a("s_add_u32 s67, s66, s64")
    a(f"s_add_u32 m0, s67, {L_U}")
    a(f"buffer_load_dwordx4 v3, s[4:7], s62 offen {LC} lds")
    a(f"s_sub_u32 s62, s62, {16*32768}")
    a(f"s_add_u32 m0, s67, {L_U + 1024}")
    tkv = a(f"buffer_load_dwordx4 v3, s[4:7], s62 offen {LC} lds")
    for i in range(4): a(f"v_mov_b32 v{8+i}, 0")
    a("v_lshrrev_b32 v5, 5, v1")
    a("v_and_b32 v6, 31, v1")
    a("v_mul_u32_u24 v7, 4608, v5")
    a("v_lshl_add_u32 v7, v6, 4, v7")
    a(f"ds_write_b128 v7, v[8:11] offset:{L_U + 4096}")
    a("v_and_b32 v6, 1, v1")
    a("v_mul_u32_u24 v7, 4160, v5")
    a("v_lshl_add_u32 v7, v6, 4, v7")
    a(f"ds_write_b128 v7, v[8:11] offset:{L_K}")
    a("v_lshrrev_b32 v5, 2, v1")
    a("v_lshlrev_b32 v5, 15, v5")
    a("v_lshl_add_u32 v12, v4, 5, v5")
    a("s_lshl_b32 s62, s3, 19")
    a("s_lshl_b32 s68, s2, 7")
    a("s_add_u32 s68, s68, s62")
    a(f"s_add_u32 s62, s68, {WS_QT}")
    a(f"buffer_load_dwordx4 v[16:19], v12, s[4:7], s62 offen {LC}")
    a(f"buffer_load_dwordx4 v[20:23], v12, s[4:7], s62 offen offset:16 {LC}")
    a("v_lshlrev_b32 v13, 6, v1")
    a("s_lshl_b32 s62, s3, 12")
    a(f"s_add_u32 s62, s62, {WS_ST}")
    a("v_lshrrev_b32 v14, 2, v1")
    a("v_lshlrev_b32 v14, 11, v14")
    a("v_mul_u32_u24 v15, 12288, v4")
    a("v_add_u32 v14, v14, v15")
    a("s_lshl_b32 s69, s2, 3")
    a(f"s_add_u32 s69, s69, {WS_MODP}")
    a("s_mov_b32 exec_lo, 0x00ffffff")
    a("s_mov_b32 exec_hi, 0")
    tmod = a(f"buffer_load_dwordx2 v[24:25], v14, s[4:7], s69 offen {LC}")
    a("s_mov_b64 exec, -1")
    for i in range(4):
        tst = a(f"buffer_load_dwordx4 a[{4*i}:{4*i+3}], v13, s[4:7], s62 offen offset:{16*i} {LC}")
    a("v_and_b32 v5, 15, v1")
    a("v_lshrrev_b32 v6, 4, v1")
    a("v_lshlrev_b32 v6, 4, v6")
    a("v_lshl_add_u32 v26, v5, 1, v6")
    a("s_lshl_b32 s62, s61, 8")
    a("s_add_u32 s63, s63, s62")
    a(f"s_add_u32 s63, s63, {L_K + 2}")
    a("v_add_u32 v26, s63, v26")
    a("v_lshlrev_b32 v27, 5, v5")
    a("v_sub_u32 v27, v6, v27")
    a("s_add_u32 s66, s66, s62")
    a(f"s_add_u32 s66, s66, {L_U + 480}")
    a("v_add_u32 v27, s66, v27")
    a.wait(tkv)
    a("s_waitcnt lgkmcnt(0)")
    a("s_barrier")
    A = lambda rr, q: 128 + (rr * 8 + q) * 4
    B = lambda rr, d: 64 + (rr & 1) * 32 + d * 4
    ACC = lambda nt: 32 + nt * 4
    Q = lambda r: f"v[{r}:{r+3}]"
    ta, tb = {}, {}
    def loadA(rr):
        for q in range(8):
            ta[rr, q] = a(f"ds_read_b128 {Q(A(rr,q))}, v26 offset:{64*rr + 512*q}")
    def loadB(rr, d):
        tb[rr, d] = a(f"ds_read_b128 {Q(B(rr,d))}, v27 offset:{3584 - 512*d + 64*rr}")
    loadA(0)
    for d in range(8): loadB(0, d)
    for rr in range(1, 4): loadA(rr)
    a("s_waitcnt lgkmcnt(0)")
    for rr in range(4):
        for d in range(8):
            if rr < 3: loadB(rr + 1, d)
            if rr > 0: a.wait(tb[rr, d])
            for q in range(8 - d):
                c = "0" if (rr == 0 and d == 0) else Q(ACC(q + d))
                a(f"v_mfma_f32_16x16x32_bf16 {Q(ACC(q+d))}, {Q(A(rr,q))}, {Q(B(rr,d))}, {c}")
    a("v_lshrrev_b32 v6, 4, v1")
    a("v_lshl_add_u32 v6, v5, 2, v6")
    a("v_lshrrev_b32 v7, 3, v6")
    a("v_xor_b32 v6, v6, v7")
    a("v_lshlrev_b32 v6, 4, v6")
    a("s_lshl_b32 s62, s3, 13")
    a("v_add_u32 v6, s62, v6")
    for nt in range(8):
        a(f"ds_write_b128 v6, {Q(ACC(nt))} offset:{L_EX + nt*1024}")
    a("v_lshlrev_b32 v6, 1, v1")
    a("v_bfe_u32 v7, v1, 2, 3")
    a("v_xor_b32 v6, v6, v7")
    a("v_xor_b32 v7, 1, v6")
    a("s_lshl_b32 s62, s3, 11")
    a("v_lshlrev_b32 v6, 4, v6")
    a("v_lshlrev_b32 v7, 4, v7")
    a("v_add_u32 v6, s62, v6")
    a("v_add_u32 v7, s62, v7")
    a("s_lshl_b32 s62, s3, 10")
    a(f"s_sub_u32 s62, {L_U + 255*16}, s62")
    a("v_sub_u32 v5, s62, v2")
    a("ds_read_b128 v[64:67], v5")
    a("ds_read_b128 v[68:71], v5 offset:4608")
    a.wait(tst)
    for dpp in ("quad_perm:[1,0,3,2]", "quad_perm:[2,3,0,1]"):
        a(f"v_add_f32_dpp v24, v24, v24 {dpp} row_mask:0xf bank_mask:0xf")
        a(f"v_add_f32_dpp v25, v25, v25 {dpp} row_mask:0xf bank_mask:0xf")
    bfround(a, 24, 28); bfround(a, 25, 29)
    a("v_add_f32 v30, 1.0, v24")
    a("v_add_f32 v31, 1.0, v25")
    bfround(a, 30, 28); bfround(a, 31, 29)
    for c in range(2):
        a(f"v_readlane_b32 s{74+c}, v{24+c}, 0")
        a(f"v_readlane_b32 s{76+c}, v{30+c}, 4")
        a(f"v_readlane_b32 s{78+c}, v{24+c}, 8")
        a(f"v_readlane_b32 s{80+c}, v{30+c}, 16")
    a("s_waitcnt lgkmcnt(0)")
    a("s_barrier")
    a("s_lshl_b32 s82, s72, 16")
    a("s_and_b32 s83, s72, 0xffff0000")
    for c in range(2):
        for rh in range(2):
            w = c * 2 + rh
            a(f"ds_read_b128 {Q(128 + w*8)}, v6 offset:{L_EX + w*8192}")
            a(f"ds_read_b128 {Q(132 + w*8)}, v7 offset:{L_EX + w*8192}")
    a("s_mov_b32 s67, 0xffff0000")
    for i in range(16): a(f"v_accvgpr_read_b32 v{72+i}, a{i}")
    for c in range(2):
        a(f"v_mov_b32 v{28+c}, s{74+c}")
    for c in range(2):
        for i in range(8):
            qv, pv = 88 + c * 8 + i, 104 + c * 8 + i
            if c == 0: a(f"v_lshlrev_b32 v{qv}, 16, v{16+i}")
            else: a(f"v_and_b32 v{qv}, s67, v{16+i}")
            a(f"v_fma_f32 v{pv}, v{qv}, v{72+2*i}, v{73+2*i}")
            a(f"v_fma_f32 v{pv}, v{pv}, s{76+c}, v{28+c}")
            a(f"v_mul_f32 v{pv}, s{78+c}, v{pv}")
            e = 7 - i
            kr = 64 + 4 * c + (e >> 1)
            if e & 1: a(f"v_and_b32 v{160+c*8+i}, s67, v{kr}")
            else: a(f"v_lshlrev_b32 v{160+c*8+i}, 16, v{kr}")
    a("s_waitcnt lgkmcnt(0)")
    for c in range(2):
        for i in range(8):
            y = 128 + c * 16 + i
            a(f"v_add_f32 v{y}, v{y}, v{y+8}")
            a(f"v_fmac_f32 v{y}, s{82+c}, v{160+c*8+i}")
            a(f"v_fma_f32 v{88+c*8+i}, v{y}, v{104+c*8+i}, v{88+c*8+i}")
            a(f"v_mul_f32 v{104+c*8+i}, s{80+c}, v{88+c*8+i}")
    for i in range(8):
        a(f"v_cvt_pk_bf16_f32 v{176+i}, v{88+i}, v{96+i}")
    for c in range(2):
        for d in range(4):
            a(f"v_cvt_pk_bf16_f32 v{184+4*c+d}, v{104+c*8+2*d}, v{105+c*8+2*d}")
    a("v_lshrrev_b32 v5, 2, v1")
    a("v_lshlrev_b32 v5, 15, v5")
    a("v_lshl_add_u32 v5, v4, 4, v5")
    a(f"s_add_u32 s62, s68, {WS_X1}")
    a(f"s_add_u32 s63, s68, {WS_Z}")
    a(f"buffer_store_dwordx4 v[184:187], v5, s[4:7], s63 offen {SC}")
    a(f"buffer_store_dwordx4 v[188:191], v5, s[4:7], s63 offen offset:64 {SC}")
    a(f"buffer_store_dwordx4 v[176:179], v5, s[4:7], s62 offen {SC}")
    a(f"buffer_store_dwordx4 v[180:183], v5, s[4:7], s62 offen offset:64 {SC}")

def phase2(a, endlabel):
    L_T, L_SP = 131072, 133120
    a("s_cmp_ge_u32 s47, 28")
    a(f"s_cbranch_scc1 {endlabel}")
    a("s_lshr_b32 s60, s46, 1")
    a("s_lshl_b32 s60, s60, 2")
    a("s_and_b32 s61, s47, 3")
    a("s_add_u32 s60, s60, s61")
    a("s_and_b32 s61, s46, 1")
    a("s_mul_i32 s61, s61, 7")
    a("s_lshr_b32 s62, s47, 2")
    a("s_add_u32 s61, s61, s62")
    a("s_lshl_b32 s61, s61, 2")
    a("s_add_u32 s61, s61, s3")
    a("v_lshlrev_b32 v2, 4, v1")
    a("v_lshlrev_b32 v3, 3, v0")
    tm = []
    for vi, vec in enumerate((4, 3)):
        for kq in range(4):
            a(f"s_mov_b32 s62, {WS_MODP + kq*12288 + vec*2048}")
            tm.append(a(f"buffer_load_dwordx2 v[{16+vi*8+kq*2}:{17+vi*8+kq*2}], v3, s[4:7], s62 offen {LC}"))
    a("s_lshl_b32 s62, s61, 16")
    a(f"s_add_u32 s62, s62, {WS_W1T}")
    order = [n for s in range(32) for n in (s, 32 + s)]
    for n in range(64):
        if n and n % 4 == 0: a("s_add_u32 s62, s62, 4096")
        tw = a(f"buffer_load_dwordx4 a[{4*n}:{4*n+3}], v2, s[4:7], s62 offen offset:{(n%4)*1024} {LC}")
        if n == 40:
            a.wait(tm[-1])
            for vi in range(2):
                for c in range(2):
                    r = 16 + vi * 8 + c
                    a(f"v_add_f32 v{r}, v{r}, v{r+2}")
                    a(f"v_add_f32 v{r+4}, v{r+4}, v{r+6}")
                    a(f"v_add_f32 v{r}, v{r}, v{r+4}")
            bfround(a, 16, 18); bfround(a, 17, 18)
            a("v_add_f32 v16, 1.0, v16")
            a("v_add_f32 v17, 1.0, v17")
            a("v_cvt_pk_bf16_f32 v16, v16, v17")
            a("v_cvt_pk_bf16_f32 v24, v24, v25")
            a("v_and_b32 v4, 0xf9, v0")
            a("v_bfe_u32 v5, v0, 1, 1")
            a("v_lshl_add_u32 v4, v5, 2, v4")
            a("v_bfe_u32 v5, v0, 2, 1")
            a("v_lshl_add_u32 v4, v5, 1, v4")
            a("v_lshlrev_b32 v4, 2, v4")
            a(f"v_add_u32 v4, {L_T}, v4")
            a("ds_write_b32 v4, v16")
            a("ds_write_b32 v4, v24 offset:1024")
    a("s_lshl_b32 s63, s60, 17")
    a("s_lshl_b32 s64, s3, 13")
    a("s_add_u32 s63, s63, s64")
    tz, tx = [], []
    for t in range(4):
        a(f"s_add_u32 s65, s63, {WS_Z + t*32768}")
        for hlf in range(2):
            a(f"s_add_u32 m0, s64, {t*32768 + hlf*4096}")
            if hlf: a("s_add_u32 s65, s65, 4096")
            for i in range(4):
                tk = a(f"buffer_load_dwordx4 v2, s[4:7], s65 offen offset:{i*1024} {LC} lds")
        tz.append(tk)
    for t in range(4):
        a(f"s_add_u32 s65, s63, {WS_X1 + t*32768}")
        for i in range(8):
            if i == 4: a("s_add_u32 s65, s65, 4096")
            r = 128 + t * 32 + i * 4
            tk = a(f"buffer_load_dwordx4 v[{r}:{r+3}], v2, s[4:7], s65 offen offset:{(i%4)*1024} {LC}")
        tx.append(tk)
    a("s_mov_b32 s71, 0x3f803f80")
    a("v_and_b32 v4, 3, v1")
    a("v_lshlrev_b32 v4, 3, v4")
    a("v_bfe_u32 v5, v1, 2, 1")
    a("v_lshl_add_u32 v4, v5, 2, v4")
    a("v_bfe_u32 v5, v1, 4, 1")
    a("v_lshl_add_u32 v4, v5, 1, v4")
    a("v_lshrrev_b32 v5, 5, v1")
    a("v_lshl_add_u32 v4, v5, 5, v4")
    a("v_lshlrev_b32 v4, 2, v4")
    a("s_lshl_b32 s65, s3, 8")
    a(f"s_add_u32 s65, s65, {L_SP}")
    a("v_add_u32 v4, s65, v4")
    for t in range(4):
        a.wait(tx[t])
        for j in range(8): a(f"v_mov_b32 v{32+j}, 0")
        for i in range(8):
            for j in range(4):
                r = 128 + t * 32 + i * 4 + j
                a(f"v_dot2c_f32_bf16 v{32+j}, s71, v{r}")
                a(f"v_dot2c_f32_bf16 v{36+j}, v{r}, v{r}")
        for p in range(4): a(f"v_permlane32_swap_b32 v{32+p}, v{36+p}")
        for p in range(4): a(f"v_add_f32 v{32+p}, v{32+p}, v{36+p}")
        for p in range(2): a(f"v_permlane16_swap_b32 v{32+p}, v{34+p}")
        for p in range(2): a(f"v_add_f32 v{32+p}, v{32+p}, v{34+p}")
        for p in range(2): a(f"v_add_f32_dpp v{32+p}, v{32+p}, v{32+p} row_ror:8 row_mask:0xf bank_mask:0xf")
        a(f"ds_write_b64 v4, v[32:33] offset:{t*1024}")
    a("s_waitcnt vmcnt(0) lgkmcnt(0)")
    a("s_barrier")
    a("v_and_b32 v4, 1, v1")
    a("v_lshlrev_b32 v4, 10, v4")
    a("v_lshrrev_b32 v5, 5, v1")
    a("v_lshl_add_u32 v4, v5, 4, v4")
    a(f"v_add_u32 v4, {L_T}, v4")
    Q = lambda r: f"v[{r}:{r+3}]"
    T16 = lambda r: f"v[{r}:{r+15}]"
    tb = {}
    for s in range(32):
        tb[s] = a(f"ds_read_b128 {Q(128 + s*4)}, v4 offset:{s*32}")
        if s % 8 == 7: a("s_waitcnt lgkmcnt(0)")
    for s in range(32):
        a(f"v_mfma_f32_32x32x16_bf16 {T16(32)}, a[{4*s}:{4*s+3}], {Q(128+s*4)}, {'0' if s == 0 else T16(32)}")
        a(f"v_mfma_f32_32x32x16_bf16 {T16(48)}, a[{128+4*s}:{128+4*s+3}], {Q(128+s*4)}, {'0' if s == 0 else T16(48)}")
    for r in range(32):
        a(f"v_mov_b32_dpp v{128+r}, v{32+r} quad_perm:[0,0,2,2] row_mask:0xf bank_mask:0xf")
        a(f"v_mov_b32_dpp v{160+r}, v{32+r} quad_perm:[1,1,3,3] row_mask:0xf bank_mask:0xf")
    a("v_and_b32 v4, 31, v1")
    a("v_lshlrev_b32 v4, 2, v4")
    a(f"v_add_u32 v4, {L_SP}, v4")
    for t in range(4):
        for w in range(4):
            a(f"ds_read2_b32 v[{16+2*w}:{17+2*w}], v4 offset0:{(w*256)//4} offset1:{(w*256+128)//4}")
        a("v_add_u32 v4, 1024, v4")
        a("s_waitcnt lgkmcnt(0)")
        for c in range(2):
            a(f"v_add_f32 v{16+c}, v{16+c}, v{18+c}")
            a(f"v_add_f32 v{20+c}, v{20+c}, v{22+c}")
            a(f"v_add_f32 v{8+2*t+c}, v{16+c}, v{20+c}")
        ln_finish(a, 8 + 2 * t, 9 + 2 * t, 16)
    tr_addr(a, 6, 7)
    a("v_add_u32 v7, 0x10000, v6")
    a("s_mul_i32 s65, s60, 448")
    a("s_lshl_b32 s66, s61, 1")
    a("s_add_u32 s65, s65, s66")
    a("s_lshl_b32 s65, s65, 10")
    a(f"s_add_u32 s65, s65, {WS_HH}")
    NB = 4
    BF = lambda n: 16 + (n % NB) * 4
    tok = {}
    def loadB(n):
        t, s = divmod(n, 32)
        base = 6 + (t >> 1); off = (t & 1) * 32768 + s * 1024
        a(f"ds_read_b64_tr_b16 v[{BF(n)}:{BF(n)+1}], v{base} offset:{off}")
        tok[n] = a(f"ds_read_b64_tr_b16 v[{BF(n)+2}:{BF(n)+3}], v{base} offset:{off+512}")
    def epilogue_ops(t):
        acc = 32 + (t & 1) * 32
        m, r = 8 + 2 * t, 9 + 2 * t
        ops = []
        for i in range(16):
            g, u = acc + i, acc + 16 + i
            ops.append(f"v_fma_f32 v{g}, -v{m}, v{128+i}, v{g}")
            ops.append(f"v_fma_f32 v{u}, -v{m}, v{144+i}, v{u}")
            ops.append(f"v_fma_f32 v{g}, v{g}, v{r}, v{160+i}")
            ops.append(f"v_fma_f32 v{u}, v{u}, v{r}, v{176+i}")
            ops.append(f"v_mul_f32 v{g}, v{g}, v{u}")
            if i & 1:
                ops.append(f"v_cvt_pk_bf16_f32 v{96 + (i>>1)}, v{g-1}, v{g}")
            if i == 7:
                ops.append(f"buffer_store_dwordx4 v[96:99], v2, s[4:7], s65 offen {SC}")
        ops.append(f"buffer_store_dwordx4 v[100:103], v2, s[4:7], s65 offen offset:1024 {SC}")
        ops.append(f"s_add_u32 s65, s65, {112*1024}")
        return ops
    for n in range(NB - 1): loadB(n)
    pend = []
    for n in range(128):
        t, s = divmod(n, 32)
        if n + NB - 1 < 128: loadB(n + NB - 1)
        a.wait(tok[n])
        acc = 32 + (t & 1) * 32
        a(f"v_mfma_f32_32x32x16_bf16 {T16(acc)}, a[{4*s}:{4*s+3}], {Q(BF(n))}, {'0' if s == 0 else T16(acc)}")
        if s >= 2:
            for _ in range(2):
                if pend: a(pend.pop(0))
        a(f"v_mfma_f32_32x32x16_bf16 {T16(acc+16)}, a[{128+4*s}:{128+4*s+3}], {Q(BF(n))}, {'0' if s == 0 else T16(acc+16)}")
        if s >= 2:
            for _ in range(2):
                if pend: a(pend.pop(0))
        if s == 31:
            assert not pend
            pend = epilogue_ops(t)
    for o in pend: a(o)

def phase3(a):
    srd(a, 8, P_OUT, 0x200000)
    a("s_and_b32 s60, s47, 7")
    a("s_lshr_b32 s61, s47, 3")
    a("s_lshl_b32 s62, s46, 1")
    a("s_lshr_b32 s63, s61, 1")
    a("s_add_u32 s62, s62, s63")
    a("s_lshl_b32 s62, s62, 2")
    a("s_and_b32 s63, s61, 1")
    a("s_add_u32 s64, s62, s63")
    a("s_sub_u32 s65, s62, s63")
    a("s_add_u32 s65, s65, 3")
    a("v_lshlrev_b32 v2, 4, v1")
    a("v_and_b32 v3, 7, v0")
    a("v_lshlrev_b32 v4, 5, v3")
    a("s_lshl_b32 s66, s60, 8")
    a(f"s_add_u32 s66, s66, {WS_MODP + 5*2048}")
    for kq in range(4):
        a(f"buffer_load_dwordx4 v[{16+8*kq}:{19+8*kq}], v4, s[4:7], s66 offen {LC}")
        tg = a(f"buffer_load_dwordx4 v[{20+8*kq}:{23+8*kq}], v4, s[4:7], s66 offen offset:16 {LC}")
        a("s_add_u32 s66, s66, 12288")
    a("v_lshrrev_b32 v5, 3, v0")
    a("v_bfe_u32 v6, v5, 2, 1")
    a("v_lshlrev_b32 v6, 6, v6")
    a("v_lshrrev_b32 v7, 3, v5")
    a("v_lshl_add_u32 v6, v7, 4, v6")
    a("v_and_b32 v7, 3, v5")
    a("v_lshl_add_u32 v6, v7, 2, v6")
    a("v_lshl_add_u32 v6, v3, 9, v6")
    a("s_lshl_b32 s67, s60, 12")
    for p, sp in enumerate((64, 65)):
        a(f"s_lshl_b32 s66, s{sp}, 15")
        a("s_add_u32 s66, s66, s67")
        a(f"s_add_u32 s66, s66, {WS_X1}")
        for j in range(4):
            a(f"buffer_load_dword v{248+4*p+j}, v6, s[4:7], s66 offen offset:{128*j} {LC}")
    a.wait(tg)
    for j in range(8):
        a(f"v_add_f32 v{16+j}, v{16+j}, v{24+j}")
        a(f"v_add_f32 v{32+j}, v{32+j}, v{40+j}")
        a(f"v_add_f32 v{240+j}, v{16+j}, v{32+j}")
        bfround(a, 240 + j, 8)
    a("s_mul_i32 s66, s60, 112")
    a("s_mul_i32 s68, s3, 28")
    a("s_add_u32 s66, s66, s68")
    a("s_lshl_b32 s66, s66, 11")
    a(f"s_add_u32 s66, s66, {WS_WDT}")
    for p, sp in enumerate((64, 65)):
        a(f"s_mul_i32 s{69+p}, s{sp}, 112")
        a(f"s_add_u32 s{69+p}, s{69+p}, s68")
        a(f"s_lshl_b32 s{69+p}, s{69+p}, 10")
        a(f"s_add_u32 s{69+p}, s{69+p}, {WS_HH}")
    th = {}
    for s in range(28):
        if s and s % 2 == 0: a("s_add_u32 s66, s66, 4096")
        if s and s % 4 == 0: a("s_add_u32 s69, s69, 4096")
        for dt in range(2):
            n = 2 * s + dt
            a(f"buffer_load_dwordx4 a[{4*n}:{4*n+3}], v2, s[4:7], s66 offen offset:{(n%4)*1024} {LC}")
        th[0, s] = a(f"buffer_load_dwordx4 v[{16+4*s}:{19+4*s}], v2, s[4:7], s69 offen offset:{(s%4)*1024} {LC}")
    def loadB(s):
        if s and s % 4 == 0: a("s_add_u32 s70, s70, 4096")
        th[1, s] = a(f"buffer_load_dwordx4 v[{128+4*s}:{131+4*s}], v2, s[4:7], s70 offen offset:{(s%4)*1024} {LC}")
    a("v_and_b32 v7, 31, v1")
    a("v_lshrrev_b32 v8, 5, v1")
    a("v_and_b32 v9, 15, v7")
    a("v_xor_b32 v8, v8, v9")
    a("s_lshl_b32 s66, s3, 13")
    a("v_lshlrev_b32 v7, 8, v7")
    a("v_add_u32 v7, s66, v7")
    a("v_and_b32 v9, 15, v5")
    a("v_lshlrev_b32 v10, 1, v3")
    a("v_xor_b32 v10, v10, v9")
    a("v_xor_b32 v11, 1, v10")
    a("v_lshlrev_b32 v9, 8, v5")
    a("v_lshl_add_u32 v10, v10, 4, v9")
    a("v_lshl_add_u32 v11, v11, 4, v9")
    a("v_lshlrev_b32 v12, 10, v5")
    a("v_lshl_add_u32 v12, v3, 4, v12")
    a("s_mov_b32 s71, 0xffff0000")
    accs = (("a", 224), ("v", 16))
    for p in range(2):
        k, base = accs[p]
        for s in range(28):
            if p == 0: loadB(s)
            a.wait(th[p, s])
            for dt in range(2):
                d = f"{k}[{base+16*dt}:{base+16*dt+15}]"
                b = 16 + 112 * p + 4 * s
                n = 2 * s + dt
                a(f"v_mfma_f32_32x32x16_bf16 {d}, a[{4*n}:{4*n+3}], v[{b}:{b+3}], {'0' if s == 0 else d}")
    for p in range(2):
        k, base = accs[p]
        for c2 in range(8):
            a(f"v_xor_b32 v13, {2*c2}, v8")
            a(f"v_lshl_add_u32 v13, v13, 4, v7")
            a(f"ds_write_b128 v13, {k}[{base+4*c2}:{base+4*c2+3}] offset:{p*32768}")
    a("s_waitcnt lgkmcnt(0)")
    a("s_barrier")
    for p, sp in enumerate((64, 65)):
        for w in range(4):
            a(f"ds_read_b128 v[{64+8*w}:{67+8*w}], v10 offset:{p*32768 + w*8192}")
            a(f"ds_read_b128 v[{68+8*w}:{71+8*w}], v11 offset:{p*32768 + w*8192}")
        a(f"s_lshl_b32 s66, s{sp}, 15")
        a("s_lshl_b32 s67, s60, 7")
        a("s_add_u32 s66, s66, s67")
        a("s_waitcnt lgkmcnt(0)")
        for j in range(8):
            a(f"v_add_f32 v{64+j}, v{64+j}, v{72+j}")
            a(f"v_add_f32 v{80+j}, v{80+j}, v{88+j}")
            a(f"v_add_f32 v{64+j}, v{64+j}, v{80+j}")
            x = 248 + 4 * p + (j >> 1)
            if j & 1: a(f"v_and_b32 v13, s71, v{x}")
            else: a(f"v_lshlrev_b32 v13, 16, v{x}")
            a(f"v_fma_f32 v{64+j}, v{64+j}, v{240+j}, v13")
        for d in range(4):
            a(f"v_cvt_pk_bf16_f32 v{96+4*p+d}, v{64+2*d}, v{65+2*d}")
        a(f"buffer_store_dwordx4 v[{96+4*p}:{99+4*p}], v12, s[8:11], s66 offen")

def kd(name, vg=512, acc=256):
    return f""".p2align 6
.amdhsa_kernel {name}
  .amdhsa_next_free_vgpr {vg}
  .amdhsa_next_free_sgpr 102
  .amdhsa_accum_offset {acc}
  .amdhsa_group_segment_fixed_size 0
  .amdhsa_kernarg_size 120
  .amdhsa_user_sgpr_count 2
  .amdhsa_user_sgpr_kernarg_segment_ptr 1
  .amdhsa_system_sgpr_workgroup_id_x 1
  .amdhsa_float_denorm_mode_32 3
.end_amdhsa_kernel
"""

def main(path):
    ks = [("p0_kernel", lambda a: phase0(a), 49152), ("p1_kernel", lambda a: phase1(a), 51200),
          ("p2_kernel", lambda a: phase2(a, "L_end_p2_kernel"), 137216), ("p3_kernel", lambda a: phase3(a), 65536)]
    txt = ""
    for n, f, lds in ks:
        txt += f"; @launch kernel={n} grid=(256,1,1) block=(256,1,1) lds={lds}\n"
    txt += '.amdgcn_target "amdgcn-amd-amdhsa--gfx950"\n.text\n'
    for n, f, lds in ks:
        a = Asm()
        a.raw(f".globl {n}\n.p2align 8\n.type {n},@function\n{n}:")
        prologue(a, f"L_end_{n}")
        f(a)
        a.label(f"L_end_{n}")
        a("s_endpgm")
        txt += a.text()
        print(n, "instrs", a.ninstr, "nops", a.nnop, file=sys.stderr)
    txt += '.section .rodata,"a"\n'
    for n, f, lds in ks: txt += kd(n)
    open(path, "w").write(txt)

if __name__ == "__main__":
    main(sys.argv[1] if len(sys.argv) > 1 else "v1.s")
```

```python
import sys
from dsl import Asm
NAME = "adaLN_cond__ssm_conv_h3__glu_gated_bilinear__prompt"

WS_KV, WS_QT, WS_Z, WS_X1, WS_HH = 0x0, 0x200000, 0x400000, 0x600000, 0x800000
WS_ST1, WS_MODP, WS_ST2, WS_F0, WS_F1, WS_EP = 0x1000000, 0x1010000, 0x1020000, 0x1030000, 0x1034000, 0x1038000
WS_STAMP = 0x1800000
WS_SIZE = 0x2000000
OOB = 0x40000000
SPIN = 3000

L_KC, L_UU, L_TB = 131072, 147712, 156928
L_EX, L_SH = L_KC, L_UU
L_WD = 49152
LDS_BYTES = 163840

P_Q, P_K, P_V, P_SH, P_SK, P_SD, P_WG, P_WU, P_WD, P_C, P_WM, P_OUT, P_DBG, P_WS = 16, 18, 20, 22, 24, 26, 30, 32, 34, 36, 38, 40, 42, 44
S_XCD, S_IDX, S_TAG, S_HI, S_SENT, S_RB, S_CT, S_D, S_SPARE = 46, 47, 56, 57, 58, 59, 28, 29, 75
STAMP = False
Q4 = lambda r, k="v": f"{k}[{r}:{r+3}]"
P2 = lambda r: f"v[{r}:{r+1}]"

def stamp(a, i):
    if STAMP: a(f"s_memrealtime s[{76+2*i}:{77+2*i}]")

def srd(a, d, p, nbytes):
    a(f"s_mov_b32 s{d}, s{p}")
    a(f"s_mov_b32 s{d+1}, s{p+1}")
    a(f"s_mov_b32 s{d+2}, {hex(nbytes)}")
    a(f"s_mov_b32 s{d+3}, 0x20000")

def bfround(a, x, t):
    a(f"v_cvt_pk_bf16_f32 v{t}, v{x}, v{x}")
    a(f"v_lshlrev_b32 v{x}, 16, v{t}")

def ln_finish(a, s, q, t):
    a(f"v_mul_f32 v{s}, 0x3b000000, v{s}")
    a(f"v_mul_f32 v{q}, 0x3b000000, v{q}")
    a(f"v_fma_f32 v{q}, -v{s}, v{s}, v{q}")
    a(f"v_max_f32 v{q}, 0, v{q}")
    bfround(a, q, t)
    a(f"v_add_f32 v{q}, 0x3727c5ac, v{q}")
    bfround(a, q, t)
    a(f"v_sqrt_f32 v{q}, v{q}")
    bfround(a, q, t)
    a(f"v_rcp_f32 v{q}, v{q}")
    bfround(a, s, t)

def san(a, regs):
    for r in regs: a(f"v_min_u32 v{r}, s{S_SENT}, v{r}")

def check_ops(regs, t):
    ops = []
    regs = list(regs)
    if len(regs) == 1:
        ops.append(f"v_cmp_eq_u32 vcc, -1, v{regs[0]}"); return ops
    if len(regs) == 2:
        ops.append(f"v_max_u32 v{t}, v{regs[0]}, v{regs[1]}")
        rest = []
    else:
        ops.append(f"v_max3_u32 v{t}, v{regs[0]}, v{regs[1]}, v{regs[2]}")
        rest = regs[3:]
    while rest:
        if len(rest) >= 2:
            ops.append(f"v_max3_u32 v{t}, v{t}, v{rest[0]}, v{rest[1]}"); rest = rest[2:]
        else:
            ops.append(f"v_max_u32 v{t}, v{t}, v{rest[0]}"); rest = rest[1:]
    ops.append(f"v_cmp_eq_u32 vcc, -1, v{t}")
    return ops

class K:
    def __init__(self):
        self.a = Asm()
        self.slow = []
        self.nl = 0

    def retry(self, loads, regs, t, pre=(), post=()):
        a = self.a
        self.nl += 1
        n = self.nl
        a(f"s_cbranch_vccnz L_slow{n}")
        a.label(f"L_back{n}")
        self.slow.append((n, list(loads), list(regs), t, list(pre), list(post)))

    def emit_slow(self):
        a = self.a
        for n, loads, regs, t, pre, post in self.slow:
            a.label(f"L_slow{n}")
            a("s_nop 7"); a("s_nop 7")
            a("s_mov_b32 s74, 0")
            a.label(f"L_sl{n}")
            a("s_sleep 4")
            for o in pre: a(o)
            for o in loads: a(o)
            for o in post: a(o)
            a("s_waitcnt vmcnt(0)")
            if regs and isinstance(regs[0], str):
                for o in regs: a(o)
            else:
                for o in check_ops(regs, t): a(o)
            a("s_add_u32 s74, s74, 1")
            a(f"s_cmp_ge_u32 s74, {SPIN}")
            a(f"s_cbranch_scc1 L_sx{n}")
            a(f"s_cbranch_vccnz L_sl{n}")
            a.label(f"L_sx{n}")
            a("s_nop 4")
            a(f"s_branch L_back{n}")

def w1_dma(a, sr):
    t = None
    for j in range(32):
        a(f"s_add_u32 m0, s61, {j*1024}")
        t = a(f"buffer_load_dwordx4 v{10 + (j & 1)}, s[{sr}:{sr+3}], s60 offen lds")
        if j < 31: a(f"s_add_u32 s60, s60, {4*3584}")
    return t

def w1_setup(a):
    a("v_lshrrev_b32 v12, 4, v1")
    a("v_bfe_u32 v13, v1, 1, 3")
    a("v_xor_b32 v13, v13, v12")
    a("v_and_b32 v14, 1, v1")
    a("v_lshl_add_u32 v13, v13, 1, v14")
    a("v_mul_u32_u24 v12, 3584, v12")
    a("v_lshl_add_u32 v10, v13, 4, v12")
    a("v_xor_b32 v13, 8, v13")
    a("v_lshl_add_u32 v11, v13, 4, v12")
    a(f"s_mul_i32 s60, s3, {128*3584}")
    a(f"s_lshr_b32 s61, s{S_CT}, 2")
    a("s_lshl_b32 s61, s61, 8")
    a("s_add_u32 s60, s60, s61")
    a(f"s_add_u32 s60, s60, s{S_SPARE}")
    a("s_lshl_b32 s61, s3, 15")

def w1_tr(a, mat):
    a("v_lshrrev_b32 v12, 2, v1")
    a("v_and_b32 v13, 7, v12")
    a("s_lshl_b32 s63, s3, 1")
    a("v_xor_b32 v13, s63, v13")
    a("v_lshlrev_b32 v12, 8, v12")
    a("v_and_b32 v14, 3, v1")
    a("v_lshl_add_u32 v12, v14, 3, v12")
    a("v_xor_b32 v14, 1, v13")
    a("v_lshl_add_u32 v15, v14, 5, v12")
    a("v_lshl_add_u32 v12, v13, 5, v12")
    a("v_mov_b32 v13, v15")
    a("v_add_u32 v14, 0x10000, v12")
    a("v_add_u32 v15, 0x10000, v13")
    for s in range(16):
        for ct in range(2):
            r = (s * 4 + mat * 2 + ct) * 4
            base = 12 + ct + 2 * (s >> 3)
            for h in range(2):
                a(f"ds_read_b64_tr_b16 a[{r+2*h}:{r+2*h+1}], v{base} offset:{(s & 7)*8192 + h*4096}")

def build():
    k = K(); a = k.a
    a.raw(f".globl {NAME}_kernel\n.p2align 8\n.type {NAME}_kernel,@function\n{NAME}_kernel:")
    a("s_cmp_ge_u32 s2, 256")
    a("s_cbranch_scc1 L_end")
    stamp(a, 0)
    a("s_load_dwordx16 s[16:31], s[0:1], 0")
    a("s_load_dwordx8 s[32:39], s[0:1], 64")
    a("s_load_dwordx4 s[40:43], s[0:1], 96")
    a("s_load_dwordx2 s[44:45], s[0:1], 112")
    a("v_lshrrev_b32 v1, 6, v0")
    a("v_readfirstlane_b32 s3, v1")
    a("v_and_b32 v1, 63, v0")
    a("v_lshlrev_b32 v2, 4, v1")
    a(f"s_and_b32 s{S_XCD}, s2, 7")
    a(f"s_lshr_b32 s{S_IDX}, s2, 3")
    a(f"s_mov_b32 s{S_HI}, 0xffff0000")
    a(f"s_mov_b32 s{S_SENT}, 0xfffffffe")
    a(f"s_lshr_b32 s60, s{S_IDX}, 2")
    a(f"s_lshl_b32 s61, s{S_XCD}, 3")
    a("s_add_u32 s60, s60, s61")
    a(f"s_and_b32 s61, s{S_IDX}, 3")
    a("s_lshl_b32 s62, s60, 15")
    a("s_lshl_b32 s63, s61, 8")
    a("s_add_u32 s62, s62, s63")
    a("s_lshl_b32 s63, s3, 6")
    a("s_add_u32 s62, s62, s63")
    a("v_and_b32 v5, 15, v1")
    a("v_lshrrev_b32 v6, 4, v1")
    a("v_lshlrev_b32 v7, 13, v6")
    a("v_lshl_add_u32 v7, v5, 2, v7")
    a("v_add_u32 v7, s62, v7")
    a("v_subrev_u32 v3, 3072, v7")
    a("v_add_u32 v4, 4096, v7")
    a("s_lshl_b32 s63, s61, 2")
    a("s_add_u32 s63, s63, s3")
    a("s_lshl_b32 s64, s63, 4")
    a("s_lshl_b32 s63, s64, 4")
    a("v_lshlrev_b32 v8, 4, v5")
    a("s_lshl_b32 s69, s60, 8")
    a("s_add_u32 s69, s69, s64")
    a("s_lshl_b32 s69, s69, 7")
    a(f"s_add_u32 s70, s69, {WS_QT}")
    a("s_lshl_b32 s65, s60, 2")
    a("s_add_u32 s65, s65, s61")
    a("s_lshl_b32 s65, s65, 3")
    for i in range(4): a(f"v_mov_b32 v{44+i}, -1")
    a("v_lshrrev_b32 v9, 2, v1")
    a("v_lshlrev_b32 v9, 14, v9")
    a("v_and_b32 v48, 3, v1")
    a("v_lshl_add_u32 v9, v48, 4, v9")
    a("s_lshl_b32 s71, s3, 18")
    a("s_lshl_b32 s72, s2, 6")
    a("s_add_u32 s71, s71, s72")
    a("s_waitcnt lgkmcnt(0)")
    stamp(a, 1)
    srd(a, 8, P_K, 0x200000)
    srd(a, 12, P_V, 0x200000)
    for i in range(11):
        base, off = (3, i) if i < 3 else (7, i - 3) if i < 7 else (4, i - 7)
        a(f"buffer_load_dword v{10+i}, v{base}, s[8:11], 0 offen offset:{off*1024}")
    for i in range(8):
        base, off = (7, i) if i < 4 else (4, i - 4)
        a(f"buffer_load_dword v{21+i}, v{base}, s[12:15], 0 offen offset:{off*1024}")
    srd(a, 52, P_SH, 4096)
    srd(a, 4, P_WS, WS_SIZE)
    a("buffer_load_dwordx4 v[32:35], v8, s[52:55], s63 offen")
    a(f"s_add_u32 s72, s{P_WS}, {WS_EP}")
    a(f"s_addc_u32 s73, s{P_WS+1}, 0")
    a(f"s_load_dword s{S_TAG}, s[72:73], 0")
    a("s_lshl_b32 s62, s2, 2")
    a(f"s_load_dword s{S_D}, s[{P_SD}:{P_SD+1}], s62")
    a(f"s_lshr_b32 s{S_RB}, s{S_XCD}, 1")
    a(f"s_lshl_b32 s{S_RB}, s{S_RB}, 2")
    a(f"s_add_u32 s{S_RB}, s{S_RB}, s61")
    a(f"s_and_b32 s62, s{S_XCD}, 1")
    a("s_mul_i32 s62, s62, 7")
    a(f"s_lshr_b32 s63, s{S_IDX}, 2")
    a("s_add_u32 s62, s62, s63")
    a("s_lshl_b32 s62, s62, 2")
    a(f"s_add_u32 s{S_CT}, s62, s3")
    a(f"s_cmp_ge_u32 s{S_IDX}, 28")
    a(f"s_cselect_b32 s{S_SPARE}, {OOB}, 0")
    a("buffer_store_dwordx4 v[44:47], v2, s[4:7], s69 offen sc1")
    a("buffer_store_dwordx4 v[44:47], v2, s[4:7], s69 offen offset:1024 sc1")
    a("buffer_store_dwordx4 v[44:47], v2, s[4:7], s70 offen sc1")
    a("buffer_store_dwordx4 v[44:47], v2, s[4:7], s70 offen offset:1024 sc1")
    for base in (WS_Z, WS_X1):
        for h in range(2):
            a(f"s_add_u32 s72, s71, {base + h*64*16384}")
            a("buffer_store_dwordx4 v[44:47], v9, s[4:7], s72 offen sc1")
    a("s_lshr_b32 s66, s2, 2")
    a("s_and_b32 s67, s2, 3")
    a("s_lshl_b32 s68, s66, 2")
    a("s_add_u32 s68, s68, s3")
    a("s_mul_i32 s62, s67, 12288")
    a("s_lshl_b32 s63, s68, 6")
    a("s_add_u32 s62, s62, s63")
    a(f"s_add_u32 s62, s62, {WS_MODP}")
    a("s_cmp_ge_u32 s2, 192")
    a(f"s_cselect_b32 s74, {OOB}, 0")
    a("s_add_u32 s62, s62, s74")
    a("s_lshl_b32 s63, s65, 3")
    a(f"s_add_u32 s63, s63, {WS_ST1}")
    a(f"s_and_b32 s72, s{S_XCD}, 1")
    a("s_lshl_b32 s73, s3, 1")
    a("s_add_u32 s72, s72, s73")
    a("s_lshl_b32 s72, s72, 4")
    a(f"s_add_u32 s72, s72, s{S_RB}")
    a("s_lshl_b32 s72, s72, 7")
    a(f"s_add_u32 s72, s72, {WS_ST2 + OOB}")
    a(f"s_sub_u32 s72, s72, s{S_SPARE}")
    a("s_mov_b64 exec, 0xf")
    a("buffer_store_dwordx4 v[44:47], v2, s[4:7], s62 offen sc1")
    a("buffer_store_dwordx4 v[44:47], v2, s[4:7], s63 offen sc1")
    a("s_mov_b64 exec, 0xff")
    tclr = a("buffer_store_dwordx4 v[44:47], v2, s[4:7], s72 offen sc1")
    a("s_mov_b64 exec, -1")
    srd(a, 52, P_SK, 0x200000)
    srd(a, 48, P_Q, 0x200000)
    a("s_lshl_b32 s72, s2, 13")
    a("s_lshl_b32 s73, s3, 11")
    a("s_add_u32 s72, s72, s73")
    a("v_add_u32 v49, s72, v2")
    a("v_subrev_u32 v48, 4, v49")
    a("v_max_i32 v48, 0, v48")
    a("buffer_load_dwordx4 v[128:131], v49, s[52:55], 0 offen")
    a("buffer_load_dwordx4 v[132:135], v49, s[52:55], 0 offen offset:1024")
    a("buffer_load_dword v136, v48, s[52:55], 0 offen")
    tkern = a("buffer_load_dword v137, v49, s[52:55], 0 offen offset:1020")
    for i in range(8):
        base, off = (7, i) if i < 4 else (4, i - 4)
        tq = a(f"buffer_load_dword v{36+i}, v{base}, s[48:51], 0 offen offset:{off*1024}")
    a("s_lshl_b32 s72, s3, 1")
    a("s_add_u32 s72, s72, s65")
    a("s_lshl_b32 s72, s72, 10")
    a("v_lshrrev_b32 v140, 5, v1")
    a("v_and_b32 v141, 31, v1")
    a("v_lshlrev_b32 v141, 4, v141")
    a("v_lshl_add_u32 v141, v140, 10, v141")
    a("buffer_load_dwordx4 v[120:123], v141, s[48:51], s72 offen")
    tst = a("buffer_load_dwordx4 v[124:127], v141, s[48:51], s72 offen offset:512")
    srd(a, 8, P_WM, 512 * 6144)
    srd(a, 12, P_C, 1024)
    a(f"s_mul_i32 s72, s67, {128*6144}")
    a("s_lshl_b32 s73, s68, 5")
    a("s_add_u32 s72, s72, s73")
    a("s_add_u32 s72, s72, s74")
    a("v_lshrrev_b32 v142, 1, v1")
    a("v_and_b32 v143, 1, v1")
    a("v_mul_u32_u24 v144, 6144, v142")
    a("v_lshl_add_u32 v144, v143, 4, v144")
    a("v_lshlrev_b32 v142, 1, v142")
    a("s_lshl_b32 s73, s67, 8")
    for i in range(4): a(f"buffer_load_ushort v{148+i}, v142, s[12:15], s73 offen offset:{64*i}")
    for i in range(4):
        tmod = a(f"buffer_load_dwordx4 {Q4(152+4*i)}, v144, s[8:11], s72 offen")
        if i < 3: a(f"s_add_u32 s72, s72, {32*6144}")
    srd(a, 48, P_WG, 512 * 3584)
    a("v_lshrrev_b32 v172, 4, v1")
    a("v_bfe_u32 v173, v1, 1, 3")
    a("v_xor_b32 v173, v173, v172")
    a("v_lshl_add_u32 v173, v173, 1, v143")
    a("v_mul_u32_u24 v172, 3584, v172")
    a("v_lshl_add_u32 v170, v173, 4, v172")
    a("v_xor_b32 v173, 8, v173")
    a("v_lshl_add_u32 v171, v173, 4, v172")
    a(f"s_mul_i32 s72, s3, {128*3584}")
    a(f"s_lshr_b32 s73, s{S_CT}, 2")
    a("s_lshl_b32 s73, s73, 8")
    a("s_add_u32 s72, s72, s73")
    a(f"s_add_u32 s72, s72, s{S_SPARE}")
    a("s_lshl_b32 s73, s3, 15")
    NG1 = 24
    def gdma(j):
        a(f"s_add_u32 m0, s73, {j*1024}")
        t = a(f"buffer_load_dwordx4 v{170 + (j & 1)}, s[48:51], s72 offen lds")
        if j < 31: a(f"s_add_u32 s72, s72, {4*3584}")
        return t
    for j in range(8): gdma(j)
    stamp(a, 2)
    a.wait(tclr)
    a("s_waitcnt lgkmcnt(0)")
    a("s_barrier")
    stamp(a, 3)
    a(f"s_mul_i32 s{S_TAG+0}, s{S_TAG}, 0x9e3779b1")
    a(f"s_add_u32 s{S_TAG}, s{S_TAG}, 0x7f4a7c15")
    a("s_lshr_b32 s60, s2, 2")
    a("s_lshl_b32 s60, s60, 7")
    a("s_and_b32 s61, s2, 3")
    a("s_lshl_b32 s61, s61, 2")
    a("s_add_u32 s60, s60, s61")
    a("s_cmp_eq_u32 s3, 0")
    a(f"s_cselect_b32 s61, 0, {OOB}")
    a("s_add_u32 s64, s60, s61")
    a(f"s_add_u32 s60, s64, {WS_F0}")
    a(f"v_mov_b32 v48, s{S_TAG}")
    a("s_mov_b64 exec, 1")
    a("buffer_store_dword v48, v2, s[4:7], s60 offen sc1")
    a("s_mov_b64 exec, -1")
    for j in range(8, 32): tg = gdma(j)
    for i in range(11):
        a(f"v_lshlrev_b32 v{50+2*i}, 16, v{10+i}")
        a(f"v_and_b32 v{51+2*i}, s{S_HI}, v{10+i}")
    for j in range(4):
        for c in range(2):
            src = 32 + 2 * c + (j >> 1)
            if j & 1: a(f"v_and_b32 v{88+2*j+c}, s{S_HI}, v{src}")
            else: a(f"v_lshlrev_b32 v{88+2*j+c}, 16, v{src}")
    for j in (3, 2, 1, 0):
        for i in range(8):
            if j == 3: a(f"v_pk_mul_f32 {P2(96+2*i)}, {P2(50+2*(i+3-j))}, {P2(88+2*j)}")
            else: a(f"v_pk_fma_f32 {P2(96+2*i)}, {P2(50+2*(i+3-j))}, {P2(88+2*j)}, {P2(96+2*i)}")
    for i in range(8):
        a(f"v_lshlrev_b32 v{72+2*i}, 16, v{21+i}")
        a(f"v_and_b32 v{73+2*i}, s{S_HI}, v{21+i}")
    for i in range(8):
        a(f"v_pk_mul_f32 {P2(96+2*i)}, {P2(96+2*i)}, {P2(72+2*i)}")
    for c in range(2):
        for d in range(4):
            a(f"v_cvt_pk_bf16_f32 v{112+4*c+d}, v{96+2*(7-2*d)+c}, v{96+2*(6-2*d)+c}")
    san(a, range(112, 120))
    a("s_mul_i32 s68, s3, 2304")
    a(f"s_add_u32 s68, s68, {L_SH}")
    a("v_mul_u32_u24 v44, 144, v5")
    a("v_add_u32 v44, s68, v44")
    a("v_sub_u32 v45, 3, v6")
    a("v_lshl_add_u32 v45, v45, 4, v44")
    a("v_lshl_add_u32 v46, v6, 5, v44")
    a("ds_write_b128 v45, v[112:115]")
    a("ds_write_b128 v45, v[116:119] offset:64")
    a("v_lshrrev_b32 v47, 3, v1")
    a("v_mul_u32_u24 v47, 144, v47")
    a("v_and_b32 v48, 7, v1")
    a("v_lshl_add_u32 v47, v48, 4, v47")
    a("v_add_u32 v47, s68, v47")
    r0 = a("ds_read_b128 v[112:115], v47")
    r1 = a(f"ds_read_b128 v[116:119], v47 offset:{8*144}")
    a.wait(r0)
    a("buffer_store_dwordx4 v[112:115], v2, s[4:7], s69 offen sc1")
    a.wait(r1)
    a("buffer_store_dwordx4 v[116:119], v2, s[4:7], s69 offen offset:1024 sc1")
    stamp(a, 4)
    a.wait(tq)
    san(a, range(36, 44))
    a("ds_write_b128 v46, v[36:39]")
    a("ds_write_b128 v46, v[40:43] offset:16")
    r0 = a("ds_read_b128 v[36:39], v47")
    r1 = a(f"ds_read_b128 v[40:43], v47 offset:{8*144}")
    a("s_lshr_b32 s60, s3, 1")
    a("s_and_b32 s61, s3, 1")
    a("v_cmp_eq_u32 vcc, 0, v1")
    a("s_cmp_eq_u32 s61, 0")
    a("s_cselect_b64 s[72:73], vcc, 0")
    a("v_cndmask_b32 v136, v136, 0, s[72:73]")
    for j in range(2):
        for d in range(4):
            prev = 136 + j if d == 0 else 128 + 4 * j + d - 1
            a(f"v_alignbit_b32 v{50+4*j+d}, v{128+4*j+d}, v{prev}, 16")
    a("s_mul_i32 s65, s60, 8320")
    a("s_lshl_b32 s66, s61, 11")
    a("s_add_u32 s66, s66, s65")
    a(f"s_add_u32 s66, s66, {L_KC + 32}")
    a("v_add_u32 v44, s66, v2")
    a.wait(r0)
    a("buffer_store_dwordx4 v[36:39], v2, s[4:7], s70 offen sc1")
    a.wait(r1)
    a("buffer_store_dwordx4 v[40:43], v2, s[4:7], s70 offen offset:1024 sc1")
    a("ds_write_b128 v44, v[128:131]")
    a("ds_write_b128 v44, v[132:135] offset:1024")
    a("ds_write_b128 v44, v[50:53] offset:4160")
    a("ds_write_b128 v44, v[54:57] offset:5184")
    for i in range(4): a(f"v_mov_b32 v{60+i}, 0")
    a("v_bfe_u32 v44, v1, 1, 2")
    a("v_mul_u32_u24 v44, 4160, v44")
    a("v_lshl_add_u32 v44, v143, 4, v44")
    a(f"v_add_u32 v44, {L_KC}, v44")
    a("ds_write_b128 v44, v[60:63]")
    a.wait(tst)
    a("s_mov_b32 s67, 0x3f803f80")
    a("v_mov_b32 v50, 0")
    a("v_mov_b32 v51, 0")
    for i in range(8):
        a(f"v_dot2c_f32_bf16 v50, s67, v{120+i}")
        a(f"v_dot2c_f32_bf16 v51, v{120+i}, v{120+i}")
    for dpp in ("quad_perm:[1,0,3,2] row_mask:0xf", "quad_perm:[2,3,0,1] row_mask:0xf", "row_half_mirror row_mask:0xf",
                "row_mirror row_mask:0xf", "row_bcast:15 row_mask:0xa"):
        a(f"v_add_f32_dpp v50, v50, v50 {dpp} bank_mask:0xf")
        a(f"v_add_f32_dpp v51, v51, v51 {dpp} bank_mask:0xf")
    ln_finish(a, 50, 51, 52)
    a("v_mul_f32 v53, v50, v51")
    a("v_sub_f32 v53, 0, v53")
    a(f"v_min_u32 v52, s{S_SENT}, v51")
    a(f"v_min_u32 v53, s{S_SENT}, v53")
    a("v_lshlrev_b32 v140, 3, v140")
    a("s_lshl_b32 s66, s3, 4")
    a("s_add_u32 s66, s66, s63")
    a("s_mov_b32 exec_lo, 0x10000")
    a("s_mov_b32 exec_hi, 0x10000")
    a("buffer_store_dwordx2 v[52:53], v140, s[4:7], s66 offen sc1")
    a("s_mov_b64 exec, -1")
    a.wait(tmod)
    for i in range(4):
        a(f"v_lshlrev_b32 v{148+i}, 16, v{148+i}")
        a(f"v_mul_f32 v{32+i}, 0xbfb8aa3b, v{148+i}")
    for i in range(4): a(f"v_exp_f32 v{32+i}, v{32+i}")
    for i in range(4): a(f"v_add_f32 v{32+i}, 1.0, v{32+i}")
    for i in range(4): a(f"v_rcp_f32 v{32+i}, v{32+i}")
    for i in range(4): a(f"v_mul_f32 v{148+i}, v{148+i}, v{32+i}")
    for i in range(4): a(f"v_cvt_pk_bf16_f32 v{32+i}, v{148+i}, v{148+i}")
    for i in range(4): a(f"v_lshlrev_b32 v{64+2*i}, 16, v{32+i}")
    for i in range(4):
        for d in range(4):
            a(f"v_lshlrev_b32 v{72+2*d}, 16, v{152+4*i+d}")
            a(f"v_and_b32 v{73+2*d}, s{S_HI}, v{152+4*i+d}")
        for d in range(4):
            if i == 0: a(f"v_pk_mul_f32 {P2(80+2*d)}, {P2(72+2*d)}, {P2(64+2*i)} op_sel_hi:[1,0]")
            else: a(f"v_pk_fma_f32 {P2(80+2*d)}, {P2(72+2*d)}, {P2(64+2*i)}, {P2(80+2*d)} op_sel_hi:[1,0,1]")
    for p in range(4): a(f"v_permlane32_swap_b32 v{80+p}, v{84+p}")
    for p in range(4): a(f"v_add_f32 v{80+p}, v{80+p}, v{84+p}")
    for p in range(2): a(f"v_permlane16_swap_b32 v{80+p}, v{82+p}")
    for p in range(2): a(f"v_add_f32 v{80+p}, v{80+p}, v{82+p}")
    for rr in (8, 4, 2):
        for p in range(2):
            a(f"v_add_f32_dpp v{80+p}, v{80+p}, v{80+p} row_ror:{rr} row_mask:0xf bank_mask:0xf")
    san(a, (80, 81))
    a("v_lshlrev_b32 v44, 3, v6")
    a("v_lshl_add_u32 v44, v143, 5, v44")
    a("s_mov_b32 exec_lo, 0x00030003")
    a("s_mov_b32 exec_hi, 0x00030003")
    a("buffer_store_dwordx2 v[80:81], v44, s[4:7], s62 offen sc1")
    a("s_mov_b64 exec, -1")
    a("v_lshlrev_b32 v3, 7, v1")
    a(f"s_mov_b32 s62, {WS_F0}")
    ld_f0 = "buffer_load_dwordx4 v[16:19], v3, s[4:7], s62 offen sc1"
    tf = a(ld_f0)
    stamp(a, 5)
    a.wait(tg)
    a("s_waitcnt lgkmcnt(0)")
    a("s_barrier")
    stamp(a, 6)
    a("v_lshrrev_b32 v4, 3, v1")
    a("v_lshlrev_b32 v7, 15, v4")
    a("v_lshl_add_u32 v7, v48, 4, v7")
    a("s_lshl_b32 s66, s3, 19")
    a("s_lshl_b32 s67, s2, 7")
    a("s_add_u32 s66, s66, s67")
    a(f"s_add_u32 s67, s66, {8*32768}")
    chk_f = [f"v_xor_b32 v16, s{S_TAG}, v16", f"v_xor_b32 v17, s{S_TAG}, v17", f"v_xor_b32 v18, s{S_TAG}, v18", f"v_xor_b32 v19, s{S_TAG}, v19",
             "v_or_b32 v16, v16, v17", "v_or3_b32 v16, v16, v18, v19", "v_cmp_ne_u32 vcc, 0, v16"]
    a.wait(tf)
    for o in chk_f: a(o)
    k.retry([ld_f0], chk_f, None)
    ld_kv = ["buffer_load_dwordx4 v[16:19], v7, s[4:7], s66 offen sc1", "buffer_load_dwordx4 v[20:23], v7, s[4:7], s67 offen sc1"]
    for o in ld_kv: tkv = a(o)
    a("s_or_b32 s62, s2, s3")
    a("s_cmp_eq_u32 s62, 0")
    a(f"s_cselect_b32 s62, {WS_EP}, {OOB}")
    a(f"v_mov_b32 v24, s{S_TAG}")
    a("s_mov_b64 exec, 1")
    a("buffer_store_dword v24, v2, s[4:7], s62 offen sc1")
    a("s_mov_b64 exec, -1")
    a("v_lshrrev_b32 v24, 5, v1")
    a("v_and_b32 v25, 31, v1")
    a("v_mul_u32_u24 v24, 4608, v24")
    a("v_lshl_add_u32 v24, v25, 4, v24")
    a(f"v_add_u32 v24, {L_UU + 4096}, v24")
    a("ds_write_b128 v24, v[60:63]")
    a("v_and_b32 v24, 1, v1")
    a("v_xor_b32 v24, 1, v24")
    a("v_mul_u32_u24 v24, 4160, v24")
    a("v_bfe_u32 v25, v1, 1, 3")
    a("v_lshl_add_u32 v24, v25, 2, v24")
    a("v_lshl_add_u32 v24, v6, 4, v24")
    a("s_lshl_b32 s62, s61, 8")
    a("s_add_u32 s63, s65, s62")
    a(f"s_add_u32 s63, s63, {L_KC + 4}")
    a("v_add_u32 v24, s63, v24")
    for i in range(1, 4): a(f"v_add_u32 v{24+i}, {1024*i}, v24")
    A = lambda rr, q: 16 * ((rr * 8 + q) >> 1) + 8 + 4 * (q & 1)
    for rr in range(4):
        for q in range(8):
            o = (64 * rr + 512 * (q & 1)) // 4
            a(f"ds_read2_b32 a[{A(rr,q)}:{A(rr,q)+1}], v{24 + (q >> 1)} offset0:{o} offset1:{o+1}")
            a(f"ds_read2_b32 a[{A(rr,q)+2}:{A(rr,q)+3}], v{24 + (q >> 1)} offset0:{o+2} offset1:{o+3}")
    w1_tr(a, 0)
    a("v_bfe_u32 v24, v1, 2, 1")
    a("v_mul_u32_u24 v24, 4608, v24")
    a("v_and_b32 v25, 3, v1")
    a("v_lshl_add_u32 v24, v25, 4, v24")
    a("v_lshlrev_b32 v26, 6, v4")
    a("v_sub_u32 v24, v24, v26")
    a("s_lshl_b32 s63, s3, 10")
    a(f"s_sub_u32 s63, {L_UU + 55*64}, s63")
    a("v_add_u32 v24, s63, v24")
    a.wait(tkv)
    for o in check_ops(range(16, 24), 26): a(o)
    k.retry(ld_kv, range(16, 24), 26)
    a("ds_write_b128 v24, v[16:19] offset:512")
    a("ds_write_b128 v24, v[20:23]")
    a("v_lshlrev_b32 v27, 5, v5")
    a("v_lshlrev_b32 v26, 4, v6")
    a("v_sub_u32 v27, v26, v27")
    a("s_mul_i32 s63, s60, 4608")
    a("s_add_u32 s63, s63, s62")
    a(f"s_add_u32 s63, s63, {L_UU + 480}")
    a("v_add_u32 v27, s63, v27")
    a("s_lshl_b32 s66, s3, 18")
    a("s_lshl_b32 s67, s2, 7")
    a("s_add_u32 s66, s66, s67")
    a(f"s_add_u32 s66, s66, {WS_QT}")
    a(f"s_add_u32 s67, s66, {32*32768}")
    a("s_lshl_b32 s68, s3, 11")
    a(f"s_add_u32 s68, s68, {WS_ST1}")
    a(f"s_add_u32 s69, s68, 8192")
    a("s_lshl_b32 s70, s2, 3")
    a(f"s_add_u32 s70, s70, {WS_MODP}")
    a("v_lshlrev_b32 v3, 5, v1")
    a("v_lshrrev_b32 v8, 2, v1")
    a("v_min_u32 v8, 5, v8")
    a("v_lshlrev_b32 v8, 11, v8")
    a("v_mul_u32_u24 v26, 12288, v25")
    a("v_add_u32 v8, v8, v26")
    ld_ep = ["buffer_load_dwordx2 v[28:29], v8, s[4:7], s70 offen sc1",
             "buffer_load_dwordx4 v[144:147], v7, s[4:7], s66 offen sc1",
             "buffer_load_dwordx4 v[48:51], v3, s[4:7], s68 offen sc1",
             "buffer_load_dwordx4 v[52:55], v3, s[4:7], s68 offen offset:16 sc1",
             "buffer_load_dwordx4 v[148:151], v7, s[4:7], s67 offen sc1",
             "buffer_load_dwordx4 v[56:59], v3, s[4:7], s69 offen sc1",
             "buffer_load_dwordx4 v[60:63], v3, s[4:7], s69 offen offset:16 sc1"]
    ep_regs = [28, 29] + list(range(144, 152)) + list(range(48, 64))
    for o in ld_ep: tep = a(o)
    a("s_waitcnt lgkmcnt(0)")
    a("s_barrier")
    stamp(a, 7)
    B = lambda rr, d: 64 + (rr & 1) * 32 + d * 4
    tb = {}
    def loadB(key, rr, d):
        tb[key, rr, d] = a(f"ds_read_b128 {Q4(B(rr,d))}, v27 offset:{3584 - 512*d + 64*rr}")
    for d in range(4): loadB(0, 0, d)
    class Rec:
        def __init__(s): s.l = []
        def __call__(s, t): s.l.append(t)
    T = {}
    fill = []
    def pop(n):
        for _ in range(n):
            if fill:
                o = fill.pop(0)
                if callable(o): o()
                elif isinstance(o, tuple): T[o[0]] = a(o[1])
                else: a(o)
    rec = Rec()
    srd(rec, 48, P_WU, 512 * 3584)
    w1_setup(rec)
    w1_dma(rec, 48)
    rec(f"s_mul_i32 s60, s{S_RB}, 56")
    rec(f"s_add_u32 s60, s60, s{S_CT}")
    rec("s_lshl_b32 s60, s60, 10")
    rec(f"s_add_u32 s60, s60, s{S_SPARE}")
    rec(f"s_add_u32 s65, s60, {WS_HH}")
    for i in range(4): rec(f"v_mov_b32 v{12+i}, -1")
    rec("s_mov_b32 s60, s65")
    for nt in range(8):
        rec(("U", "buffer_store_dwordx4 v[12:15], v2, s[4:7], s60 offen sc1"))
        if nt < 7: rec(f"s_add_u32 s60, s60, {16*56*1024}")
    rec("v_lshl_add_u32 v30, v5, 2, v6")
    rec("v_lshrrev_b32 v31, 3, v30")
    rec("v_xor_b32 v30, v30, v31")
    rec("v_lshlrev_b32 v30, 4, v30")
    rec("s_lshl_b32 s62, s3, 12")
    rec(f"s_add_u32 s62, s62, {L_EX}")
    rec("v_add_u32 v30, s62, v30")
    rec("v_xor_b32 v31, v1, v4")
    rec("v_lshlrev_b32 v31, 4, v31")
    rec("s_lshl_b32 s62, s3, 10")
    rec(f"s_add_u32 s62, s62, {L_EX}")
    rec("v_add_u32 v31, s62, v31")
    rec("s_lshl_b32 s62, s3, 9")
    rec(f"s_sub_u32 s62, {L_UU + 4088 - 2048}, s62")
    rec("v_lshlrev_b32 v26, 3, v1")
    rec("v_sub_u32 v26, s62, v26")
    fill += rec.l
    ACC = lambda nt: (32 if nt < 4 else 128) + (nt & 3) * 4
    for rr in range(4):
        for d in range(4):
            if rr < 3: loadB(0, rr + 1, d)
            else:
                loadB(1, 0, d); loadB(1, 0, d + 4)
            a.wait(tb[0, rr, d])
            for q in range(4 - d):
                c = "0" if (rr == 0 and d == 0) else Q4(ACC(q + d))
                a(f"v_mfma_f32_16x16x32_bf16 {Q4(ACC(q+d))}, {Q4(A(rr,q),'a')}, {Q4(B(rr,d))}, {c}")
                pop(4)
    pop(1000)
    stamp(a, 8)
    S_A1, S_CB, S_DD = 66, 68, 72
    def prep(h):
        ops = []
        for c in range(2):
            for i in range(4):
                p, t = 160 + h * 8 + c * 4 + i, 176 + h * 8 + c * 4 + i
                qs = 144 + 4 * h + i
                st = 48 + 8 * h + 2 * i
                ops.append(f"v_lshlrev_b32 v{t}, 16, v{qs}" if c == 0 else f"v_and_b32 v{t}, s{S_HI}, v{qs}")
                e = 3 - i
                kr = 152 + 4 * h + 2 * c + (e >> 1)
                ops.append(f"v_and_b32 v216, s{S_HI}, v{kr}" if e & 1 else f"v_lshlrev_b32 v216, 16, v{kr}")
                ops.append(f"v_fma_f32 v{p}, v{t}, v{st}, v{st+1}")
                ops.append(f"v_mul_f32 v216, s{S_DD+c}, v216")
                ops.append(f"v_fma_f32 v{p}, v{p}, s{S_A1+c}, v{24+c}")
                ops.append(f"v_fmac_f32 v{t}, v216, v{p}")
        return ops
    def final(h, pk):
        ops = []
        for c in range(2):
            y = 192 + c * 8
            p, t = 160 + h * 8 + c * 4, 176 + h * 8 + c * 4
            if pk:
                for i in (0, 2): ops.append(f"v_pk_add_f32 {P2(y+i)}, {P2(y+i)}, {P2(y+4+i)}")
                for i in (0, 2): ops.append(f"v_pk_fma_f32 {P2(t+i)}, {P2(y+i)}, {P2(p+i)}, {P2(t+i)}")
                for i in (0, 2): ops.append(f"v_pk_mul_f32 {P2(p+i)}, {P2(t+i)}, s[{S_CB}:{S_CB+1}] op_sel:[0,{c}] op_sel_hi:[1,{c}]")
            else:
                for i in range(4): ops.append(f"v_add_f32 v{y+i}, v{y+i}, v{y+4+i}")
                for i in range(4): ops.append(f"v_fmac_f32 v{t+i}, v{y+i}, v{p+i}")
                for i in range(4): ops.append(f"v_mul_f32 v{p+i}, s{S_CB+c}, v{t+i}")
        p, t = 160 + h * 8, 176 + h * 8
        for d in range(4): ops.append(f"v_cvt_pk_bf16_f32 v{208+d}, v{p+2*d}, v{p+2*d+1}")
        for d in range(4): ops.append(f"v_min_u32 v{208+d}, s{S_SENT}, v{208+d}")
        ops.append(f"s_add_u32 s62, s71, {WS_Z + h*64*16384}")
        ops.append("buffer_store_dwordx4 v[208:211], v9, s[4:7], s62 offen sc1")
        for i in range(4): ops.append(f"v_cvt_pk_bf16_f32 v{212+i}, v{t+i}, v{t+4+i}")
        for d in range(4): ops.append(f"v_min_u32 v{212+d}, s{S_SENT}, v{212+d}")
        ops.append(f"s_add_u32 s62, s71, {WS_X1 + h*64*16384}")
        ops.append("buffer_store_dwordx4 v[212:215], v9, s[4:7], s62 offen sc1")
        return ops
    def yreads():
        return [("Y", f"ds_read_b128 {Q4(192 + 4*w)}, v31 offset:{w*4096}") for w in range(4)]
    rec = Rec()
    for h in range(2):
        for c in range(2):
            rec(("KVE", f"ds_read_b64 {P2(152+4*h+2*c)}, v26 offset:{c*4608 + (1-h)*2048}"))
    rec(lambda: a.wait(tep))
    for o in check_ops(ep_regs, 216): rec(o)
    rec(lambda: k.retry(ld_ep, ep_regs, 216))
    for nt in range(4): rec(("XW", f"ds_write_b128 v30, {Q4(ACC(nt))} offset:{nt*1024}"))
    for dpp in ("quad_perm:[1,0,3,2]", "quad_perm:[2,3,0,1]"):
        rec(f"v_add_f32_dpp v28, v28, v28 {dpp} row_mask:0xf bank_mask:0xf")
        rec(f"v_add_f32_dpp v29, v29, v29 {dpp} row_mask:0xf bank_mask:0xf")
    rec("v_cvt_pk_bf16_f32 v216, v28, v29")
    rec("v_lshlrev_b32 v28, 16, v216")
    rec(f"v_and_b32 v29, s{S_HI}, v216")
    rec("v_add_f32 v218, 1.0, v28")
    rec("v_add_f32 v219, 1.0, v29")
    rec("v_cvt_pk_bf16_f32 v216, v218, v219")
    rec("v_lshlrev_b32 v218, 16, v216")
    rec(f"v_and_b32 v219, s{S_HI}, v216")
    rec(lambda: a.wait(T["XW"]))
    rec("s_barrier")
    for o in yreads(): rec(o)
    for c in range(2):
        rec(f"v_readlane_b32 s{60+c}, v{28+c}, 8")
        rec(f"v_readlane_b32 s{S_CB+c}, v{218+c}, 16")
    for c in range(2):
        rec(f"v_mul_f32 v{28+c}, s{60+c}, v{28+c}")
        rec(f"v_mul_f32 v{218+c}, s{60+c}, v{218+c}")
    rec(f"s_lshl_b32 s{S_DD}, s{S_D}, 16")
    rec(f"s_and_b32 s{S_DD+1}, s{S_D}, s{S_HI}")
    for c in range(2):
        rec(f"v_readlane_b32 s{60+c}, v{28+c}, 0")
        rec(f"v_readlane_b32 s{S_A1+c}, v{218+c}, 4")
    for c in range(2): rec(f"v_mov_b32 v{24+c}, s{60+c}")
    rec(lambda: a.wait(T["KVE"]))
    for o in prep(0): rec(o)
    rec(lambda: a.wait(T["Y"]))
    for o in final(0, False): rec(o)
    rec("s_barrier")
    rec("v_lshlrev_b32 v3, 3, v0")
    ld_tb = []
    for vi, vec in enumerate((4, 3)):
        for kq in range(4):
            ld_tb.append(f"s_mov_b32 s62, {WS_MODP + kq*12288 + vec*2048}")
            ld_tb.append(f"buffer_load_dwordx2 {P2(220+vi*8+kq*2)}, v3, s[4:7], s62 offen sc1")
    for o in ld_tb[:-1]: rec(o)
    rec(("TBL", ld_tb[-1]))
    for o in prep(1): rec(o)
    fill += rec.l
    nm = 0
    for rr in range(4):
        for d in range(8):
            if rr < 3: loadB(1, rr + 1, d)
            a.wait(tb[1, rr, d])
            for nt in range(max(4, d), 8):
                q = nt - d
                c = "0" if (rr == 0 and d == 0) else Q4(ACC(nt))
                a(f"v_mfma_f32_16x16x32_bf16 {Q4(ACC(nt))}, {Q4(A(rr,q),'a')}, {Q4(B(rr,d))}, {c}")
                nm += 1
                pop(2 if nm % 4 else 3)
    print("conv-b leftover fillers", len(fill), file=sys.stderr)
    pop(1000)
    stamp(a, 9)
    a.wait(T["TBL"])
    for o in check_ops(range(220, 236), 216): a(o)
    k.retry(ld_tb, range(220, 236), 216)
    for nt in range(4, 8): a(f"ds_write_b128 v30, {Q4(ACC(nt))} offset:{(nt-4)*1024}")
    for vi in range(2):
        r = 220 + vi * 8
        a(f"v_pk_add_f32 {P2(r)}, {P2(r)}, {P2(r+2)}")
        a(f"v_pk_add_f32 {P2(r+4)}, {P2(r+4)}, {P2(r+6)}")
        a(f"v_pk_add_f32 {P2(r)}, {P2(r)}, {P2(r+4)}")
    a("v_cvt_pk_bf16_f32 v216, v220, v221")
    a("v_cvt_pk_bf16_f32 v228, v228, v229")
    a("v_lshlrev_b32 v220, 16, v216")
    a(f"v_and_b32 v221, s{S_HI}, v216")
    a("v_add_f32 v220, 1.0, v220")
    a("v_add_f32 v221, 1.0, v221")
    a("v_cvt_pk_bf16_f32 v220, v220, v221")
    a("v_and_b32 v3, 0xf1, v0")
    a("v_bfe_u32 v8, v0, 1, 2")
    a("v_lshl_add_u32 v3, v8, 2, v3")
    a("v_bfe_u32 v8, v0, 3, 1")
    a("v_lshl_add_u32 v3, v8, 1, v3")
    a("v_lshlrev_b32 v3, 2, v3")
    a(f"v_add_u32 v3, {L_TB}, v3")
    a("ds_write_b32 v3, v220")
    a("ds_write_b32 v3, v228 offset:1024")
    a("s_waitcnt lgkmcnt(0)")
    a("s_barrier")
    for o in yreads(): ty = a(o[1])
    a(f"s_add_u32 s60, s64, {WS_F1}")
    a(f"v_mov_b32 v8, s{S_TAG}")
    a("s_mov_b64 exec, 1")
    a("buffer_store_dword v8, v2, s[4:7], s60 offen sc1")
    a("s_mov_b64 exec, -1")
    a.wait(ty)
    for o in final(1, True): a(o)
    stamp(a, 10)
    S_DB, S_T2, S_WDS, S_WDM = 66, 67, 68, 69
    a(f"s_and_b32 s{S_DB}, s{S_IDX}, 7")
    a(f"s_lshr_b32 s60, s{S_IDX}, 3")
    a(f"s_lshl_b32 s61, s{S_XCD}, 1")
    a("s_lshr_b32 s62, s60, 1")
    a("s_add_u32 s61, s61, s62")
    a("s_and_b32 s60, s60, 1")
    a("s_lshl_b32 s60, s60, 4")
    a(f"s_add_u32 s{S_T2}, s60, s61")
    srd(a, 48, P_WD, 1792 * 1024)
    a(f"s_mul_i32 s{S_WDS}, s3, {448*1024}")
    a(f"s_lshl_b32 s60, s{S_DB}, 7")
    a(f"s_add_u32 s{S_WDS}, s{S_WDS}, s60")
    a(f"s_mul_i32 s{S_WDM}, s3, 28672")
    a(f"s_add_u32 s{S_WDM}, s{S_WDM}, {L_WD}")
    a("v_bfe_u32 v7, v1, 1, 2")
    a("v_bfe_u32 v8, v1, 4, 2")
    a("v_xor_b32 v7, v7, v8")
    a("v_and_b32 v8, 1, v1")
    a("v_lshl_add_u32 v7, v7, 1, v8")
    a("v_lshlrev_b32 v7, 4, v7")
    a("v_lshl_add_u32 v7, v4, 10, v7")
    def wd_dma(j):
        return [f"s_add_u32 m0, s{S_WDM}, {(j % 28)*1024}",
                ("WD", f"buffer_load_dwordx4 v7, s[48:51], s{S_WDS} offen lds"),
                f"s_add_u32 s{S_WDS}, s{S_WDS}, 8192"]
    ld_f1 = [f"s_mov_b32 s62, {WS_F1}", "buffer_load_dwordx4 v[240:243], v9, s[4:7], s62 offen sc1"]
    chk_f1 = [f"v_xor_b32 v{240+i}, s{S_TAG}, v{240+i}" for i in range(4)] + \
             ["v_or_b32 v240, v240, v241", "v_or3_b32 v240, v240, v242, v243", "v_cmp_ne_u32 vcc, 0, v240"]
    a("v_lshlrev_b32 v9, 7, v1")
    a(f"s_cmp_lg_u32 s{S_SPARE}, 0")
    a("s_cbranch_scc1 L_spare")
    S_ZS, S_S2 = 70, 71
    a(f"s_lshl_b32 s{S_ZS}, s{S_RB}, 14")
    a("s_lshl_b32 s60, s3, 12")
    a(f"s_add_u32 s{S_ZS}, s{S_ZS}, s60")
    a(f"s_add_u32 s{S_ZS}, s{S_ZS}, {WS_Z}")
    a(f"s_lshl_b32 s{S_S2}, s{S_RB}, 7")
    a(f"s_add_u32 s{S_S2}, s{S_S2}, {WS_ST2}")
    ZR = lambda t: 64 + (t & 1) * 16
    def ld_z(t):
        return [f"s_add_u32 s62, s{S_ZS}, {t*16*16384}"] + \
               [f"buffer_load_dwordx4 {Q4(ZR(t)+4*i)}, v2, s[4:7], s62 offen offset:{i*1024} sc1" for i in range(4)]
    def ld_s2(t):
        return [f"s_add_u32 s62, s{S_S2}, {t*16*128}", f"buffer_load_dwordx2 {P2(10 + 2*(t&1))}, v8, s[4:7], s62 offen sc1"]
    for o in ld_z(0): T["Z0"] = a(o)
    w1_tr(a, 1)
    a("v_and_b32 v3, 1, v1")
    a("v_lshlrev_b32 v3, 10, v3")
    a("v_lshl_add_u32 v3, v6, 4, v3")
    a(f"v_add_u32 v3, {L_TB}, v3")
    for s in range(16): a(f"ds_read_b128 {Q4(132+4*s)}, v3 offset:{s*64}")
    a("s_lshl_b32 s60, s3, 12")
    a("v_add_u32 v3, s60, v2")
    a("v_lshlrev_b32 v8, 3, v5")
    a("v_lshlrev_b32 v4, 6, v4")
    a("v_and_b32 v12, 3, v1")
    a("v_lshl_add_u32 v4, v12, 4, v4")
    a("v_bfe_u32 v12, v1, 2, 1")
    a("v_lshl_add_u32 v4, v12, 3, v4")
    a("s_waitcnt lgkmcnt(0)")
    a("s_barrier")
    stamp(a, 11)
    NB = 4
    BF = lambda n: 16 + (n % NB) * 4
    tok = {}
    def loadZ(n):
        t, s = divmod(n, 16)
        off = (t % 3) * 16384 + s * 1024
        a(f"ds_read_b64_tr_b16 {P2(BF(n))}, v4 offset:{off}")
        tok[n] = a(f"ds_read_b64_tr_b16 {P2(BF(n)+2)}, v4 offset:{off+512}")
    GA = lambda t: 32 + (t & 1) * 16
    def stage_ops(t):
        ops = [lambda: a.wait(T[f"Z{t}"])]
        regs = range(ZR(t), ZR(t) + 16)
        ops += check_ops(regs, 14)
        ops.append(lambda: k.retry(ld_z(t), regs, 14))
        for i in range(4): ops.append(("ZW", f"ds_write_b128 v3, {Q4(ZR(t)+4*i)} offset:{(t % 3)*16384 + i*1024}"))
        return ops
    def epi_ops(t):
        acc = GA(t); m, r = 10 + 2 * (t & 1), 11 + 2 * (t & 1)
        ops = [lambda: a.wait(T[f"S{t}"])]
        ops += check_ops((m, r), 14)
        ops.append(lambda: k.retry(ld_s2(t), (m, r), 14))
        for i in range(8):
            g, u = acc + i, acc + 8 + i
            ops.append(f"v_fma_f32 v{g}, -v{m}, v{96+i}, v{g}")
            ops.append(f"v_fma_f32 v{u}, -v{m}, v{104+i}, v{u}")
            ops.append(f"v_fma_f32 v{g}, v{g}, v{r}, v{112+i}")
            ops.append(f"v_fma_f32 v{u}, v{u}, v{r}, v{120+i}")
            ops.append(f"v_mul_f32 v{g}, v{g}, v{u}")
            if i & 1:
                ops.append(f"v_cvt_pk_bf16_f32 v{128 + (i>>1)}, v{g-1}, v{g}")
                ops.append(f"v_min_u32 v{128 + (i>>1)}, s{S_SENT}, v{128 + (i>>1)}")
        ops.append("buffer_store_dwordx4 v[128:131], v2, s[4:7], s65 offen sc1")
        ops.append(f"s_add_u32 s65, s65, {16*56*1024}")
        return ops
    wdj = 0
    for t in range(-1, 8):
        f1 = []
        if t + 2 < 8:
            l = ld_z(t + 2); f1 += l[:-1] + [(f"Z{t+2}", l[-1])]
        if t + 1 < 8: f1 += stage_ops(t + 1)
        f2 = []
        if t == 0:
            for r in range(16):
                f2.append(f"v_mov_b32_dpp v{96+r}, v{GA(-1)+r} quad_perm:[0,0,2,2] row_mask:0xf bank_mask:0xf")
                f2.append(f"v_mov_b32_dpp v{112+r}, v{GA(-1)+r} quad_perm:[1,1,3,3] row_mask:0xf bank_mask:0xf")
        if t >= 1: f2 += epi_ops(t - 1)
        if t >= 0:
            l = ld_s2(t); f2 += l[:-1] + [(f"S{t}", l[-1])]
        if 0 <= t <= 6:
            for _ in range(4):
                f2 += wd_dma(wdj); wdj += 1
        if t == 4: f2 += ld_f1[:-1] + [("F1", ld_f1[-1])]
        if t == 5:
            f2 += [lambda: a.wait(T["F1"])] + chk_f1 + [lambda: k.retry(ld_f1, chk_f1, None)]
        fill += f1 + f2
        nf1 = len(f2)
        barrier_done = t + 1 >= 8
        for s in range(16):
            n = t * 16 + s
            if s == 12 and not barrier_done:
                assert len(fill) <= nf1, (t, len(fill), nf1)
                a.wait(T["ZW"])
                a("s_barrier")
                barrier_done = True
            if 0 <= n + NB - 1 < 128: loadZ(n + NB - 1)
            if t >= 0: a.wait(tok[n])
            for ct in range(4):
                d = Q4(GA(t) + 4 * ct)
                b = Q4(BF(n)) if t >= 0 else Q4(132 + 4 * s)
                a(f"v_mfma_f32_16x16x32_bf16 {d}, {Q4((s*4+ct)*4,'a')}, {b}, {'0' if s == 0 else d}")
                pop(1 if ct == 3 else 2 if ct else 1)
        if fill: print("gemm1 tile", t, "leftover", len(fill), file=sys.stderr)
        pop(1000)
    fill += epi_ops(7)
    pop(1000)
    a("s_branch L_gemm2")
    a.label("L_spare")
    a("s_barrier")
    a(f"s_and_b32 s60, s{S_XCD}, 1")
    a("s_lshl_b32 s61, s3, 1")
    a("s_add_u32 s60, s60, s61")
    a("s_lshl_b32 s60, s60, 4")
    a(f"s_add_u32 s60, s60, s{S_RB}")
    a("s_lshl_b32 s61, s60, 14")
    a(f"s_add_u32 s61, s61, {WS_X1}")
    ld_x = []
    for i in range(16):
        if i % 4 == 0: ld_x.append(f"s_add_u32 s62, s61, {i*1024}")
        ld_x.append(f"buffer_load_dwordx4 {Q4(64+4*i)}, v2, s[4:7], s62 offen offset:{(i%4)*1024} sc1")
    a("s_cmp_ge_u32 s3, 2")
    a("s_cbranch_scc0 L_sp1")
    a("s_sleep 16")
    a.label("L_sp1")
    for o in ld_x: a(o)
    a("s_waitcnt vmcnt(0)")
    for o in check_ops(range(64, 128), 14): a(o)
    k.retry(ld_x, range(64, 128), 14)
    a("s_mov_b32 s62, 0x3f803f80")
    for j in range(8): a(f"v_mov_b32 v{32+j}, 0")
    for i in range(16):
        for j in range(4):
            a(f"v_dot2c_f32_bf16 v{32+j}, s62, v{64+4*i+j}")
            a(f"v_dot2c_f32_bf16 v{36+j}, v{64+4*i+j}, v{64+4*i+j}")
    for p in (32, 33, 36, 37): a(f"v_permlane32_swap_b32 v{p}, v{p+2}")
    for p in (32, 33, 36, 37): a(f"v_add_f32 v{p}, v{p}, v{p+2}")
    for p in (32, 36): a(f"v_permlane16_swap_b32 v{p}, v{p+1}")
    a("v_add_f32 v32, v32, v33")
    a("v_add_f32 v33, v36, v37")
    for rr in (8, 4):
        for p in (32, 33): a(f"v_add_f32_dpp v{p}, v{p}, v{p} row_ror:{rr} row_mask:0xf bank_mask:0xf")
    ln_finish(a, 32, 33, 34)
    san(a, (32, 33))
    a("v_and_b32 v34, 3, v1")
    a("v_lshl_add_u32 v34, v34, 2, v6")
    a("v_lshlrev_b32 v34, 3, v34")
    a("s_lshl_b32 s60, s60, 7")
    a(f"s_add_u32 s60, s60, {WS_ST2}")
    a("s_mov_b32 exec_lo, 0x000f000f")
    a("s_mov_b32 exec_hi, 0x000f000f")
    a("buffer_store_dwordx2 v[32:33], v34, s[4:7], s60 offen sc1")
    a("s_mov_b64 exec, -1")
    for j in range(28):
        for o in wd_dma(j): a(o[1] if isinstance(o, tuple) else o)
    for o in ld_f1: a(o)
    a("s_waitcnt vmcnt(0)")
    for o in chk_f1: a(o)
    k.retry(ld_f1, chk_f1, None)
    a("s_sleep 64")
    a.label("L_gemm2")
    stamp(a, 12)
    S_HS = 70
    srd(a, 8, P_OUT, 0x200000)
    a(f"s_mul_i32 s{S_HS}, s{S_T2}, 56")
    a("s_mul_i32 s60, s3, 14")
    a(f"s_add_u32 s{S_HS}, s{S_HS}, s60")
    a(f"s_lshl_b32 s{S_HS}, s{S_HS}, 10")
    a(f"s_add_u32 s{S_HS}, s{S_HS}, {WS_HH}")
    HB = lambda p, s: 132 + (p & 1) * 56 + 4 * s
    def ld_h(p, s, sr=63):
        o = []
        if s % 4 == 0: o.append(f"s_add_u32 s{sr}, s{S_HS}, {p*32*56*1024 + s*1024}")
        o.append(f"buffer_load_dwordx4 {Q4(HB(p,s))}, v2, s[4:7], s{sr} offen offset:{(s%4)*1024} sc1")
        return o
    a("v_lshrrev_b32 v14, 2, v1")
    a("v_bfe_u32 v15, v1, 3, 2")
    a("v_lshlrev_b32 v14, 7, v14")
    a("v_and_b32 v3, 3, v1")
    a("v_lshl_add_u32 v14, v3, 3, v14")
    a(f"v_add_u32 v14, s{S_WDM}, v14")
    for dt in range(4):
        a(f"v_xor_b32 v3, {dt}, v15")
        a(f"v_lshl_add_u32 v{10+dt}, v3, 5, v14")
    def wd_tr(s):
        t = None
        for dt in range(4):
            r = (s * 4 + dt) * 4
            for h in range(2):
                t = a(f"ds_read_b64_tr_b16 a[{r+2*h}:{r+2*h+1}], v{10+dt} offset:{(s % 7)*4096 + h*2048}")
        return t
    a("s_waitcnt vmcnt(1)")
    for s in range(14):
        for o in ld_h(0, s): T["H0"] = a(o)
    for s in range(7):
        t = wd_tr(s)
        if s >= 1:
            a.wait(tprev)
            for j in range(4):
                for o in wd_dma(28 + (s - 1) * 4 + j): a(o[1] if isinstance(o, tuple) else o)
        tprev = t
    a.wait(tprev)
    for j in range(4):
        for o in wd_dma(28 + 24 + j):
            t = a(o[1] if isinstance(o, tuple) else o)
            if t: twd = t
    a("v_lshrrev_b32 v5, 4, v0")
    a("v_and_b32 v6, 15, v0")
    a("v_lshlrev_b32 v3, 7, v6")
    a("v_lshl_add_u32 v3, v5, 2, v3")
    a("v_lshlrev_b32 v4, 4, v6")
    a(f"s_lshl_b32 s60, s{S_T2}, 14")
    a(f"s_lshl_b32 s61, s{S_DB}, 11")
    a("s_add_u32 s60, s60, s61")
    a(f"s_add_u32 s60, s60, {WS_X1}")
    a(f"s_lshl_b32 s61, s{S_DB}, 8")
    a(f"s_add_u32 s61, s61, {WS_MODP + 5*2048}")
    ld_r = []
    for p in range(4):
        ld_r.append(f"s_add_u32 s62, s60, {p*32*16384}")
        for e in range(2): ld_r.append(f"buffer_load_dword v{244+2*p+e}, v3, s[4:7], s62 offen offset:{64*e} sc1")
    for kq in range(4):
        ld_r.append(f"s_add_u32 s62, s61, {kq*12288}")
        ld_r.append(f"buffer_load_dwordx4 {Q4(64+4*kq)}, v4, s[4:7], s62 offen sc1")
    for o in ld_r: tr_ = a(o)
    for s in range(14):
        for o in ld_h(1, s): T["H1"] = a(o)
    a("v_and_b32 v14, 15, v1")
    a("v_lshrrev_b32 v15, 4, v1")
    a("v_xor_b32 v15, v15, v14")
    a("v_lshlrev_b32 v14, 8, v14")
    a("s_lshl_b32 s62, s3, 12")
    a("v_add_u32 v14, s62, v14")
    for dt in range(4):
        a(f"v_xor_b32 v8, {4*dt}, v15")
        a(f"v_lshl_add_u32 v{16+dt}, v8, 4, v14")
    a("v_xor_b32 v9, v6, v5")
    a("v_lshlrev_b32 v9, 4, v9")
    a("v_lshl_add_u32 v9, v5, 8, v9")
    a("v_lshlrev_b32 v8, 10, v5")
    a("v_lshl_add_u32 v8, v6, 3, v8")
    a(f"s_lshl_b32 s71, s{S_T2}, 14")
    a(f"s_lshl_b32 s62, s{S_DB}, 7")
    a("s_add_u32 s71, s71, s62")
    def chk_h(p):
        regs = range(HB(p, 0), HB(p, 0) + 56)
        l = sum((ld_h(p, s, 62) for s in range(14)), [])
        return [lambda: a.wait(T[f"H{p}"])] + check_ops(regs, 20) + [lambda: k.retry(l, regs, 20)]
    fill += chk_h(0)
    pop(1000)
    a.wait(twd)
    for s in range(7, 14): t = wd_tr(s)
    a.wait(tr_)
    rregs = list(range(244, 252)) + list(range(64, 80))
    for o in check_ops(rregs, 20): a(o)
    k.retry(ld_r, rregs, 20)
    for j in (0, 2):
        a(f"v_pk_add_f32 {P2(64+j)}, {P2(64+j)}, {P2(68+j)}")
        a(f"v_pk_add_f32 {P2(72+j)}, {P2(72+j)}, {P2(76+j)}")
        a(f"v_pk_add_f32 {P2(64+j)}, {P2(64+j)}, {P2(72+j)}")
        a(f"v_cvt_pk_bf16_f32 v20, v{64+j}, v{65+j}")
        a(f"v_lshlrev_b32 v{252+j}, 16, v20")
        a(f"v_and_b32 v{253+j}, s{S_HI}, v20")
    a("s_waitcnt lgkmcnt(0)")
    a("s_barrier")
    def red_ops(p):
        ops = []
        ro = (p & 1) * 16384
        for dt in range(4): ops.append(("RW", f"ds_write_b128 v{16+dt}, {Q4(GA(p)+4*dt)} offset:{ro}"))
        ops.append(lambda: a.wait(T["RW"]))
        ops.append("s_barrier")
        for w in range(4): ops.append(("RR", f"ds_read_b128 {Q4(64+4*w)}, v9 offset:{ro + w*4096}"))
        for e in range(2):
            ops.append(f"v_lshlrev_b32 v{80+2*e}, 16, v{244+2*p+e}")
            ops.append(f"v_and_b32 v{81+2*e}, s{S_HI}, v{244+2*p+e}")
        ops.append(lambda: a.wait(T["RR"]))
        for j in (0, 2):
            ops.append(f"v_pk_add_f32 {P2(64+j)}, {P2(64+j)}, {P2(68+j)}")
            ops.append(f"v_pk_add_f32 {P2(72+j)}, {P2(72+j)}, {P2(76+j)}")
        for j in (0, 2): ops.append(f"v_pk_add_f32 {P2(64+j)}, {P2(64+j)}, {P2(72+j)}")
        for j in (0, 2): ops.append(f"v_pk_fma_f32 {P2(64+j)}, {P2(64+j)}, {P2(252+j)}, {P2(80+j)}")
        for j in (0, 2): ops.append(f"v_cvt_pk_bf16_f32 v{84+j//2}, v{64+j}, v{65+j}")
        ops.append("buffer_store_dwordx2 v[84:85], v8, s[8:11], s71 offen")
        ops.append(f"s_add_u32 s71, s71, {32*16384}")
        return ops
    for p in range(4):
        if p >= 1: fill += ["s_nop 0", "s_nop 0", "s_nop 0", "s_nop 0"] + red_ops(p - 1)
        for s in range(14):
            for dt in range(4):
                d = Q4(GA(p) + 4 * dt)
                a(f"v_mfma_f32_16x16x32_bf16 {d}, {Q4((s*4+dt)*4,'a')}, {Q4(HB(p,s))}, {'0' if s == 0 else d}")
                pop(2)
            if p + 2 < 4:
                for o in ld_h(p + 2, s): T[f"H{p+2}"] = a(o)
            if s == 8 and p + 1 < 4: fill += chk_h(p + 1)
        pop(1000)
    fill += red_ops(3)
    pop(1000)
    if STAMP:
        a("s_waitcnt vmcnt(0)")
        a("s_memrealtime s[72:73]")
        a("s_waitcnt lgkmcnt(0)")
        a("s_lshl_b32 s60, s2, 2")
        a("s_add_u32 s60, s60, s3")
        a("s_lshl_b32 s60, s60, 6")
        a(f"s_add_u32 s60, s60, {WS_STAMP}")
        a("s_mov_b64 exec, 1")
        a("v_mov_b32 v1, 0")
        for i in range(14):
            a(f"v_mov_b32 v2, s{76+2*i if i < 13 else 72}")
            a(f"buffer_store_dword v2, v1, s[4:7], s60 offen offset:{4*i}")
    a.label("L_end")
    a("s_endpgm")
    k.emit_slow()
    print("instrs", a.ninstr, "nops", a.nnop, file=sys.stderr)
    return a.text()

def main(path):
    txt = f"; @launch grid=(256,1,1) block=(256,1,1) lds={LDS_BYTES}\n"
    txt += '.amdgcn_target "amdgcn-amd-amdhsa--gfx950"\n.text\n'
    txt += build()
    txt += f""".section .rodata,"a"
.p2align 6
.amdhsa_kernel {NAME}_kernel
  .amdhsa_next_free_vgpr 512
  .amdhsa_next_free_sgpr 102
  .amdhsa_accum_offset 256
  .amdhsa_group_segment_fixed_size 0
  .amdhsa_kernarg_size 120
  .amdhsa_user_sgpr_count 2
  .amdhsa_user_sgpr_kernarg_segment_ptr 1
  .amdhsa_system_sgpr_workgroup_id_x 1
  .amdhsa_float_denorm_mode_32 3
.end_amdhsa_kernel
"""
    open(path, "w").write(txt)

if __name__ == "__main__":
    if len(sys.argv) > 2 and sys.argv[2] == "stamp": STAMP = True
    main(sys.argv[1])
```

```python
import sys
from dsl import Asm
NAME = "adaLN_cond__ssm_conv_h3__glu_gated_bilinear__prompt"

WS_KV, WS_QT, WS_Z, WS_X1, WS_HH = 0x0, 0x200000, 0x400000, 0x600000, 0x800000
WS_ST1, WS_MODP, WS_ST2, WS_F0, WS_F1, WS_EP = 0x1000000, 0x1010000, 0x1020000, 0x1030000, 0x1034000, 0x1038000
WS_STAMP = 0x1800000
WS_SIZE = 0x2000000
OOB = 0x40000000
SPIN = 3000

L_KC, L_UU, L_TB = 131072, 147712, 156928
L_EX, L_SH = L_KC, L_UU
L_WD = 49152
LDS_BYTES = 163840

P_Q, P_K, P_V, P_SH, P_SK, P_SD, P_WG, P_WU, P_WD, P_C, P_WM, P_OUT, P_DBG, P_WS = 16, 18, 20, 22, 24, 26, 30, 32, 34, 36, 38, 40, 42, 44
S_XCD, S_IDX, S_TAG, S_HI, S_SENT, S_RB, S_CT, S_D, S_SPARE = 46, 47, 56, 57, 58, 59, 28, 29, 75
STAMP = False
DIAG = None
Q4 = lambda r, k="v": f"{k}[{r}:{r+3}]"
P2 = lambda r: f"v[{r}:{r+1}]"

def stamp(a, i):
    if STAMP: a(f"s_memrealtime s[{76+2*i}:{77+2*i}]")

def srd(a, d, p, nbytes):
    a(f"s_mov_b32 s{d}, s{p}")
    a(f"s_mov_b32 s{d+1}, s{p+1}")
    a(f"s_mov_b32 s{d+2}, {hex(nbytes)}")
    a(f"s_mov_b32 s{d+3}, 0x20000")

def bfround(a, x, t):
    a(f"v_cvt_pk_bf16_f32 v{t}, v{x}, v{x}")
    a(f"v_lshlrev_b32 v{x}, 16, v{t}")

def ln_finish(a, s, q, t):
    a(f"v_mul_f32 v{s}, 0x3b000000, v{s}")
    a(f"v_mul_f32 v{q}, 0x3b000000, v{q}")
    a(f"v_fma_f32 v{q}, -v{s}, v{s}, v{q}")
    a(f"v_max_f32 v{q}, 0, v{q}")
    bfround(a, q, t)
    a(f"v_add_f32 v{q}, 0x3727c5ac, v{q}")
    bfround(a, q, t)
    a(f"v_sqrt_f32 v{q}, v{q}")
    bfround(a, q, t)
    a(f"v_rcp_f32 v{q}, v{q}")
    bfround(a, s, t)

def san(a, regs):
    for r in regs: a(f"v_min_u32 v{r}, s{S_SENT}, v{r}")

def check_ops(regs, t):
    ops = []
    regs = list(regs)
    if len(regs) == 1:
        ops.append(f"v_cmp_eq_u32 vcc, -1, v{regs[0]}"); return ops
    if len(regs) == 2:
        ops.append(f"v_max_u32 v{t}, v{regs[0]}, v{regs[1]}")
        rest = []
    else:
        ops.append(f"v_max3_u32 v{t}, v{regs[0]}, v{regs[1]}, v{regs[2]}")
        rest = regs[3:]
    while rest:
        if len(rest) >= 2:
            ops.append(f"v_max3_u32 v{t}, v{t}, v{rest[0]}, v{rest[1]}"); rest = rest[2:]
        else:
            ops.append(f"v_max_u32 v{t}, v{t}, v{rest[0]}"); rest = rest[1:]
    ops.append(f"v_cmp_eq_u32 vcc, -1, v{t}")
    return ops

class K:
    def __init__(self):
        self.a = Asm()
        self.slow = []
        self.nl = 0

    def retry(self, loads, regs, t, pre=(), post=()):
        a = self.a
        self.nl += 1
        n = self.nl
        a(f"s_cbranch_vccnz L_slow{n}")
        a.label(f"L_back{n}")
        self.slow.append((n, list(loads), list(regs), t, list(pre), list(post)))

    def emit_slow(self):
        a = self.a
        for n, loads, regs, t, pre, post in self.slow:
            a.label(f"L_slow{n}")
            a("s_nop 7"); a("s_nop 7")
            a("s_mov_b32 s74, 0")
            a.label(f"L_sl{n}")
            a("s_sleep 4")
            for o in pre: a(o)
            for o in loads: a(o)
            for o in post: a(o)
            a("s_waitcnt vmcnt(0)")
            if regs and isinstance(regs[0], str):
                for o in regs: a(o)
            else:
                for o in check_ops(regs, t): a(o)
            a("s_add_u32 s74, s74, 1")
            a(f"s_cmp_ge_u32 s74, {SPIN}")
            a(f"s_cbranch_scc1 L_sx{n}")
            a(f"s_cbranch_vccnz L_sl{n}")
            a.label(f"L_sx{n}")
            a("s_nop 4")
            a(f"s_branch L_back{n}")

def w1_dma(a, sr):
    t = None
    for j in range(32):
        a(f"s_add_u32 m0, s61, {j*1024}")
        t = a(f"buffer_load_dwordx4 v{10 + (j & 1)}, s[{sr}:{sr+3}], s60 offen lds")
        if j < 31: a(f"s_add_u32 s60, s60, {4*3584}")
    return t

def w1_setup(a):
    a("v_lshrrev_b32 v12, 4, v1")
    a("v_bfe_u32 v13, v1, 1, 3")
    a("v_xor_b32 v13, v13, v12")
    a("v_and_b32 v14, 1, v1")
    a("v_lshl_add_u32 v13, v13, 1, v14")
    a("v_mul_u32_u24 v12, 3584, v12")
    a("v_lshl_add_u32 v10, v13, 4, v12")
    a("v_xor_b32 v13, 8, v13")
    a("v_lshl_add_u32 v11, v13, 4, v12")
    a(f"s_mul_i32 s60, s3, {128*3584}")
    a(f"s_lshr_b32 s61, s{S_CT}, 2")
    a("s_lshl_b32 s61, s61, 8")
    a("s_add_u32 s60, s60, s61")
    a(f"s_add_u32 s60, s60, s{S_SPARE}")
    a("s_lshl_b32 s61, s3, 15")

def w1_tr(a, mat):
    a("v_lshrrev_b32 v12, 2, v1")
    a("v_and_b32 v13, 7, v12")
    a("s_lshl_b32 s63, s3, 1")
    a("v_xor_b32 v13, s63, v13")
    a("v_lshlrev_b32 v12, 8, v12")
    a("v_and_b32 v14, 3, v1")
    a("v_lshl_add_u32 v12, v14, 3, v12")
    a("v_xor_b32 v14, 1, v13")
    a("v_lshl_add_u32 v15, v14, 5, v12")
    a("v_lshl_add_u32 v12, v13, 5, v12")
    a("v_mov_b32 v13, v15")
    a("v_add_u32 v14, 0x10000, v12")
    a("v_add_u32 v15, 0x10000, v13")
    for s in range(16):
        for ct in range(2):
            r = (s * 4 + mat * 2 + ct) * 4
            base = 12 + ct + 2 * (s >> 3)
            for h in range(2):
                a(f"ds_read_b64_tr_b16 a[{r+2*h}:{r+2*h+1}], v{base} offset:{(s & 7)*8192 + h*4096}")

def build():
    k = K(); a = k.a
    a.raw(f".globl {NAME}_kernel\n.p2align 8\n.type {NAME}_kernel,@function\n{NAME}_kernel:")
    a("s_cmp_ge_u32 s2, 256")
    a("s_cbranch_scc1 L_end")
    stamp(a, 0)
    a("s_load_dwordx16 s[16:31], s[0:1], 0")
    a("s_load_dwordx8 s[32:39], s[0:1], 64")
    a("s_load_dwordx4 s[40:43], s[0:1], 96")
    a("s_load_dwordx2 s[44:45], s[0:1], 112")
    a("v_lshrrev_b32 v1, 6, v0")
    a("v_readfirstlane_b32 s3, v1")
    a("v_and_b32 v1, 63, v0")
    a("v_lshlrev_b32 v2, 4, v1")
    a(f"s_and_b32 s{S_XCD}, s2, 7")
    a(f"s_lshr_b32 s{S_IDX}, s2, 3")
    a(f"s_mov_b32 s{S_HI}, 0xffff0000")
    a(f"s_mov_b32 s{S_SENT}, 0xfffffffe")
    a(f"s_lshr_b32 s60, s{S_IDX}, 2")
    a(f"s_lshl_b32 s61, s{S_XCD}, 3")
    a("s_add_u32 s60, s60, s61")
    a(f"s_and_b32 s61, s{S_IDX}, 3")
    a("s_lshl_b32 s62, s60, 15")
    a("s_lshl_b32 s63, s61, 8")
    a("s_add_u32 s62, s62, s63")
    a("s_lshl_b32 s63, s3, 6")
    a("s_add_u32 s62, s62, s63")
    a("v_and_b32 v5, 15, v1")
    a("v_lshrrev_b32 v6, 4, v1")
    a("v_lshlrev_b32 v7, 13, v6")
    a("v_lshl_add_u32 v7, v5, 2, v7")
    a("v_add_u32 v7, s62, v7")
    a("v_subrev_u32 v3, 3072, v7")
    a("v_add_u32 v4, 4096, v7")
    a("s_lshl_b32 s63, s61, 2")
    a("s_add_u32 s63, s63, s3")
    a("s_lshl_b32 s64, s63, 4")
    a("s_lshl_b32 s63, s64, 4")
    a("v_lshlrev_b32 v8, 4, v5")
    a("s_lshl_b32 s69, s60, 8")
    a("s_add_u32 s69, s69, s64")
    a("s_lshl_b32 s69, s69, 7")
    a(f"s_add_u32 s70, s69, {WS_QT}")
    a("s_lshl_b32 s65, s60, 2")
    a("s_add_u32 s65, s65, s61")
    a("s_lshl_b32 s65, s65, 3")
    for i in range(4): a(f"v_mov_b32 v{44+i}, -1")
    a("v_lshrrev_b32 v9, 2, v1")
    a("v_lshlrev_b32 v9, 14, v9")
    a("v_and_b32 v48, 3, v1")
    a("v_lshl_add_u32 v9, v48, 4, v9")
    a("s_lshl_b32 s71, s3, 18")
    a("s_lshl_b32 s72, s2, 6")
    a("s_add_u32 s71, s71, s72")
    a("s_waitcnt lgkmcnt(0)")
    stamp(a, 1)
    srd(a, 8, P_K, 0x200000)
    srd(a, 12, P_V, 0x200000)
    for i in range(11):
        base, off = (3, i) if i < 3 else (7, i - 3) if i < 7 else (4, i - 7)
        a(f"buffer_load_dword v{10+i}, v{base}, s[8:11], 0 offen offset:{off*1024}")
    for i in range(8):
        base, off = (7, i) if i < 4 else (4, i - 4)
        a(f"buffer_load_dword v{21+i}, v{base}, s[12:15], 0 offen offset:{off*1024}")
    srd(a, 52, P_SH, 4096)
    srd(a, 4, P_WS, WS_SIZE)
    a("buffer_load_dwordx4 v[32:35], v8, s[52:55], s63 offen")
    a(f"s_add_u32 s72, s{P_WS}, {WS_EP}")
    a(f"s_addc_u32 s73, s{P_WS+1}, 0")
    a(f"s_load_dword s{S_TAG}, s[72:73], 0")
    a("s_lshl_b32 s62, s2, 2")
    a(f"s_load_dword s{S_D}, s[{P_SD}:{P_SD+1}], s62")
    a(f"s_lshr_b32 s{S_RB}, s{S_XCD}, 1")
    a(f"s_lshl_b32 s{S_RB}, s{S_RB}, 2")
    a(f"s_add_u32 s{S_RB}, s{S_RB}, s61")
    a(f"s_and_b32 s62, s{S_XCD}, 1")
    a("s_mul_i32 s62, s62, 7")
    a(f"s_lshr_b32 s63, s{S_IDX}, 2")
    a("s_add_u32 s62, s62, s63")
    a("s_lshl_b32 s62, s62, 2")
    a(f"s_add_u32 s{S_CT}, s62, s3")
    a(f"s_cmp_ge_u32 s{S_IDX}, 28")
    a(f"s_cselect_b32 s{S_SPARE}, {OOB}, 0")
    a("buffer_store_dwordx4 v[44:47], v2, s[4:7], s69 offen sc1")
    a("buffer_store_dwordx4 v[44:47], v2, s[4:7], s69 offen offset:1024 sc1")
    a("buffer_store_dwordx4 v[44:47], v2, s[4:7], s70 offen sc1")
    a("buffer_store_dwordx4 v[44:47], v2, s[4:7], s70 offen offset:1024 sc1")
    for base in (WS_Z, WS_X1):
        for h in range(2):
            a(f"s_add_u32 s72, s71, {base + h*64*16384}")
            a("buffer_store_dwordx4 v[44:47], v9, s[4:7], s72 offen sc1")
    a("s_lshr_b32 s66, s2, 2")
    a("s_and_b32 s67, s2, 3")
    a("s_lshl_b32 s68, s66, 2")
    a("s_add_u32 s68, s68, s3")
    a("s_mul_i32 s62, s67, 12288")
    a("s_lshl_b32 s63, s68, 6")
    a("s_add_u32 s62, s62, s63")
    a(f"s_add_u32 s62, s62, {WS_MODP}")
    a("s_cmp_ge_u32 s2, 192")
    a(f"s_cselect_b32 s74, {OOB}, 0")
    a("s_add_u32 s62, s62, s74")
    a("s_lshl_b32 s63, s65, 3")
    a(f"s_add_u32 s63, s63, {WS_ST1}")
    a(f"s_and_b32 s72, s{S_XCD}, 1")
    a("s_lshl_b32 s73, s3, 1")
    a("s_add_u32 s72, s72, s73")
    a("s_lshl_b32 s72, s72, 4")
    a(f"s_add_u32 s72, s72, s{S_RB}")
    a("s_lshl_b32 s72, s72, 7")
    a(f"s_add_u32 s72, s72, {WS_ST2 + OOB}")
    a(f"s_sub_u32 s72, s72, s{S_SPARE}")
    a("s_mov_b64 exec, 0xf")
    a("buffer_store_dwordx4 v[44:47], v2, s[4:7], s62 offen sc1")
    a("buffer_store_dwordx4 v[44:47], v2, s[4:7], s63 offen sc1")
    a("s_mov_b64 exec, 0xff")
    tclr = a("buffer_store_dwordx4 v[44:47], v2, s[4:7], s72 offen sc1")
    a("s_mov_b64 exec, -1")
    srd(a, 52, P_SK, 0x200000)
    srd(a, 48, P_Q, 0x200000)
    a("s_lshl_b32 s72, s2, 13")
    a("s_lshl_b32 s73, s3, 11")
    a("s_add_u32 s72, s72, s73")
    a("v_add_u32 v49, s72, v2")
    a("v_subrev_u32 v48, 4, v49")
    a("v_max_i32 v48, 0, v48")
    a("buffer_load_dwordx4 v[128:131], v49, s[52:55], 0 offen")
    a("buffer_load_dwordx4 v[132:135], v49, s[52:55], 0 offen offset:1024")
    a("buffer_load_dword v136, v48, s[52:55], 0 offen")
    tkern = a("buffer_load_dword v137, v49, s[52:55], 0 offen offset:1020")
    for i in range(8):
        base, off = (7, i) if i < 4 else (4, i - 4)
        tq = a(f"buffer_load_dword v{36+i}, v{base}, s[48:51], 0 offen offset:{off*1024}")
    a("s_lshl_b32 s72, s3, 1")
    a("s_add_u32 s72, s72, s65")
    a("s_lshl_b32 s72, s72, 10")
    a("v_lshrrev_b32 v140, 5, v1")
    a("v_and_b32 v141, 31, v1")
    a("v_lshlrev_b32 v141, 4, v141")
    a("v_lshl_add_u32 v141, v140, 10, v141")
    a("buffer_load_dwordx4 v[120:123], v141, s[48:51], s72 offen")
    tst = a("buffer_load_dwordx4 v[124:127], v141, s[48:51], s72 offen offset:512")
    srd(a, 8, P_WM, 512 * 6144)
    srd(a, 12, P_C, 1024)
    a(f"s_mul_i32 s72, s67, {128*6144}")
    a("s_lshl_b32 s73, s68, 5")
    a("s_add_u32 s72, s72, s73")
    a("s_add_u32 s72, s72, s74")
    a("v_lshrrev_b32 v142, 1, v1")
    a("v_and_b32 v143, 1, v1")
    a("v_mul_u32_u24 v144, 6144, v142")
    a("v_lshl_add_u32 v144, v143, 4, v144")
    a("v_lshlrev_b32 v142, 1, v142")
    a("s_lshl_b32 s73, s67, 8")
    for i in range(4): a(f"buffer_load_ushort v{148+i}, v142, s[12:15], s73 offen offset:{64*i}")
    for i in range(4):
        tmod = a(f"buffer_load_dwordx4 {Q4(152+4*i)}, v144, s[8:11], s72 offen")
        if i < 3: a(f"s_add_u32 s72, s72, {32*6144}")
    srd(a, 48, P_WG, 512 * 3584)
    a("v_lshrrev_b32 v172, 4, v1")
    a("v_bfe_u32 v173, v1, 1, 3")
    a("v_xor_b32 v173, v173, v172")
    a("v_lshl_add_u32 v173, v173, 1, v143")
    a("v_mul_u32_u24 v172, 3584, v172")
    a("v_lshl_add_u32 v170, v173, 4, v172")
    a("v_xor_b32 v173, 8, v173")
    a("v_lshl_add_u32 v171, v173, 4, v172")
    a(f"s_mul_i32 s72, s3, {128*3584}")
    a(f"s_lshr_b32 s73, s{S_CT}, 2")
    a("s_lshl_b32 s73, s73, 8")
    a("s_add_u32 s72, s72, s73")
    a(f"s_add_u32 s72, s72, s{S_SPARE}")
    a("s_lshl_b32 s73, s3, 15")
    NG1 = 24
    def gdma(j):
        a(f"s_add_u32 m0, s73, {j*1024}")
        t = a(f"buffer_load_dwordx4 v{170 + (j & 1)}, s[48:51], s72 offen lds")
        if j < 31: a(f"s_add_u32 s72, s72, {4*3584}")
        return t
    for j in range(8): gdma(j)
    stamp(a, 2)
    a.wait(tclr)
    a("s_waitcnt lgkmcnt(0)")
    a("s_barrier")
    stamp(a, 3)
    a(f"s_mul_i32 s{S_TAG+0}, s{S_TAG}, 0x9e3779b1")
    a(f"s_add_u32 s{S_TAG}, s{S_TAG}, 0x7f4a7c15")
    a("s_lshr_b32 s60, s2, 2")
    a("s_lshl_b32 s60, s60, 7")
    a("s_and_b32 s61, s2, 3")
    a("s_lshl_b32 s61, s61, 2")
    a("s_add_u32 s60, s60, s61")
    a("s_cmp_eq_u32 s3, 0")
    a(f"s_cselect_b32 s61, 0, {OOB}")
    a("s_add_u32 s64, s60, s61")
    a(f"s_add_u32 s60, s64, {WS_F0}")
    a(f"v_mov_b32 v48, s{S_TAG}")
    a("s_mov_b64 exec, 1")
    a("buffer_store_dword v48, v2, s[4:7], s60 offen sc1")
    a("s_mov_b64 exec, -1")
    for j in range(8, 32): tg = gdma(j)
    for i in range(11):
        a(f"v_lshlrev_b32 v{50+2*i}, 16, v{10+i}")
        a(f"v_and_b32 v{51+2*i}, s{S_HI}, v{10+i}")
    for j in range(4):
        for c in range(2):
            src = 32 + 2 * c + (j >> 1)
            if j & 1: a(f"v_and_b32 v{88+2*j+c}, s{S_HI}, v{src}")
            else: a(f"v_lshlrev_b32 v{88+2*j+c}, 16, v{src}")
    for j in (3, 2, 1, 0):
        for i in range(8):
            if j == 3: a(f"v_pk_mul_f32 {P2(96+2*i)}, {P2(50+2*(i+3-j))}, {P2(88+2*j)}")
            else: a(f"v_pk_fma_f32 {P2(96+2*i)}, {P2(50+2*(i+3-j))}, {P2(88+2*j)}, {P2(96+2*i)}")
    for i in range(8):
        a(f"v_lshlrev_b32 v{72+2*i}, 16, v{21+i}")
        a(f"v_and_b32 v{73+2*i}, s{S_HI}, v{21+i}")
    for i in range(8):
        a(f"v_pk_mul_f32 {P2(96+2*i)}, {P2(96+2*i)}, {P2(72+2*i)}")
    for c in range(2):
        for d in range(4):
            a(f"v_cvt_pk_bf16_f32 v{112+4*c+d}, v{96+2*(7-2*d)+c}, v{96+2*(6-2*d)+c}")
    san(a, range(112, 120))
    a("s_mul_i32 s68, s3, 2304")
    a(f"s_add_u32 s68, s68, {L_SH}")
    a("v_mul_u32_u24 v44, 144, v5")
    a("v_add_u32 v44, s68, v44")
    a("v_sub_u32 v45, 3, v6")
    a("v_lshl_add_u32 v45, v45, 4, v44")
    a("v_lshl_add_u32 v46, v6, 5, v44")
    a("ds_write_b128 v45, v[112:115]")
    a("ds_write_b128 v45, v[116:119] offset:64")
    a("v_lshrrev_b32 v47, 3, v1")
    a("v_mul_u32_u24 v47, 144, v47")
    a("v_and_b32 v48, 7, v1")
    a("v_lshl_add_u32 v47, v48, 4, v47")
    a("v_add_u32 v47, s68, v47")
    r0 = a("ds_read_b128 v[112:115], v47")
    r1 = a(f"ds_read_b128 v[116:119], v47 offset:{8*144}")
    a.wait(r0)
    a("buffer_store_dwordx4 v[112:115], v2, s[4:7], s69 offen sc1")
    a.wait(r1)
    a("buffer_store_dwordx4 v[116:119], v2, s[4:7], s69 offen offset:1024 sc1")
    stamp(a, 4)
    a.wait(tq)
    san(a, range(36, 44))
    a("ds_write_b128 v46, v[36:39]")
    a("ds_write_b128 v46, v[40:43] offset:16")
    r0 = a("ds_read_b128 v[36:39], v47")
    r1 = a(f"ds_read_b128 v[40:43], v47 offset:{8*144}")
    a("s_lshr_b32 s60, s3, 1")
    a("s_and_b32 s61, s3, 1")
    a("v_cmp_eq_u32 vcc, 0, v1")
    a("s_cmp_eq_u32 s61, 0")
    a("s_cselect_b64 s[72:73], vcc, 0")
    a("v_cndmask_b32 v136, v136, 0, s[72:73]")
    for j in range(2):
        for d in range(4):
            prev = 136 + j if d == 0 else 128 + 4 * j + d - 1
            a(f"v_alignbit_b32 v{50+4*j+d}, v{128+4*j+d}, v{prev}, 16")
    a("s_mul_i32 s65, s60, 8320")
    a("s_lshl_b32 s66, s61, 11")
    a("s_add_u32 s66, s66, s65")
    a(f"s_add_u32 s66, s66, {L_KC + 32}")
    a("v_add_u32 v44, s66, v2")
    a.wait(r0)
    a("buffer_store_dwordx4 v[36:39], v2, s[4:7], s70 offen sc1")
    a.wait(r1)
    a("buffer_store_dwordx4 v[40:43], v2, s[4:7], s70 offen offset:1024 sc1")
    a("ds_write_b128 v44, v[128:131]")
    a("ds_write_b128 v44, v[132:135] offset:1024")
    a("ds_write_b128 v44, v[50:53] offset:4160")
    a("ds_write_b128 v44, v[54:57] offset:5184")
    for i in range(4): a(f"v_mov_b32 v{60+i}, 0")
    a("v_bfe_u32 v44, v1, 1, 2")
    a("v_mul_u32_u24 v44, 4160, v44")
    a("v_lshl_add_u32 v44, v143, 4, v44")
    a(f"v_add_u32 v44, {L_KC}, v44")
    a("ds_write_b128 v44, v[60:63]")
    a.wait(tst)
    a("s_mov_b32 s67, 0x3f803f80")
    a("v_mov_b32 v50, 0")
    a("v_mov_b32 v51, 0")
    for i in range(8):
        a(f"v_dot2c_f32_bf16 v50, s67, v{120+i}")
        a(f"v_dot2c_f32_bf16 v51, v{120+i}, v{120+i}")
    for dpp in ("quad_perm:[1,0,3,2] row_mask:0xf", "quad_perm:[2,3,0,1] row_mask:0xf", "row_half_mirror row_mask:0xf",
                "row_mirror row_mask:0xf", "row_bcast:15 row_mask:0xa"):
        a(f"v_add_f32_dpp v50, v50, v50 {dpp} bank_mask:0xf")
        a(f"v_add_f32_dpp v51, v51, v51 {dpp} bank_mask:0xf")
    ln_finish(a, 50, 51, 52)
    a("v_mul_f32 v53, v50, v51")
    a("v_sub_f32 v53, 0, v53")
    a(f"v_min_u32 v52, s{S_SENT}, v51")
    a(f"v_min_u32 v53, s{S_SENT}, v53")
    a("v_lshlrev_b32 v140, 3, v140")
    a("s_lshl_b32 s66, s3, 4")
    a("s_add_u32 s66, s66, s63")
    a("s_mov_b32 exec_lo, 0x10000")
    a("s_mov_b32 exec_hi, 0x10000")
    a("buffer_store_dwordx2 v[52:53], v140, s[4:7], s66 offen sc1")
    a("s_mov_b64 exec, -1")
    a.wait(tmod)
    for i in range(4):
        a(f"v_lshlrev_b32 v{148+i}, 16, v{148+i}")
        a(f"v_mul_f32 v{32+i}, 0xbfb8aa3b, v{148+i}")
    for i in range(4): a(f"v_exp_f32 v{32+i}, v{32+i}")
    for i in range(4): a(f"v_add_f32 v{32+i}, 1.0, v{32+i}")
    for i in range(4): a(f"v_rcp_f32 v{32+i}, v{32+i}")
    for i in range(4): a(f"v_mul_f32 v{148+i}, v{148+i}, v{32+i}")
    for i in range(4): a(f"v_cvt_pk_bf16_f32 v{32+i}, v{148+i}, v{148+i}")
    for i in range(4): a(f"v_lshlrev_b32 v{64+2*i}, 16, v{32+i}")
    for i in range(4):
        for d in range(4):
            a(f"v_lshlrev_b32 v{72+2*d}, 16, v{152+4*i+d}")
            a(f"v_and_b32 v{73+2*d}, s{S_HI}, v{152+4*i+d}")
        for d in range(4):
            if i == 0: a(f"v_pk_mul_f32 {P2(80+2*d)}, {P2(72+2*d)}, {P2(64+2*i)} op_sel_hi:[1,0]")
            else: a(f"v_pk_fma_f32 {P2(80+2*d)}, {P2(72+2*d)}, {P2(64+2*i)}, {P2(80+2*d)} op_sel_hi:[1,0,1]")
    for p in range(4): a(f"v_permlane32_swap_b32 v{80+p}, v{84+p}")
    for p in range(4): a(f"v_add_f32 v{80+p}, v{80+p}, v{84+p}")
    for p in range(2): a(f"v_permlane16_swap_b32 v{80+p}, v{82+p}")
    for p in range(2): a(f"v_add_f32 v{80+p}, v{80+p}, v{82+p}")
    for rr in (8, 4, 2):
        for p in range(2):
            a(f"v_add_f32_dpp v{80+p}, v{80+p}, v{80+p} row_ror:{rr} row_mask:0xf bank_mask:0xf")
    san(a, (80, 81))
    a("v_lshlrev_b32 v44, 3, v6")
    a("v_lshl_add_u32 v44, v143, 5, v44")
    a("s_mov_b32 exec_lo, 0x00030003")
    a("s_mov_b32 exec_hi, 0x00030003")
    a("buffer_store_dwordx2 v[80:81], v44, s[4:7], s62 offen sc1")
    a("s_mov_b64 exec, -1")
    a("v_lshlrev_b32 v3, 7, v1")
    a(f"s_mov_b32 s62, {WS_F0}")
    ld_f0 = "buffer_load_dwordx4 v[16:19], v3, s[4:7], s62 offen sc1"
    tf = a(ld_f0)
    stamp(a, 5)
    a.wait(tg)
    a("s_waitcnt lgkmcnt(0)")
    a("s_barrier")
    stamp(a, 6)
    a("v_lshrrev_b32 v4, 3, v1")
    a("v_lshlrev_b32 v7, 15, v4")
    a("v_lshl_add_u32 v7, v48, 4, v7")
    a("s_lshl_b32 s66, s3, 19")
    a("s_lshl_b32 s67, s2, 7")
    a("s_add_u32 s66, s66, s67")
    a(f"s_add_u32 s67, s66, {8*32768}")
    chk_f = [f"v_xor_b32 v16, s{S_TAG}, v16", f"v_xor_b32 v17, s{S_TAG}, v17", f"v_xor_b32 v18, s{S_TAG}, v18", f"v_xor_b32 v19, s{S_TAG}, v19",
             "v_or_b32 v16, v16, v17", "v_or3_b32 v16, v16, v18, v19", "v_cmp_ne_u32 vcc, 0, v16"]
    a.wait(tf)
    for o in chk_f: a(o)
    k.retry([ld_f0], chk_f, None)
    ld_kv = ["buffer_load_dwordx4 v[16:19], v7, s[4:7], s66 offen sc1", "buffer_load_dwordx4 v[20:23], v7, s[4:7], s67 offen sc1"]
    for o in ld_kv: tkv = a(o)
    a("s_or_b32 s62, s2, s3")
    a("s_cmp_eq_u32 s62, 0")
    a(f"s_cselect_b32 s62, {WS_EP}, {OOB}")
    a(f"v_mov_b32 v24, s{S_TAG}")
    a("s_mov_b64 exec, 1")
    a("buffer_store_dword v24, v2, s[4:7], s62 offen sc1")
    a("s_mov_b64 exec, -1")
    a("v_lshrrev_b32 v24, 5, v1")
    a("v_and_b32 v25, 31, v1")
    a("v_mul_u32_u24 v24, 4608, v24")
    a("v_lshl_add_u32 v24, v25, 4, v24")
    a(f"v_add_u32 v24, {L_UU + 4096}, v24")
    a("ds_write_b128 v24, v[60:63]")
    a("v_and_b32 v24, 1, v1")
    a("v_xor_b32 v24, 1, v24")
    a("v_mul_u32_u24 v24, 4160, v24")
    a("v_bfe_u32 v25, v1, 1, 3")
    a("v_lshl_add_u32 v24, v25, 2, v24")
    a("v_lshl_add_u32 v24, v6, 4, v24")
    a("s_lshl_b32 s62, s61, 8")
    a("s_add_u32 s63, s65, s62")
    a(f"s_add_u32 s63, s63, {L_KC + 4}")
    a("v_add_u32 v24, s63, v24")
    for i in range(1, 4): a(f"v_add_u32 v{24+i}, {1024*i}, v24")
    A = lambda rr, q: 16 * ((rr * 8 + q) >> 1) + 8 + 4 * (q & 1)
    for rr in range(4):
        for q in range(8):
            o = (64 * rr + 512 * (q & 1)) // 4
            a(f"ds_read2_b32 a[{A(rr,q)}:{A(rr,q)+1}], v{24 + (q >> 1)} offset0:{o} offset1:{o+1}")
            a(f"ds_read2_b32 a[{A(rr,q)+2}:{A(rr,q)+3}], v{24 + (q >> 1)} offset0:{o+2} offset1:{o+3}")
    w1_tr(a, 0)
    a("v_bfe_u32 v24, v1, 2, 1")
    a("v_mul_u32_u24 v24, 4608, v24")
    a("v_and_b32 v25, 3, v1")
    a("v_lshl_add_u32 v24, v25, 4, v24")
    a("v_lshlrev_b32 v26, 6, v4")
    a("v_sub_u32 v24, v24, v26")
    a("s_lshl_b32 s63, s3, 10")
    a(f"s_sub_u32 s63, {L_UU + 55*64}, s63")
    a("v_add_u32 v24, s63, v24")
    a.wait(tkv)
    for o in check_ops(range(16, 24), 26): a(o)
    k.retry(ld_kv, range(16, 24), 26)
    a("ds_write_b128 v24, v[16:19] offset:512")
    a("ds_write_b128 v24, v[20:23]")
    a("v_lshlrev_b32 v27, 5, v5")
    a("v_lshlrev_b32 v26, 4, v6")
    a("v_sub_u32 v27, v26, v27")
    a("s_mul_i32 s63, s60, 4608")
    a("s_add_u32 s63, s63, s62")
    a(f"s_add_u32 s63, s63, {L_UU + 480}")
    a("v_add_u32 v27, s63, v27")
    a("s_lshl_b32 s66, s3, 18")
    a("s_lshl_b32 s67, s2, 7")
    a("s_add_u32 s66, s66, s67")
    a(f"s_add_u32 s66, s66, {WS_QT}")
    a(f"s_add_u32 s67, s66, {32*32768}")
    a("s_lshl_b32 s68, s3, 11")
    a(f"s_add_u32 s68, s68, {WS_ST1}")
    a(f"s_add_u32 s69, s68, 8192")
    a("s_lshl_b32 s70, s2, 3")
    a(f"s_add_u32 s70, s70, {WS_MODP}")
    a("v_lshlrev_b32 v3, 5, v1")
    a("v_lshrrev_b32 v8, 2, v1")
    a("v_min_u32 v8, 5, v8")
    a("v_lshlrev_b32 v8, 11, v8")
    a("v_mul_u32_u24 v26, 12288, v25")
    a("v_add_u32 v8, v8, v26")
    ld_ep = ["buffer_load_dwordx2 v[28:29], v8, s[4:7], s70 offen sc1",
             "buffer_load_dwordx4 v[144:147], v7, s[4:7], s66 offen sc1",
             "buffer_load_dwordx4 v[48:51], v3, s[4:7], s68 offen sc1",
             "buffer_load_dwordx4 v[52:55], v3, s[4:7], s68 offen offset:16 sc1",
             "buffer_load_dwordx4 v[148:151], v7, s[4:7], s67 offen sc1",
             "buffer_load_dwordx4 v[56:59], v3, s[4:7], s69 offen sc1",
             "buffer_load_dwordx4 v[60:63], v3, s[4:7], s69 offen offset:16 sc1"]
    ep_regs = [28, 29] + list(range(144, 152)) + list(range(48, 64))
    for o in ld_ep: tep = a(o)
    a("s_waitcnt lgkmcnt(0)")
    a("s_barrier")
    stamp(a, 7)
    B = lambda rr, d: 64 + (rr & 1) * 32 + d * 4
    tb = {}
    def loadB(key, rr, d):
        tb[key, rr, d] = a(f"ds_read_b128 {Q4(B(rr,d))}, v27 offset:{3584 - 512*d + 64*rr}")
    for d in range(4): loadB(0, 0, d)
    class Rec:
        def __init__(s): s.l = []
        def __call__(s, t): s.l.append(t)
    T = {}
    fill = []
    def pop(n):
        for _ in range(n):
            if fill:
                o = fill.pop(0)
                if callable(o): o()
                elif isinstance(o, tuple): T[o[0]] = a(o[1])
                else: a(o)
    rec = Rec()
    srd(rec, 48, P_WU, 512 * 3584)
    w1_setup(rec)
    w1_dma(rec, 48)
    rec(f"s_mul_i32 s60, s{S_RB}, 56")
    rec(f"s_add_u32 s60, s60, s{S_CT}")
    rec("s_lshl_b32 s60, s60, 10")
    rec(f"s_add_u32 s60, s60, s{S_SPARE}")
    rec(f"s_add_u32 s65, s60, {WS_HH}")
    for i in range(4): rec(f"v_mov_b32 v{12+i}, -1")
    rec("s_mov_b32 s60, s65")
    for nt in range(8):
        rec(("U", "buffer_store_dwordx4 v[12:15], v2, s[4:7], s60 offen sc1"))
        if nt < 7: rec(f"s_add_u32 s60, s60, {16*56*1024}")
    rec("v_lshl_add_u32 v30, v5, 2, v6")
    rec("v_lshrrev_b32 v31, 3, v30")
    rec("v_xor_b32 v30, v30, v31")
    rec("v_lshlrev_b32 v30, 4, v30")
    rec("s_lshl_b32 s62, s3, 12")
    rec(f"s_add_u32 s62, s62, {L_EX}")
    rec("v_add_u32 v30, s62, v30")
    rec("v_xor_b32 v31, v1, v4")
    rec("v_lshlrev_b32 v31, 4, v31")
    rec("s_lshl_b32 s62, s3, 10")
    rec(f"s_add_u32 s62, s62, {L_EX}")
    rec("v_add_u32 v31, s62, v31")
    rec("s_lshl_b32 s62, s3, 9")
    rec(f"s_sub_u32 s62, {L_UU + 4088 - 2048}, s62")
    rec("v_lshlrev_b32 v26, 3, v1")
    rec("v_sub_u32 v26, s62, v26")
    fill += rec.l
    ACC = lambda nt: (32 if nt < 4 else 128) + (nt & 3) * 4
    for rr in range(4):
        for d in range(4):
            if rr < 3: loadB(0, rr + 1, d)
            else:
                loadB(1, 0, d); loadB(1, 0, d + 4)
            a.wait(tb[0, rr, d])
            for q in range(4 - d):
                c = "0" if (rr == 0 and d == 0) else Q4(ACC(q + d))
                a(f"v_mfma_f32_16x16x32_bf16 {Q4(ACC(q+d))}, {Q4(A(rr,q),'a')}, {Q4(B(rr,d))}, {c}")
                pop(4)
    pop(1000)
    stamp(a, 8)
    S_A1, S_CB, S_DD = 66, 68, 72
    def prep(h):
        ops = []
        for c in range(2):
            for i in range(4):
                p, t = 160 + h * 8 + c * 4 + i, 176 + h * 8 + c * 4 + i
                qs = 144 + 4 * h + i
                st = 48 + 8 * h + 2 * i
                ops.append(f"v_lshlrev_b32 v{t}, 16, v{qs}" if c == 0 else f"v_and_b32 v{t}, s{S_HI}, v{qs}")
                e = 3 - i
                kr = 152 + 4 * h + 2 * c + (e >> 1)
                ops.append(f"v_and_b32 v216, s{S_HI}, v{kr}" if e & 1 else f"v_lshlrev_b32 v216, 16, v{kr}")
                ops.append(f"v_fma_f32 v{p}, v{t}, v{st}, v{st+1}")
                ops.append(f"v_mul_f32 v216, s{S_DD+c}, v216")
                ops.append(f"v_fma_f32 v{p}, v{p}, s{S_A1+c}, v{24+c}")
                ops.append(f"v_fmac_f32 v{t}, v216, v{p}")
        return ops
    def final(h, pk):
        ops = []
        for c in range(2):
            y = 192 + c * 8
            p, t = 160 + h * 8 + c * 4, 176 + h * 8 + c * 4
            if pk:
                for i in (0, 2): ops.append(f"v_pk_add_f32 {P2(y+i)}, {P2(y+i)}, {P2(y+4+i)}")
                for i in (0, 2): ops.append(f"v_pk_fma_f32 {P2(t+i)}, {P2(y+i)}, {P2(p+i)}, {P2(t+i)}")
                for i in (0, 2): ops.append(f"v_pk_mul_f32 {P2(p+i)}, {P2(t+i)}, s[{S_CB}:{S_CB+1}] op_sel:[0,{c}] op_sel_hi:[1,{c}]")
            else:
                for i in range(4): ops.append(f"v_add_f32 v{y+i}, v{y+i}, v{y+4+i}")
                for i in range(4): ops.append(f"v_fmac_f32 v{t+i}, v{y+i}, v{p+i}")
                for i in range(4): ops.append(f"v_mul_f32 v{p+i}, s{S_CB+c}, v{t+i}")
        p, t = 160 + h * 8, 176 + h * 8
        for d in range(4): ops.append(f"v_cvt_pk_bf16_f32 v{208+d}, v{p+2*d}, v{p+2*d+1}")
        for d in range(4): ops.append(f"v_min_u32 v{208+d}, s{S_SENT}, v{208+d}")
        ops.append(f"s_add_u32 s62, s71, {WS_Z + h*64*16384}")
        ops.append("buffer_store_dwordx4 v[208:211], v9, s[4:7], s62 offen sc1")
        for i in range(4): ops.append(f"v_cvt_pk_bf16_f32 v{212+i}, v{t+i}, v{t+4+i}")
        for d in range(4): ops.append(f"v_min_u32 v{212+d}, s{S_SENT}, v{212+d}")
        ops.append(f"s_add_u32 s62, s71, {WS_X1 + h*64*16384}")
        ops.append("buffer_store_dwordx4 v[212:215], v9, s[4:7], s62 offen sc1")
        return ops
    def yreads():
        return [("Y", f"ds_read_b128 {Q4(192 + 4*w)}, v31 offset:{w*4096}") for w in range(4)]
    rec = Rec()
    for h in range(2):
        for c in range(2):
            rec(("KVE", f"ds_read_b64 {P2(152+4*h+2*c)}, v26 offset:{c*4608 + (1-h)*2048}"))
    rec(lambda: a.wait(tep))
    for o in check_ops(ep_regs, 216): rec(o)
    rec(lambda: k.retry(ld_ep, ep_regs, 216))
    for nt in range(4): rec(("XW", f"ds_write_b128 v30, {Q4(ACC(nt))} offset:{nt*1024}"))
    for dpp in ("quad_perm:[1,0,3,2]", "quad_perm:[2,3,0,1]"):
        rec(f"v_add_f32_dpp v28, v28, v28 {dpp} row_mask:0xf bank_mask:0xf")
        rec(f"v_add_f32_dpp v29, v29, v29 {dpp} row_mask:0xf bank_mask:0xf")
    rec("v_cvt_pk_bf16_f32 v216, v28, v29")
    rec("v_lshlrev_b32 v28, 16, v216")
    rec(f"v_and_b32 v29, s{S_HI}, v216")
    rec("v_add_f32 v218, 1.0, v28")
    rec("v_add_f32 v219, 1.0, v29")
    rec("v_cvt_pk_bf16_f32 v216, v218, v219")
    rec("v_lshlrev_b32 v218, 16, v216")
    rec(f"v_and_b32 v219, s{S_HI}, v216")
    rec(lambda: a.wait(T["XW"]))
    rec("s_barrier")
    for o in yreads(): rec(o)
    for c in range(2):
        rec(f"v_readlane_b32 s{60+c}, v{28+c}, 8")
        rec(f"v_readlane_b32 s{S_CB+c}, v{218+c}, 16")
    for c in range(2):
        rec(f"v_mul_f32 v{28+c}, s{60+c}, v{28+c}")
        rec(f"v_mul_f32 v{218+c}, s{60+c}, v{218+c}")
    rec(f"s_lshl_b32 s{S_DD}, s{S_D}, 16")
    rec(f"s_and_b32 s{S_DD+1}, s{S_D}, s{S_HI}")
    for c in range(2):
        rec(f"v_readlane_b32 s{60+c}, v{28+c}, 0")
        rec(f"v_readlane_b32 s{S_A1+c}, v{218+c}, 4")
    for c in range(2): rec(f"v_mov_b32 v{24+c}, s{60+c}")
    rec(lambda: a.wait(T["KVE"]))
    for o in prep(0): rec(o)
    rec(lambda: a.wait(T["Y"]))
    for o in final(0, False): rec(o)
    rec("s_barrier")
    rec("v_lshlrev_b32 v3, 3, v0")
    ld_tb = []
    for vi, vec in enumerate((4, 3)):
        for kq in range(4):
            ld_tb.append(f"s_mov_b32 s62, {WS_MODP + kq*12288 + vec*2048}")
            ld_tb.append(f"buffer_load_dwordx2 {P2(220+vi*8+kq*2)}, v3, s[4:7], s62 offen sc1")
    for o in ld_tb[:-1]: rec(o)
    rec(("TBL", ld_tb[-1]))
    for o in prep(1): rec(o)
    fill += rec.l
    nm = 0
    for rr in range(4):
        for d in range(8):
            if rr < 3: loadB(1, rr + 1, d)
            a.wait(tb[1, rr, d])
            for nt in range(max(4, d), 8):
                q = nt - d
                c = "0" if (rr == 0 and d == 0) else Q4(ACC(nt))
                a(f"v_mfma_f32_16x16x32_bf16 {Q4(ACC(nt))}, {Q4(A(rr,q),'a')}, {Q4(B(rr,d))}, {c}")
                nm += 1
                pop(2 if nm % 4 else 3)
    print("conv-b leftover fillers", len(fill), file=sys.stderr)
    pop(1000)
    stamp(a, 9)
    a.wait(T["TBL"])
    for o in check_ops(range(220, 236), 216): a(o)
    k.retry(ld_tb, range(220, 236), 216)
    for nt in range(4, 8): a(f"ds_write_b128 v30, {Q4(ACC(nt))} offset:{(nt-4)*1024}")
    for vi in range(2):
        r = 220 + vi * 8
        a(f"v_pk_add_f32 {P2(r)}, {P2(r)}, {P2(r+2)}")
        a(f"v_pk_add_f32 {P2(r+4)}, {P2(r+4)}, {P2(r+6)}")
        a(f"v_pk_add_f32 {P2(r)}, {P2(r)}, {P2(r+4)}")
    a("v_cvt_pk_bf16_f32 v216, v220, v221")
    a("v_cvt_pk_bf16_f32 v228, v228, v229")
    a("v_lshlrev_b32 v220, 16, v216")
    a(f"v_and_b32 v221, s{S_HI}, v216")
    a("v_add_f32 v220, 1.0, v220")
    a("v_add_f32 v221, 1.0, v221")
    a("v_cvt_pk_bf16_f32 v220, v220, v221")
    a("v_and_b32 v3, 0xf1, v0")
    a("v_bfe_u32 v8, v0, 1, 2")
    a("v_lshl_add_u32 v3, v8, 2, v3")
    a("v_bfe_u32 v8, v0, 3, 1")
    a("v_lshl_add_u32 v3, v8, 1, v3")
    a("v_lshlrev_b32 v3, 2, v3")
    a(f"v_add_u32 v3, {L_TB}, v3")
    a("ds_write_b32 v3, v220")
    a("ds_write_b32 v3, v228 offset:1024")
    a("s_waitcnt lgkmcnt(0)")
    a("s_barrier")
    for o in yreads(): ty = a(o[1])
    a(f"s_add_u32 s60, s64, {WS_F1}")
    a(f"v_mov_b32 v8, s{S_TAG}")
    a("s_mov_b64 exec, 1")
    a("buffer_store_dword v8, v2, s[4:7], s60 offen sc1")
    a("s_mov_b64 exec, -1")
    a.wait(ty)
    for o in final(1, True): a(o)
    stamp(a, 10)
    S_DB, S_T2, S_WDS, S_WDM = 66, 67, 68, 69
    a(f"s_and_b32 s{S_DB}, s{S_IDX}, 7")
    a(f"s_lshr_b32 s60, s{S_IDX}, 3")
    a(f"s_lshl_b32 s61, s{S_XCD}, 1")
    a("s_lshr_b32 s62, s60, 1")
    a("s_add_u32 s61, s61, s62")
    a("s_and_b32 s60, s60, 1")
    a("s_lshl_b32 s60, s60, 4")
    a(f"s_add_u32 s{S_T2}, s60, s61")
    srd(a, 48, P_WD, 1792 * 1024)
    a(f"s_mul_i32 s{S_WDS}, s3, {448*1024}")
    a(f"s_lshl_b32 s60, s{S_DB}, 7")
    a(f"s_add_u32 s{S_WDS}, s{S_WDS}, s60")
    a(f"s_mul_i32 s{S_WDM}, s3, 28672")
    a(f"s_add_u32 s{S_WDM}, s{S_WDM}, {L_WD}")
    a("v_bfe_u32 v7, v1, 1, 2")
    a("v_bfe_u32 v8, v1, 4, 2")
    a("v_xor_b32 v7, v7, v8")
    a("v_and_b32 v8, 1, v1")
    a("v_lshl_add_u32 v7, v7, 1, v8")
    a("v_lshlrev_b32 v7, 4, v7")
    a("v_lshl_add_u32 v7, v4, 10, v7")
    def wd_dma(j):
        return [f"s_add_u32 m0, s{S_WDM}, {(j % 28)*1024}",
                ("WD", f"buffer_load_dwordx4 v7, s[48:51], s{S_WDS} offen lds"),
                f"s_add_u32 s{S_WDS}, s{S_WDS}, 8192"]
    ld_f1 = [f"s_mov_b32 s62, {WS_F1}", "buffer_load_dwordx4 v[240:243], v9, s[4:7], s62 offen sc1"]
    chk_f1 = [f"v_xor_b32 v{240+i}, s{S_TAG}, v{240+i}" for i in range(4)] + \
             ["v_or_b32 v240, v240, v241", "v_or3_b32 v240, v240, v242, v243", "v_cmp_ne_u32 vcc, 0, v240"]
    a("v_lshlrev_b32 v9, 7, v1")
    a(f"s_cmp_lg_u32 s{S_SPARE}, 0")
    a("s_cbranch_scc1 L_spare")
    S_ZS, S_S2 = 70, 71
    a(f"s_lshl_b32 s{S_ZS}, s{S_RB}, 14")
    a("s_lshl_b32 s60, s3, 12")
    a(f"s_add_u32 s{S_ZS}, s{S_ZS}, s60")
    a(f"s_add_u32 s{S_ZS}, s{S_ZS}, {WS_Z}")
    a(f"s_lshl_b32 s{S_S2}, s{S_RB}, 7")
    a(f"s_add_u32 s{S_S2}, s{S_S2}, {WS_ST2}")
    ZR = lambda t: 64 + (t & 1) * 16
    def ld_z(t):
        return [f"s_add_u32 s62, s{S_ZS}, {t*16*16384}"] + \
               [f"buffer_load_dwordx4 {Q4(ZR(t)+4*i)}, v2, s[4:7], s62 offen offset:{i*1024} sc1" for i in range(4)]
    def ld_s2(t):
        return [f"s_add_u32 s62, s{S_S2}, {t*16*128}", f"buffer_load_dwordx2 {P2(10 + 2*(t&1))}, v8, s[4:7], s62 offen sc1"]
    for o in ld_z(0): T["Z0"] = a(o)
    w1_tr(a, 1)
    a("v_and_b32 v3, 1, v1")
    a("v_lshlrev_b32 v3, 10, v3")
    a("v_lshl_add_u32 v3, v6, 4, v3")
    a(f"v_add_u32 v3, {L_TB}, v3")
    for s in range(16): a(f"ds_read_b128 {Q4(132+4*s)}, v3 offset:{s*64}")
    a("s_lshl_b32 s60, s3, 12")
    a("v_add_u32 v3, s60, v2")
    a("v_lshlrev_b32 v8, 3, v5")
    a("v_lshlrev_b32 v4, 6, v4")
    a("v_and_b32 v12, 3, v1")
    a("v_lshl_add_u32 v4, v12, 4, v4")
    a("v_bfe_u32 v12, v1, 2, 1")
    a("v_lshl_add_u32 v4, v12, 3, v4")
    a("s_waitcnt lgkmcnt(0)")
    a("s_barrier")
    stamp(a, 11)
    NB = 4
    BF = lambda n: 16 + (n % NB) * 4
    tok = {}
    def loadZ(n):
        t, s = divmod(n, 16)
        off = (t % 3) * 16384 + s * 1024
        a(f"ds_read_b64_tr_b16 {P2(BF(n))}, v4 offset:{off}")
        tok[n] = a(f"ds_read_b64_tr_b16 {P2(BF(n)+2)}, v4 offset:{off+512}")
    GA = lambda t: 32 + (t & 1) * 16
    def stage_ops(t):
        ops = [lambda: a.wait(T[f"Z{t}"])]
        regs = range(ZR(t), ZR(t) + 16)
        ops += check_ops(regs, 14)
        ops.append(lambda: k.retry(ld_z(t), regs, 14))
        for i in range(4): ops.append(("ZW", f"ds_write_b128 v3, {Q4(ZR(t)+4*i)} offset:{(t % 3)*16384 + i*1024}"))
        return ops
    def epi_ops(t):
        acc = GA(t); m, r = 10 + 2 * (t & 1), 11 + 2 * (t & 1)
        ops = [lambda: a.wait(T[f"S{t}"])]
        ops += check_ops((m, r), 14)
        ops.append(lambda: k.retry(ld_s2(t), (m, r), 14))
        for i in range(8):
            g, u = acc + i, acc + 8 + i
            ops.append(f"v_fma_f32 v{g}, -v{m}, v{96+i}, v{g}")
            ops.append(f"v_fma_f32 v{u}, -v{m}, v{104+i}, v{u}")
            ops.append(f"v_fma_f32 v{g}, v{g}, v{r}, v{112+i}")
            ops.append(f"v_fma_f32 v{u}, v{u}, v{r}, v{120+i}")
            ops.append(f"v_mul_f32 v{g}, v{g}, v{u}")
            if i & 1:
                ops.append(f"v_cvt_pk_bf16_f32 v{128 + (i>>1)}, v{g-1}, v{g}")
                ops.append(f"v_min_u32 v{128 + (i>>1)}, s{S_SENT}, v{128 + (i>>1)}")
        ops.append("buffer_store_dwordx4 v[128:131], v2, s[4:7], s65 offen sc1")
        ops.append(f"s_add_u32 s65, s65, {16*56*1024}")
        return ops
    wdj = 0
    for t in range(-1, 8):
        f1 = []
        if t + 2 < 8:
            l = ld_z(t + 2); f1 += l[:-1] + [(f"Z{t+2}", l[-1])]
        if t + 1 < 8: f1 += stage_ops(t + 1)
        f2 = []
        if t == 0:
            for r in range(16):
                f2.append(f"v_mov_b32_dpp v{96+r}, v{GA(-1)+r} quad_perm:[0,0,2,2] row_mask:0xf bank_mask:0xf")
                f2.append(f"v_mov_b32_dpp v{112+r}, v{GA(-1)+r} quad_perm:[1,1,3,3] row_mask:0xf bank_mask:0xf")
        if t >= 1: f2 += epi_ops(t - 1)
        if t >= 0:
            l = ld_s2(t); f2 += l[:-1] + [(f"S{t}", l[-1])]
        if 0 <= t <= 6:
            for _ in range(4):
                f2 += wd_dma(wdj); wdj += 1
        if t == 4: f2 += ld_f1[:-1] + [("F1", ld_f1[-1])]
        if t == 5:
            f2 += [lambda: a.wait(T["F1"])] + chk_f1 + [lambda: k.retry(ld_f1, chk_f1, None)]
        fill += f1 + f2
        nf1 = len(f2)
        barrier_done = t + 1 >= 8
        for s in range(16):
            n = t * 16 + s
            if s == 12 and not barrier_done:
                assert len(fill) <= nf1, (t, len(fill), nf1)
                a.wait(T["ZW"])
                a("s_barrier")
                barrier_done = True
            if 0 <= n + NB - 1 < 128: loadZ(n + NB - 1)
            if t >= 0: a.wait(tok[n])
            for ct in range(4):
                d = Q4(GA(t) + 4 * ct)
                b = Q4(BF(n)) if t >= 0 else Q4(132 + 4 * s)
                a(f"v_mfma_f32_16x16x32_bf16 {d}, {Q4((s*4+ct)*4,'a')}, {b}, {'0' if s == 0 else d}")
                pop(1 if ct == 3 else 2 if ct else 1)
        if fill: print("gemm1 tile", t, "leftover", len(fill), file=sys.stderr)
        pop(1000)
    fill += epi_ops(7)
    pop(1000)
    a("s_branch L_gemm2")
    a.label("L_spare")
    a("s_barrier")
    a(f"s_and_b32 s60, s{S_XCD}, 1")
    a("s_lshl_b32 s61, s3, 1")
    a("s_add_u32 s60, s60, s61")
    a("s_lshl_b32 s60, s60, 4")
    a(f"s_add_u32 s60, s60, s{S_RB}")
    a("s_lshl_b32 s61, s60, 14")
    a(f"s_add_u32 s61, s61, {WS_X1}")
    ld_x = []
    for i in range(16):
        if i % 4 == 0: ld_x.append(f"s_add_u32 s62, s61, {i*1024}")
        ld_x.append(f"buffer_load_dwordx4 {Q4(64+4*i)}, v2, s[4:7], s62 offen offset:{(i%4)*1024} sc1")
    a("s_cmp_ge_u32 s3, 2")
    a("s_cbranch_scc0 L_sp1")
    a("s_sleep 16")
    a.label("L_sp1")
    for o in ld_x: a(o)
    a("s_waitcnt vmcnt(0)")
    for o in check_ops(range(64, 128), 14): a(o)
    k.retry(ld_x, range(64, 128), 14)
    a("s_mov_b32 s62, 0x3f803f80")
    for j in range(8): a(f"v_mov_b32 v{32+j}, 0")
    for i in range(16):
        for j in range(4):
            a(f"v_dot2c_f32_bf16 v{32+j}, s62, v{64+4*i+j}")
            a(f"v_dot2c_f32_bf16 v{36+j}, v{64+4*i+j}, v{64+4*i+j}")
    for p in (32, 33, 36, 37): a(f"v_permlane32_swap_b32 v{p}, v{p+2}")
    for p in (32, 33, 36, 37): a(f"v_add_f32 v{p}, v{p}, v{p+2}")
    for p in (32, 36): a(f"v_permlane16_swap_b32 v{p}, v{p+1}")
    a("v_add_f32 v32, v32, v33")
    a("v_add_f32 v33, v36, v37")
    for rr in (8, 4):
        for p in (32, 33): a(f"v_add_f32_dpp v{p}, v{p}, v{p} row_ror:{rr} row_mask:0xf bank_mask:0xf")
    ln_finish(a, 32, 33, 34)
    san(a, (32, 33))
    a("v_and_b32 v34, 3, v1")
    a("v_lshl_add_u32 v34, v34, 2, v6")
    a("v_lshlrev_b32 v34, 3, v34")
    a("s_lshl_b32 s60, s60, 7")
    a(f"s_add_u32 s60, s60, {WS_ST2}")
    a("s_mov_b32 exec_lo, 0x000f000f")
    a("s_mov_b32 exec_hi, 0x000f000f")
    a("buffer_store_dwordx2 v[32:33], v34, s[4:7], s60 offen sc1")
    a("s_mov_b64 exec, -1")
    for j in range(28):
        for o in wd_dma(j): a(o[1] if isinstance(o, tuple) else o)
    for o in ld_f1: a(o)
    a("s_waitcnt vmcnt(0)")
    for o in chk_f1: a(o)
    k.retry(ld_f1, chk_f1, None)
    a("s_sleep 64")
    a.label("L_gemm2")
    stamp(a, 12)
    S_HS = 70
    srd(a, 8, P_OUT, 0x200000)
    a(f"s_mul_i32 s{S_HS}, s{S_T2}, 56")
    a("s_mul_i32 s60, s3, 14")
    a(f"s_add_u32 s{S_HS}, s{S_HS}, s60")
    a(f"s_lshl_b32 s{S_HS}, s{S_HS}, 10")
    a(f"s_add_u32 s{S_HS}, s{S_HS}, {WS_HH}")
    HB = lambda p, s: 132 + (p & 1) * 56 + 4 * s
    def ld_h(p, s, sr=63):
        o = []
        if s % 4 == 0: o.append(f"s_add_u32 s{sr}, s{S_HS}, {p*32*56*1024 + s*1024}")
        o.append(f"buffer_load_dwordx4 {Q4(HB(p,s))}, v2, s[4:7], s{sr} offen offset:{(s%4)*1024} sc1")
        return o
    a("v_lshrrev_b32 v14, 2, v1")
    a("v_bfe_u32 v15, v1, 3, 2")
    a("v_lshlrev_b32 v14, 7, v14")
    a("v_and_b32 v3, 3, v1")
    a("v_lshl_add_u32 v14, v3, 3, v14")
    a(f"v_add_u32 v14, s{S_WDM}, v14")
    for dt in range(4):
        a(f"v_xor_b32 v3, {dt}, v15")
        a(f"v_lshl_add_u32 v{10+dt}, v3, 5, v14")
    def wd_tr(s):
        t = None
        for dt in range(4):
            r = (s * 4 + dt) * 4
            for h in range(2):
                t = a(f"ds_read_b64_tr_b16 a[{r+2*h}:{r+2*h+1}], v{10+dt} offset:{(s % 7)*4096 + h*2048}")
        return t
    a("s_waitcnt vmcnt(1)")
    for s in range(14):
        for o in ld_h(0, s): T["H0"] = a(o)
    for s in range(7):
        t = wd_tr(s)
        if s >= 1:
            a.wait(tprev)
            for j in range(4):
                for o in wd_dma(28 + (s - 1) * 4 + j): a(o[1] if isinstance(o, tuple) else o)
        tprev = t
    a.wait(tprev)
    for j in range(4):
        for o in wd_dma(28 + 24 + j):
            t = a(o[1] if isinstance(o, tuple) else o)
            if t: twd = t
    a("v_lshrrev_b32 v5, 4, v0")
    a("v_and_b32 v6, 15, v0")
    a("v_lshlrev_b32 v3, 7, v6")
    a("v_lshl_add_u32 v3, v5, 2, v3")
    a("v_lshlrev_b32 v4, 4, v6")
    a(f"s_lshl_b32 s60, s{S_T2}, 14")
    a(f"s_lshl_b32 s61, s{S_DB}, 11")
    a("s_add_u32 s60, s60, s61")
    a(f"s_add_u32 s60, s60, {WS_X1}")
    a(f"s_lshl_b32 s61, s{S_DB}, 8")
    a(f"s_add_u32 s61, s61, {WS_MODP + 5*2048}")
    ld_r = []
    for p in range(4):
        ld_r.append(f"s_add_u32 s62, s60, {p*32*16384}")
        for e in range(2): ld_r.append(f"buffer_load_dword v{244+2*p+e}, v3, s[4:7], s62 offen offset:{64*e} sc1")
    for kq in range(4):
        ld_r.append(f"s_add_u32 s62, s61, {kq*12288}")
        ld_r.append(f"buffer_load_dwordx4 {Q4(64+4*kq)}, v4, s[4:7], s62 offen sc1")
    for o in ld_r: tr_ = a(o)
    for s in range(14):
        for o in ld_h(1, s): T["H1"] = a(o)
    a("v_and_b32 v14, 15, v1")
    a("v_lshrrev_b32 v15, 4, v1")
    a("v_xor_b32 v15, v15, v14")
    a("v_lshlrev_b32 v14, 8, v14")
    a("s_lshl_b32 s62, s3, 12")
    a("v_add_u32 v14, s62, v14")
    for dt in range(4):
        a(f"v_xor_b32 v8, {4*dt}, v15")
        a(f"v_lshl_add_u32 v{16+dt}, v8, 4, v14")
    a("v_xor_b32 v9, v6, v5")
    a("v_lshlrev_b32 v9, 4, v9")
    a("v_lshl_add_u32 v9, v5, 8, v9")
    a("v_lshlrev_b32 v8, 10, v5")
    a("v_lshl_add_u32 v8, v6, 3, v8")
    a(f"s_lshl_b32 s71, s{S_T2}, 14")
    a(f"s_lshl_b32 s62, s{S_DB}, 7")
    a("s_add_u32 s71, s71, s62")
    def chk_h(p):
        regs = range(HB(p, 0), HB(p, 0) + 56)
        l = sum((ld_h(p, s, 62) for s in range(14)), [])
        return [lambda: a.wait(T[f"H{p}"])] + check_ops(regs, 20) + [lambda: k.retry(l, regs, 20)]
    fill += chk_h(0)
    pop(1000)
    a.wait(twd)
    for s in range(7, 14): t = wd_tr(s)
    a.wait(tr_)
    rregs = list(range(244, 252)) + list(range(64, 80))
    for o in check_ops(rregs, 20): a(o)
    k.retry(ld_r, rregs, 20)
    for j in (0, 2):
        a(f"v_pk_add_f32 {P2(64+j)}, {P2(64+j)}, {P2(68+j)}")
        a(f"v_pk_add_f32 {P2(72+j)}, {P2(72+j)}, {P2(76+j)}")
        a(f"v_pk_add_f32 {P2(64+j)}, {P2(64+j)}, {P2(72+j)}")
        a(f"v_cvt_pk_bf16_f32 v20, v{64+j}, v{65+j}")
        a(f"v_lshlrev_b32 v{252+j}, 16, v20")
        a(f"v_and_b32 v{253+j}, s{S_HI}, v20")
    a("s_waitcnt lgkmcnt(0)")
    a("s_barrier")
    def red_ops(p):
        ops = []
        ro = (p & 1) * 16384
        for dt in range(4): ops.append(("RW", f"ds_write_b128 v{16+dt}, {Q4(GA(p)+4*dt)} offset:{ro}"))
        ops.append(lambda: a.wait(T["RW"]))
        ops.append("s_barrier")
        for w in range(4): ops.append(("RR", f"ds_read_b128 {Q4(64+4*w)}, v9 offset:{ro + w*4096}"))
        for e in range(2):
            ops.append(f"v_lshlrev_b32 v{80+2*e}, 16, v{244+2*p+e}")
            ops.append(f"v_and_b32 v{81+2*e}, s{S_HI}, v{244+2*p+e}")
        ops.append(lambda: a.wait(T["RR"]))
        for j in (0, 2):
            ops.append(f"v_pk_add_f32 {P2(64+j)}, {P2(64+j)}, {P2(68+j)}")
            ops.append(f"v_pk_add_f32 {P2(72+j)}, {P2(72+j)}, {P2(76+j)}")
        for j in (0, 2): ops.append(f"v_pk_add_f32 {P2(64+j)}, {P2(64+j)}, {P2(72+j)}")
        for j in (0, 2): ops.append(f"v_pk_fma_f32 {P2(64+j)}, {P2(64+j)}, {P2(252+j)}, {P2(80+j)}")
        for j in (0, 2): ops.append(f"v_cvt_pk_bf16_f32 v{84+j//2}, v{64+j}, v{65+j}")
        ops.append("buffer_store_dwordx2 v[84:85], v8, s[8:11], s71 offen")
        ops.append(f"s_add_u32 s71, s71, {32*16384}")
        return ops
    for p in range(4):
        if p >= 1: fill += ["s_nop 0", "s_nop 0", "s_nop 0", "s_nop 0"] + red_ops(p - 1)
        for s in range(14):
            for dt in range(4):
                d = Q4(GA(p) + 4 * dt)
                a(f"v_mfma_f32_16x16x32_bf16 {d}, {Q4((s*4+dt)*4,'a')}, {Q4(HB(p,s))}, {'0' if s == 0 else d}")
                pop(2)
            if p + 2 < 4:
                for o in ld_h(p + 2, s): T[f"H{p+2}"] = a(o)
            if s == 8 and p + 1 < 4: fill += chk_h(p + 1)
        pop(1000)
    fill += red_ops(3)
    pop(1000)
    if STAMP and DIAG is None:
        a("s_waitcnt vmcnt(0)")
        a("s_memrealtime s[72:73]")
        a("s_waitcnt lgkmcnt(0)")
        a("s_lshl_b32 s60, s2, 2")
        a("s_add_u32 s60, s60, s3")
        a("s_lshl_b32 s60, s60, 6")
        a(f"s_add_u32 s60, s60, {WS_STAMP}")
        a("s_mov_b64 exec, 1")
        a("v_mov_b32 v1, 0")
        for i in range(14):
            a(f"v_mov_b32 v2, s{76+2*i if i < 13 else 72}")
            a(f"buffer_store_dword v2, v1, s[4:7], s60 offen offset:{4*i}")
    if DIAG is not None:
        a("s_waitcnt vmcnt(0)")
        a("s_memrealtime s[72:73]")
        a("s_waitcnt lgkmcnt(0)")
        a("s_cmp_lg_u32 s2, 100")
        a("s_cbranch_scc1 L_end")
        src = 72 if DIAG == 13 else 76 + 2 * DIAG
        a(f"s_sub_u32 s60, s{src}, s76")
        a("s_add_u32 s60, s60, 6000")
        a("s_min_u32 s60, s60, 20000")
        a.label("L_diag")
        a("s_memrealtime s[72:73]")
        a("s_waitcnt lgkmcnt(0)")
        a("s_sub_u32 s61, s72, s76")
        a("s_cmp_lt_u32 s61, s60")
        a("s_cbranch_scc1 L_diag")
    a.label("L_end")
    a("s_endpgm")
    k.emit_slow()
    print("instrs", a.ninstr, "nops", a.nnop, file=sys.stderr)
    return a.text()

def main(path):
    txt = f"; @launch grid=(256,1,1) block=(256,1,1) lds={LDS_BYTES}\n"
    txt += '.amdgcn_target "amdgcn-amd-amdhsa--gfx950"\n.text\n'
    txt += build()
    txt += f""".section .rodata,"a"
.p2align 6
.amdhsa_kernel {NAME}_kernel
  .amdhsa_next_free_vgpr 512
  .amdhsa_next_free_sgpr 102
  .amdhsa_accum_offset 256
  .amdhsa_group_segment_fixed_size 0
  .amdhsa_kernarg_size 120
  .amdhsa_user_sgpr_count 2
  .amdhsa_user_sgpr_kernarg_segment_ptr 1
  .amdhsa_system_sgpr_workgroup_id_x 1
  .amdhsa_float_denorm_mode_32 3
.end_amdhsa_kernel
"""
    open(path, "w").write(txt)

if __name__ == "__main__":
    if len(sys.argv) > 2 and sys.argv[2] == "stamp": STAMP = True
    if len(sys.argv) > 2 and sys.argv[2].startswith("diag"):
        STAMP = True; DIAG = int(sys.argv[2][4:])
    main(sys.argv[1])
```

```python
import re

TRANS = ("v_exp_f32", "v_log_f32", "v_rcp_f32", "v_rsq_f32", "v_sqrt_f32", "v_sin_f32", "v_cos_f32", "v_rcp_iflag_f32")
REG_RE = re.compile(r"^(-|abs\()?([vas])(\d+|\[\d+:\d+\])\)?$")

def regs_of(op):
    op = op.strip()
    if op in ("vcc",): return [("s", "vcc")]
    if op in ("exec",): return [("s", "exec")]
    if op == "m0": return [("s", "m0")]
    m = REG_RE.match(op)
    if not m: return []
    k = m.group(2); r = m.group(3)
    if r.startswith("["):
        lo, hi = map(int, r[1:-1].split(":"))
        return [(k, i) for i in range(lo, hi + 1)]
    return [(k, int(r))]

def split_ops(text):
    text = text.split(";")[0].strip()
    parts = text.split(None, 1)
    mn = parts[0]
    if len(parts) == 1: return mn, [], ""
    rest = parts[1]
    ops = [x.strip() for x in re.split(r",(?![^\[]*\])", rest)]
    last = ops[-1].split()
    mods = " ".join(last[1:]) if len(last) > 1 else ""
    ops[-1] = last[0] if last else ""
    return mn, ops, mods

class Ins:
    def __init__(self, text):
        self.text = text
        mn, ops, mods = split_ops(text)
        self.mn, self.ops, self.mods = mn, ops, mods
        self.dst, self.src = [], []
        self.kind = "other"
        R = regs_of
        if mn.startswith("v_mfma"):
            self.kind = "mfma"
            self.passes = 8 if "32x32x16" in mn else 4 if "16x16x32" in mn else None
            assert self.passes
            self.dst = R(ops[0]); self.a = R(ops[1]) + R(ops[2]); self.c = R(ops[3]); self.src = self.a + self.c
        elif mn.startswith("v_"):
            self.kind = "valu"
            if mn.startswith("v_cmp"):
                self.dst = R(ops[0]); self.src = sum((R(o) for o in ops[1:]), [])
            elif mn.startswith("v_permlane") and "swap" in mn:
                self.dst = R(ops[0]) + R(ops[1]); self.src = list(self.dst)
            elif mn.startswith(("v_add_co", "v_sub_co", "v_addc_co", "v_subb_co")):
                self.dst = R(ops[0]) + R(ops[1]); self.src = sum((R(o) for o in ops[2:]), [])
            elif mn.startswith("v_nop"):
                pass
            else:
                self.dst = R(ops[0]); self.src = sum((R(o) for o in ops[1:]), [])
                if mn.startswith(("v_fmac", "v_dot2c", "v_writelane")) or "dpp" in mn or "sdwa" in mn:
                    self.src += self.dst
        elif mn.startswith(("buffer_load", "global_load")):
            self.kind = "vmem"
            if "lds" in mn or " lds" in (" " + mods):
                self.dma = True
                self.src = sum((R(o) for o in ops), []) + [("s", "m0")]
            else:
                self.dst = R(ops[0]); self.src = sum((R(o) for o in ops[1:]), [])
        elif mn.startswith(("buffer_store", "global_store", "buffer_atomic", "global_atomic")):
            self.kind = "vmem"
            self.src = sum((R(o) for o in ops), [])
            self.wide = mn.endswith(("x3", "x4"))
            self.data = R(ops[0]) if mn.startswith("buffer") else R(ops[1])
        elif mn.startswith(("buffer_wbl2", "buffer_inv")):
            self.kind = "vmem"
        elif mn.startswith("ds_"):
            self.kind = "ds"
            if mn.startswith(("ds_read", "ds_bpermute", "ds_permute", "ds_swizzle")):
                self.dst = R(ops[0]); self.src = sum((R(o) for o in ops[1:]), [])
            else:
                self.src = sum((R(o) for o in ops), [])
        elif mn.startswith("s_"):
            self.kind = "salu"
            if mn.startswith(("s_load", "s_buffer_load", "s_memtime", "s_memrealtime")):
                self.kind = "smem"
            if mn.startswith(("s_cmp", "s_cbranch", "s_branch", "s_waitcnt", "s_barrier", "s_nop", "s_endpgm", "s_sleep", "s_setprio", "s_bitcmp")):
                self.src = sum((R(o) for o in ops), [])
            else:
                self.dst = R(ops[0]) if ops else []
                self.src = sum((R(o) for o in ops[1:]), [])

class Asm:
    def __init__(self):
        self.out = []
        self.clock = 0
        self.ev = {}
        self.snap = {}
        self.vm = 0
        self.lg = 0
        self.nnop = 0
        self.ninstr = 0
        self.bg = []
        self.bg_every = 16
        self.bg_cnt = 0
        self.bg_off = 0
        self.bg2 = []
        self.bg2_every = 3
        self.bg2_cnt = 0
        self.T = {}

    def raw(self, s): self.out.append(s)
    def c(self, s): self.out.append("    ; " + s)

    def age(self, reg, kind):
        e = self.ev.get((reg, kind))
        if e is None: return None
        return self.clock - e[0] - 1, e[1]

    def need(self, ins):
        n = 0
        def req(reg, kind, ws):
            nonlocal n
            a = self.age(reg, kind)
            if a is not None and a[0] < ws: n = max(n, ws - a[0])
        k = ins.kind
        mn = ins.mn
        isv = lambda r: r[0] in "va"
        if k == "mfma":
            for r in ins.src:
                req(r, "valu_w", 2)
                req(r, "dot_w", 3)
            for r in ins.a:
                a = self.age(r, "mfma_w")
                if a: req(r, "mfma_w", a[1][0] + 4)
            for r in ins.c + ins.dst:
                a = self.age(r, "mfma_w")
                if a:
                    p, d = a[1]
                    if not (d == tuple(ins.c) and p == ins.passes): req(r, "mfma_w", p + 2)
        else:
            if k in ("valu", "vmem", "ds"):
                for r in ins.src + ins.dst:
                    if not isv(r): continue
                    a = self.age(r, "mfma_w")
                    if a: req(r, "mfma_w", a[1][0] + 4)
                    a = self.age(r, "dot_w")
                    if a and not (mn == a[1] and r in ins.dst and r not in regs_of(ins.ops[1]) + regs_of(ins.ops[2])):
                        req(r, "dot_w", 3)
            if k == "valu":
                for r in ins.dst:
                    if isv(r):
                        a = self.age(r, "mfma_c")
                        if a: req(r, "mfma_c", a[1] - 1)
                        req(r, "wstore", 2)
                for r in ins.src:
                    if isv(r):
                        if "dpp" in mn or mn.startswith("v_permlane"): req(r, "valu_w", 2); req(r, "ld_w", 0)
                        if mn.startswith(("v_readlane", "v_readfirstlane")): req(r, "valu_w", 1)
                        if not mn.startswith(TRANS): req(r, "trans_w", 1)
                        req(r, "sdwa_w", 1)
                    else:
                        req(r, "valu_sw", 4 if mn.startswith(("v_readlane", "v_writelane")) else 2)
                if mn.startswith(("v_cndmask", "v_addc", "v_subb")) : req(("s", "vcc"), "valu_sw", 2)
            if k in ("vmem", "ds"):
                for r in ins.dst:
                    req(r, "wstore", 1)
                for r in ins.src:
                    if isv(r): req(r, "trans_w", 1)
            if k == "vmem":
                for r in ins.src:
                    if not isv(r): req(r, "valu_sw", 5)
                if getattr(ins, "dma", False): req(("s", "m0"), "salu_w", 1)
            if k in ("salu", "smem"):
                for r in ins.src:
                    req(r, "valu_sw", 1)
                if mn.startswith("s_cbranch_vcc"): req(("s", "vcc"), "valu_sw", 1)
        return n

    def record(self, ins):
        t = self.clock
        k = ins.kind
        if k == "mfma":
            for r in ins.dst: self.ev[(r, "mfma_w")] = (t, (ins.passes, tuple(ins.dst)))
            for r in ins.c: self.ev[(r, "mfma_c")] = (t, ins.passes)
        elif k == "valu":
            for r in ins.dst:
                if r[0] in "va":
                    self.ev[(r, "valu_w")] = (t, None)
                    if ins.mn.startswith(TRANS): self.ev[(r, "trans_w")] = (t, None)
                    if ins.mn.startswith("v_dot"): self.ev[(r, "dot_w")] = (t, ins.mn)
                    if "sdwa" in ins.mn or ("op_sel" in ins.mods and not ins.mn.startswith("v_pk_")): self.ev[(r, "sdwa_w")] = (t, None)
                else:
                    self.ev[(r, "valu_sw")] = (t, None)
        elif k == "salu":
            for r in ins.dst: self.ev[(r, "salu_w")] = (t, None)
        elif k == "vmem" and getattr(ins, "wide", False):
            for r in ins.data: self.ev[(r, "wstore")] = (t, None)

    def item(self, o):
        if callable(o): return o()
        if isinstance(o, tuple):
            self.T[o[0]] = self.emit(o[1]); return self.T[o[0]]
        return self.emit(o)

    def flush_bg(self, n=10**9):
        while self.bg and n > 0:
            for o in self.bg.pop(0): self.item(o)
            n -= 1
        self.bg_cnt = 0

    def __call__(self, text):
        tok = self.item(text)
        if self.bg and not self.bg_off:
            self.bg_cnt += 1
            if self.bg_cnt >= self.bg_every: self.flush_bg(1)
        if self.bg2 and not self.bg_off:
            self.bg2_cnt += 1
            if self.bg2_cnt >= self.bg2_every:
                self.bg2_cnt = 0
                self.item(self.bg2.pop(0))
        return tok

    def emit(self, text):
        ins = Ins(text)
        n = self.need(ins)
        while n > 0:
            m = min(n, 16)
            self.out.append(f"    s_nop {m-1}")
            self.clock += m; n -= m; self.nnop += 1
        self.out.append("    " + text)
        self.ninstr += 1
        self.record(ins)
        if ins.mn == "s_nop": self.clock += int(ins.ops[0]) + 1
        else: self.clock += 1
        if ins.mn.startswith(("s_cbranch", "s_branch")):
            self.snap.setdefault(ins.ops[0], []).append({k: (self.clock - v[0], v[1]) for k, v in self.ev.items() if self.clock - v[0] < 32})
        tok = None
        if ins.kind == "vmem":
            self.vm += 1; tok = ("vm", self.vm)
        elif ins.kind == "ds":
            self.lg += 1; tok = ("lg", self.lg)
        return tok

    def label(self, name):
        self.out.append(name + ":")
        for s in self.snap.get(name, []):
            for k, (age, ex) in s.items():
                cur = self.ev.get(k)
                if cur is None or self.clock - cur[0] > age:
                    self.ev[k] = (self.clock - age, ex)

    def wait(self, *toks):
        vm = [t[1] for t in toks if t and t[0] == "vm"]
        lg = [t[1] for t in toks if t and t[0] == "lg"]
        s = []
        if vm: s.append(f"vmcnt({min(63, self.vm - max(vm))})")
        if lg: s.append(f"lgkmcnt({min(15, self.lg - max(lg))})")
        if s: self.emit("s_waitcnt " + " ".join(s))

    def text(self): return "\n".join(self.out) + "\n"


def cls_of(o):
    if callable(o): return "S"
    t = o[1] if isinstance(o, tuple) else o
    mn = t.split()[0]
    if mn.startswith("s_"): return "S"
    if mn.startswith("v_"): return "V"
    return "M"

class Gaps:
    def __init__(self, a, nstreams):
        self.a = a
        self.st = [[] for _ in range(nstreams)]
        self.pace = [0] * nstreams
        self.lastm = [-999] * nstreams
        self.n = 0
    def add(self, i, ops): self.st[i] += list(ops)
    def left(self, which=None):
        return sum(len(x) for i, x in enumerate(self.st) if which is None or i in which)
    def take(self, cls, skip=()):
        for i, q in enumerate(self.st):
            if i in skip or not q: continue
            if cls_of(q[0]) == cls:
                if cls == "M":
                    if self.n - self.lastm[i] < self.pace[i]: continue
                    self.lastm[i] = self.n
                o = q.pop(0); self.a.item(o); return i, o
        return None
    def gap(self, fixedS=None, fixedM=None):
        skip = set()
        self.n += 1
        def takeS():
            r = self.take("S")
            if r:
                t = r[1][1] if isinstance(r[1], tuple) else r[1]
                if isinstance(t, str) and " m0," in t: skip.add(r[0])
            return r
        if fixedS: fixedS()
        else: takeS()
        if fixedM: fixedM()
        else:
            if not self.take("M", skip):
                if not self.take("V"): takeS()
        if not self.take("V"): takeS()
    def drain(self, which=None):
        for i, q in enumerate(self.st):
            if which is not None and i not in which: continue
            while q: self.a.item(q.pop(0))
```

```python
import sys
from dsl import Asm, Gaps
NAME = "adaLN_cond__ssm_conv_h3__glu_gated_bilinear__prompt"

WS_KV, WS_Y, WS_H2, WS_X1, WS_HH = 0x0, 0x200000, 0x400000, 0x600000, 0x800000
WS_MOD = 0x1000000
WS_F0, WS_F1, WS_FB, WS_F2A, WS_F2B, WS_EP = 0x1030000, 0x1040000, 0x1050000, 0x1060000, 0x1080000, 0x10a0000
WS_STAMP = 0x1800000
WS_SIZE = 0x2000000
OOB = 0x40000000
SPIN = 3000

L_KC, L_UU, L_RSA, L_MP = 131072, 147712, 156928, 161024
L_EX, L_RSB = L_KC, L_UU
L_Z = 98304
LDS_BYTES = 163840

P_Q, P_K, P_V, P_SH, P_SK, P_SD, P_WG, P_WU, P_WD, P_C, P_WM, P_OUT, P_DBG, P_WS = 16, 18, 20, 22, 24, 26, 30, 32, 34, 36, 38, 40, 42, 44
S_XCD, S_IDX, S_TAG, S_HI, S_SENT, S_RB, S_CT, S_D, S_SPARE = 46, 47, 56, 57, 58, 59, 28, 29, 75
S_WS, S_WM = 18, 19
S_FO, S_HO, S_YO, S_ROW, S_MO = 64, 65, 71, 22, 42
STAMP = False
DIAG = None
OPT = dict(ord="//m/n/cq", spsl=1, zsleep=0, ln1at=1, cconv=0, yat=12, defer=2, fs=6, ht=1, hp=3, hstart=1, f2ld=(6, 1), f2ck=(6, 9), f2bld=(7, 14), h3t=(9, 9), f2bck=(0, 5), h3at=(1, 9), h3ck=(2, 10), rot=1, early2=1, f0at=12, aftat=20, t2=1, dt=0, n0=0, n1=0, pollat=-1, b4lag=10, p1=3, p2=12, n2=8, p2b=4, touch=1, outf="sc1", zearly=1)
Q4 = lambda r, k="v": f"{k}[{r}:{r+3}]"
P2 = lambda r: f"v[{r}:{r+1}]"
SLIST = [0, 1, 2, 3, 4, 5, 6, 7, 8, 9, 10, 11, 12]

def stamp(a, name):
    if STAMP and name in SLIST:
        i = SLIST.index(name)
        a.emit(f"s_memrealtime s[{76+2*i}:{77+2*i}]")

def srd(a, d, p, nbytes):
    a(f"s_mov_b32 s{d}, s{p}")
    a(f"s_mov_b32 s{d+1}, s{p+1}")
    a(f"s_mov_b32 s{d+2}, {hex(nbytes)}")
    a(f"s_mov_b32 s{d+3}, 0x20000")

def ln_finish(a, pairs):
    def each(f):
        for p in pairs: a(f(*p))
    each(lambda s, q, t: f"v_mul_f32 v{s}, 0x3b000000, v{s}")
    each(lambda s, q, t: f"v_mul_f32 v{q}, 0x3b000000, v{q}")
    each(lambda s, q, t: f"v_fma_f32 v{q}, -v{s}, v{s}, v{q}")
    each(lambda s, q, t: f"v_max_f32 v{q}, 0, v{q}")
    each(lambda s, q, t: f"v_cvt_pk_bf16_f32 v{t}, v{q}, v{s}")
    each(lambda s, q, t: f"v_lshlrev_b32 v{q}, 16, v{t}")
    each(lambda s, q, t: f"v_and_b32 v{s}, s{S_HI}, v{t}")
    each(lambda s, q, t: f"v_add_f32 v{q}, 0x3727c5ac, v{q}")
    each(lambda s, q, t: f"v_cvt_pk_bf16_f32 v{t}, v{q}, v{q}")
    each(lambda s, q, t: f"v_lshlrev_b32 v{q}, 16, v{t}")
    each(lambda s, q, t: f"v_sqrt_f32 v{q}, v{q}")
    each(lambda s, q, t: f"v_cvt_pk_bf16_f32 v{t}, v{q}, v{q}")
    each(lambda s, q, t: f"v_lshlrev_b32 v{q}, 16, v{t}")
    each(lambda s, q, t: f"v_rcp_f32 v{q}, v{q}")
    each(lambda s, q, t: f"v_mul_f32 v{s}, -v{s}, v{q}")

WAVE_RED = ("quad_perm:[1,0,3,2] row_mask:0xf", "quad_perm:[2,3,0,1] row_mask:0xf", "row_half_mirror row_mask:0xf",
            "row_mirror row_mask:0xf", "row_bcast:15 row_mask:0xa", "row_bcast:31 row_mask:0xc")

def san(a, regs):
    for r in regs: a(f"v_min_u32 v{r}, s{S_SENT}, v{r}")

def check_ops(regs, t):
    ops = []
    regs = list(regs)
    if len(regs) == 2:
        ops.append(f"v_max_u32 v{t}, v{regs[0]}, v{regs[1]}"); rest = []
    else:
        ops.append(f"v_max3_u32 v{t}, v{regs[0]}, v{regs[1]}, v{regs[2]}"); rest = regs[3:]
    while rest:
        if len(rest) >= 2:
            ops.append(f"v_max3_u32 v{t}, v{t}, v{rest[0]}, v{rest[1]}"); rest = rest[2:]
        else:
            ops.append(f"v_max_u32 v{t}, v{t}, v{rest[0]}"); rest = rest[1:]
    ops.append(f"v_cmp_eq_u32 vcc, -1, v{t}")
    return ops

def txt(o): return o[1] if isinstance(o, tuple) else o
def named(name, l): return list(l[:-1]) + [(name, txt(l[-1]))]

class Rec:
    def __init__(s): s.l = []
    def __call__(s, t): s.l.append(t)

class K:
    def __init__(self):
        self.a = Asm(); self.slow = []; self.nl = 0
    def retry(self, loads, chk, mid=(), sleep=4):
        a = self.a
        self.nl += 1; n = self.nl
        a.emit(f"s_cbranch_vccnz L_slow{n}")
        a.label(f"L_back{n}")
        self.slow.append((n, [txt(o) for o in loads], list(chk), [txt(o) for o in mid], sleep))
        if STAMP: print("retry site", n, txt(loads[-1])[:70], file=sys.stderr)
    def emit_slow(self):
        a = self.a
        for n, loads, chk, mid, sleep in self.slow:
            a.label(f"L_slow{n}")
            a("s_nop 7"); a("s_nop 7")
            a("s_mov_b32 s74, 0")
            a("s_mov_b32 s23, m0")
            if STAMP: a(f"s_bitset1_b32 s20, {n}")
            a.label(f"L_sl{n}")
            if STAMP: a("s_add_u32 s21, s21, 1")
            a(f"s_sleep {sleep}")
            for o in loads: a(o)
            a("s_waitcnt vmcnt(0)")
            if mid:
                for o in mid: a(o)
                a("s_waitcnt lgkmcnt(0)")
            for o in chk: a(o)
            a("s_add_u32 s74, s74, 1")
            a(f"s_cmp_ge_u32 s74, {SPIN}")
            a(f"s_cbranch_scc1 L_sx{n}")
            a(f"s_cbranch_vccnz L_sl{n}")
            a.label(f"L_sx{n}")
            a("s_mov_b32 m0, s23")
            a("s_nop 4")
            a(f"s_branch L_back{n}")

A_SW, A_SR, A_A, A_KP, A_KW, A_B, A_XW, A_XR, A_KE, A_TR = 128, 129, 130, 134, 135, 136, 137, 138, 139, 140
A_MW, A_MR, A_MS, A_FS, A_FL, A_TG, A_ML, A_YL, A_RW, A_RR, A_WM, A_C, A_L1 = 144, 145, 146, 146, 148, 149, 150, 151, 152, 153, 154, 155, 156
A_SW2 = 157
S_KP, S_YL = 30, 32
def flag_store(base, vt, va, so="s60", off=f"s{S_FO}"):
    return [f"s_add_u32 {so}, {off}, {base}", f"v_lshlrev_b32 v{va}, 26, v6", f"v_lshl_add_u32 v{va}, v5, 2, v{va}",
            f"v_mov_b32 v{vt}, s{S_TAG}", f"buffer_store_dword v{vt}, v{va}, s[4:7], {so} offen sc1"]
def flag_store2(base, so="s60"):
    return [f"s_add_u32 {so}, s{S_FO}, {base}", f"buffer_store_dword v{A_TG}, v{A_FS}, s[4:7], {so} offen sc1"]
def flag_load(base, vd, so="s62"):
    return [f"s_mov_b32 {so}, {base}", f"buffer_load_dword v{vd}, v{A_FL}, s[4:7], {so} offen sc1"]
def plain(l): return [(o[0], o[1].replace(" sc1", "")) if isinstance(o, tuple) else o.replace(" sc1", "") for o in l]
def flag_chk(vd): return [f"v_cmp_ne_u32 vcc, s{S_TAG}, v{vd}"]

VW = 240
def w1_groups():
    g = []
    for j in range(32):
        l = []
        if j % 4 == 0:
            if OPT["rot"]:
                l.append("s_add_u32 s26, s26, 4096")
                l.append("s_and_b32 s26, s26, 0x7fff")
                l.append(f"s_add_u32 m0, s{S_WM}, s26")
                l.append("s_mul_i32 s27, s26, 14")
            else:
                l.append(f"s_add_u32 m0, s{S_WM}, {j*1024}")
                l.append(f"s_mov_b32 s27, {j*14336}")
        l.append(("W1", f"buffer_load_dwordx4 v{VW + j % 4}, s[48:51], s27 offen offset:{(j % 4)*1024} lds"))
        g.append(l)
    return g

def w1_tr_setup(a, b):
    a(f"v_bfe_u32 v{b+1}, v1, 2, 3")
    a("s_lshl_b32 s63, s3, 1")
    a(f"v_xor_b32 v{b+1}, s63, v{b+1}")
    a(f"v_bfe_u32 v{b}, v1, 2, 2")
    a(f"v_lshl_add_u32 v{b}, v6, 3, v{b}")
    a(f"v_lshlrev_b32 v{b}, 8, v{b}")
    a(f"v_and_b32 v{b+2}, 3, v1")
    a(f"v_lshl_add_u32 v{b}, v{b+2}, 3, v{b}")
    a(f"v_lshl_add_u32 v{b}, v{b+1}, 5, v{b}")
    a(f"v_xor_b32 v{b+1}, 32, v{b}")
    a(f"v_add_u32 v{b+2}, 0x10000, v{b}")
    a(f"v_add_u32 v{b+3}, 0x10000, v{b+1}")
def w1_tr(half, b):
    l = []
    for s in range(8):
        for ct in range(4):
            r = ((half * 8 + s) * 4 + ct) * 4
            for h in range(2):
                l.append(("WTR", f"ds_read_b64_tr_b16 a[{r+2*h}:{r+2*h+1}], v{b+ct} offset:{s*8192 + h*1024}"))
    return l

def build():
    k = K(); a = k.a; T = a.T
    a.raw(f".globl {NAME}_kernel\n.p2align 8\n.type {NAME}_kernel,@function\n{NAME}_kernel:")
    a("s_cmp_ge_u32 s2, 256")
    a("s_cbranch_scc1 L_end")
    stamp(a, 0)
    a("s_load_dwordx16 s[16:31], s[0:1], 0")
    a("s_load_dwordx8 s[32:39], s[0:1], 64")
    a("s_load_dwordx2 s[40:41], s[0:1], 96")
    a("s_load_dwordx2 s[44:45], s[0:1], 112")
    a("s_getpc_b64 s[4:5]")
    a.label("L_pc0")
    a("s_lshl_b32 s6, s2, 3")
    a("s_and_b32 s6, s6, 0xc0")
    a("v_lshrrev_b32 v3, 2, v0")
    a("v_add_lshl_u32 v3, v3, s6, 7")
    a("v_min_u32 v3, L_codeend-L_pc0-4, v3")
    a("global_load_dword v236, v3, s[4:5]")
    a("v_lshrrev_b32 v1, 6, v0")
    a("v_readfirstlane_b32 s3, v1")
    a("v_and_b32 v1, 63, v0")
    a("v_lshlrev_b32 v2, 4, v1")
    a(f"s_and_b32 s{S_XCD}, s2, 7")
    a(f"s_lshr_b32 s{S_IDX}, s2, 3")
    a(f"s_mov_b32 s{S_HI}, 0xffff0000")
    a(f"s_mov_b32 s{S_SENT}, 0xfffffffe")
    a(f"s_lshr_b32 s60, s{S_IDX}, 2")
    a(f"s_lshl_b32 s61, s{S_XCD}, 3")
    a("s_add_u32 s66, s60, s61")
    a(f"s_and_b32 s61, s{S_IDX}, 3")
    a("s_lshl_b32 s62, s66, 15")
    a("s_lshl_b32 s63, s61, 8")
    a("s_add_u32 s62, s62, s63")
    a("s_lshl_b32 s63, s3, 6")
    a("s_add_u32 s62, s62, s63")
    a("v_and_b32 v5, 15, v1")
    a("v_lshrrev_b32 v6, 4, v1")
    a("v_lshlrev_b32 v7, 13, v6")
    a("v_lshl_add_u32 v7, v5, 2, v7")
    a("v_add_u32 v7, s62, v7")
    a("v_subrev_u32 v3, 3072, v7")
    a("v_add_u32 v4, 4096, v7")
    a("s_lshl_b32 s63, s61, 2")
    a("s_add_u32 s63, s63, s3")
    a("s_lshl_b32 s63, s63, 4")
    a("s_lshl_b32 s73, s63, 4")
    a("v_lshlrev_b32 v8, 4, v5")
    a("s_lshl2_add_u32 s65, s66, s61")
    a(f"s_lshl_b32 s65, s65, {OPT['fs']}")
    a("s_lshl_b32 s69, s66, 8")
    a("s_add_u32 s69, s69, s63")
    a("s_lshl_b32 s69, s69, 7")
    for i in range(4): a(f"v_mov_b32 v{244+i}, -1")
    a(f"s_mul_i32 s67, s{S_XCD}, 6")
    a("s_add_u32 s67, s67, s60")
    a("s_lshl_b32 s67, s67, 2")
    a("s_add_u32 s67, s67, s61")
    a(f"s_cmp_ge_u32 s{S_IDX}, 24")
    a(f"s_cselect_b32 s74, {OOB}, 0")
    a("s_cmp_eq_u32 s3, 0")
    a(f"s_cselect_b32 s70, 0, {OOB}")
    a(f"s_lshl_b32 s{S_MO}, s67, 6")
    a(f"s_add_u32 s{S_MO}, s{S_MO}, {WS_MOD}")
    a("s_or_b32 s63, s74, s70")
    a(f"s_add_u32 s{S_MO}, s{S_MO}, s63")
    a("s_lshr_b32 s63, s67, 5")
    a("s_lshr_b32 s63, 0x12, s63")
    a("s_and_b32 s63, s63, 1")
    a("s_mul_i32 s43, s63, 0x3f800000")
    a(f"s_lshl_b32 s63, s2, {OPT['fs']}")
    a(f"s_add_u32 s{S_FO}, s63, s70")
    a("s_add_u32 s70, s65, s70")
    a(f"s_add_u32 s70, s70, {WS_F0}")
    a("v_lshrrev_b32 v9, 2, v1")
    a("v_lshlrev_b32 v9, 14, v9")
    a("v_and_b32 v40, 3, v1")
    a("v_lshl_add_u32 v9, v40, 4, v9")
    a(f"s_lshl_b32 s{S_YO}, s3, 18")
    a("s_lshl_b32 s72, s2, 6")
    a(f"s_add_u32 s{S_YO}, s{S_YO}, s72")
    a(f"s_add_u32 s{S_YO}, s{S_YO}, {WS_Y}")
    a(f"v_and_b32 v{A_L1}, 1, v1")
    a("s_waitcnt lgkmcnt(0)")
    stamp(a, 1)
    srd(a, 8, P_K, 0x200000)
    srd(a, 12, P_V, 0x200000)
    for i in range(11):
        base, off = (3, i) if i < 3 else (7, i - 3) if i < 7 else (4, i - 7)
        a(f"buffer_load_dword v{10+i}, v{base}, s[8:11], 0 offen offset:{off*1024}")
    for i in range(8):
        base, off = (7, i) if i < 4 else (4, i - 4)
        a(f"buffer_load_dword v{21+i}, v{base}, s[12:15], 0 offen offset:{off*1024}")
    if STAMP: a("s_mov_b64 s[20:21], 0")
    srd(a, 52, P_SH, 4096)
    srd(a, 4, P_WS, WS_SIZE)
    a("buffer_load_dwordx4 v[32:35], v8, s[52:55], s73 offen")
    a(f"s_add_u32 s72, s{P_WS}, {WS_EP}")
    a(f"s_addc_u32 s73, s{P_WS+1}, 0")
    a(f"s_load_dword s{S_TAG}, s[72:73], 0")
    a("s_lshl_b32 s72, s2, 2")
    a(f"s_load_dword s{S_D}, s[{P_SD}:{P_SD+1}], s72")
    a("s_lshr_b32 s60, s3, 1")
    a("s_and_b32 s61, s3, 1")
    a("s_lshl1_add_u32 s62, s2, s60")
    a("s_lshl_b32 s62, s62, 12")
    a(f"s_load_dword s44, s[{P_SK}:{P_SK+1}], s62")
    a("buffer_store_dwordx4 v[244:247], v2, s[4:7], s69 offen sc1")
    a("buffer_store_dwordx4 v[244:247], v2, s[4:7], s69 offen offset:1024 sc1")
    a(f"buffer_store_dwordx4 v[244:247], v9, s[4:7], s{S_YO} offen sc1")
    a("s_mov_b64 exec, 0xf")
    tclr = a(f"buffer_store_dwordx4 v[244:247], v2, s[4:7], s{S_MO} offen sc1")
    a("s_mov_b64 exec, -1")
    srd(a, 52, P_SK, 0x200000)
    a("s_mul_i32 s65, s60, 8320")
    a("s_lshl_b32 s63, s61, 11")
    a("s_add_u32 s62, s62, s63")
    a("s_add_u32 s63, s63, s65")
    a(f"s_add_u32 m0, s63, {L_KC + 32}")
    a("v_add_u32 v36, 2, v2")
    a("buffer_load_dwordx4 v2, s[52:55], s62 offen lds")
    a("buffer_load_dwordx4 v2, s[52:55], s62 offen offset:1024 lds")
    a(f"s_add_u32 m0, s63, {L_KC + 32 + 4160}")
    a("s_lshl_b32 s61, s61, 8")
    a("buffer_load_dwordx4 v36, s[52:55], s62 offen lds")
    tkern = a("buffer_load_dwordx4 v36, s[52:55], s62 offen offset:1024 lds")
    a(f"s_lshl_b32 s{S_ROW}, s{S_XCD}, 5")
    a(f"s_add_u32 s{S_ROW}, s{S_ROW}, s{S_IDX}")
    a(f"s_and_b32 s72, s{S_XCD}, 3")
    a("s_mul_i32 s72, s72, 28")
    a(f"s_add_u32 s72, s72, s{S_IDX}")
    a(f"s_lshr_b32 s73, s{S_XCD}, 2")
    a("s_lshl_b32 s73, s73, 3")
    a(f"s_and_b32 s{S_RB}, s72, 7")
    a(f"s_lshl_b32 s26, s{S_RB}, 12")
    a(f"s_add_u32 s{S_RB}, s{S_RB}, s73")
    a("s_lshr_b32 s66, s72, 3")
    a(f"s_lshl2_add_u32 s{S_CT}, s66, s3")
    a(f"s_cmp_ge_u32 s{S_IDX}, 28")
    a(f"s_cselect_b32 s{S_SPARE}, {OOB}, 0")
    a("s_cmp_ge_u32 s3, 2")
    a(f"s_cselect_b32 s48, s{P_WU}, s{P_WG}")
    a(f"s_cselect_b32 s49, s{P_WU+1}, s{P_WG+1}")
    a(f"s_mov_b32 s50, {512*3584}")
    a("s_mov_b32 s51, 0x20000")
    a(f"s_lshl2_add_u32 s72, s{S_ROW}, s3")
    a("s_lshl_b32 s68, s72, 10")
    a("s_and_b32 s73, s3, 1")
    a(f"s_mul_i32 s73, s73, {128*3584}")
    a("s_lshl_b32 s72, s66, 8")
    a("s_add_u32 s73, s73, s72")
    a(f"s_add_u32 s73, s73, s{S_SPARE}")
    a(f"s_lshl_b32 s{S_WM}, s3, 15")
    a("v_bfe_u32 v37, v1, 1, 3")
    a("v_xor_b32 v38, v37, v6")
    a(f"v_lshl_add_u32 v38, v38, 1, v{A_L1}")
    a("v_mul_u32_u24 v39, 3584, v6")
    a("v_add_u32 v39, s73, v39")
    a(f"v_lshl_add_u32 v{VW}, v38, 4, v39")
    a(f"v_add_u32 v{VW+1}, {14336-1024}, v{VW}")
    a("v_xor_b32 v38, 8, v38")
    a(f"v_lshl_add_u32 v{VW+2}, v38, 4, v39")
    a(f"v_add_u32 v{VW+2}, {2*(14336-1024)}, v{VW+2}")
    a(f"v_add_u32 v{VW+3}, {14336-1024}, v{VW+2}")
    w1q = w1_groups()
    def w4():
        for _ in range(4):
            for o in w1q.pop(0): a(o)
    def xt_ops(nrows, row0, vt, vt2):
        r = Rec()
        r(f"v_bfe_u32 v{vt}, v1, 3, {nrows.bit_length()-1}")
        r(f"v_mul_u32_u24 v{vt}, 3584, v{vt}")
        r(f"v_and_b32 v{vt2}, 7, v1")
        r(f"v_lshl_add_u32 v{vt}, v{vt2}, 7, v{vt}")
        r("s_and_b32 s73, s3, 1")
        r(f"s_lshl1_add_u32 s72, s{S_IDX}, s73")
        r(f"s_mul_i32 s72, s72, {nrows*3584}")
        r(f"s_and_b32 s73, s{S_XCD}, 3")
        r("s_mul_i32 s73, s73, 28")
        r("s_lshr_b32 s73, s73, 3")
        r("s_lshl_b32 s73, s73, 8")
        r("s_add_u32 s72, s72, s73")
        if row0: r(f"s_add_u32 s72, s72, {row0*3584}")
        r(f"buffer_load_dword v237, v{vt}, s[48:51], s72 offen")
        return r.l
    def xt(nrows, row0):
        for o in xt_ops(nrows, row0, 158, 159): a(o)
    def mod_blk(i):
        a(f"s_add_u32 s72, s{S_IDX}, {i}")
        a("s_and_b32 s72, s72, 3")
        a("s_lshl2_add_u32 s72, s3, s72")
        a("s_lshl_b32 s73, s72, 6")
        a(f"buffer_load_ushort v{160+i}, v{A_C}, s[12:15], s73 offen")
        a(f"s_mul_i32 s72, s72, {32*6144}")
        T["mod"] = a(f"buffer_load_dwordx4 {Q4(164+4*i)}, v{A_WM}, s[8:11], s72 offen")
    def ld_mod():
        srd(a, 8, P_WM, 512 * 6144)
        srd(a, 12, P_C, 1024)
        a(f"v_lshrrev_b32 v{A_C}, 1, v1")
        a(f"v_mul_u32_u24 v{A_WM}, 6144, v{A_C}")
        a(f"v_lshl_add_u32 v{A_WM}, v{A_L1}, 4, v{A_WM}")
        a("s_lshl_b32 s73, s67, 5")
        a("s_add_u32 s73, s73, s74")
        a(f"v_add_u32 v{A_WM}, s73, v{A_WM}")
        a(f"v_lshlrev_b32 v{A_C}, 1, v{A_C}")
        mod_blk(0)
    def ld_mod2():
        for i in range(1, 4): mod_blk(i)
    def ld_touch():
        a("s_and_b32 s73, s3, 1")
        a("s_lshl1_add_u32 s72, s2, s73")
        a("s_mul_i32 s72, s72, 3584")
        a("v_min_u32 v237, 27, v1")
        a("v_lshlrev_b32 v237, 7, v237")
        a("buffer_load_dword v237, v237, s[48:51], s72 offen")
    def ld_touchd():
        srd(a, 52, P_WD, 1792 * 1024)
        a(f"s_lshl2_add_u32 s72, s{S_XCD}, s{S_IDX}")
        a("s_sub_u32 s72, s72, 28")
        a("s_and_b32 s72, s72, 31")
        a("s_lshl2_add_u32 s72, s72, s3")
        a("s_mul_i32 s72, s72, 14336")
        a(f"s_xor_b32 s73, s{S_SPARE}, {OOB}")
        a("s_add_u32 s72, s72, s73")
        a("v_lshlrev_b32 v238, 7, v1")
        a("buffer_load_dword v239, v238, s[52:55], s72 offen")
        a("s_add_u32 s72, s72, 6144")
        a("buffer_load_dword v239, v238, s[52:55], s72 offen")
    def ld_q():
        srd(a, 52, P_Q, 0x200000)
        a("s_add_u32 s73, s68, 0x100000")
        a("buffer_load_dwordx4 v[180:183], v2, s[52:55], s68 offen")
        T["q"] = a("buffer_load_dwordx4 v[184:187], v2, s[52:55], s73 offen")
    def clr_ops(which):
        l = []
        if "a" in which: l += [("CLR", f"buffer_store_dwordx4 v[244:247], v9, s[4:7], s{S_YO} offen sc1")]
        if "b" in which: l += [f"s_add_u32 s72, s{S_YO}, {64*16384}", ("CLR", "buffer_store_dwordx4 v[244:247], v9, s[4:7], s72 offen sc1")]
        if "h" in which: l += [f"s_add_u32 s72, s68, {WS_H2}", ("CLR", "buffer_store_dwordx4 v[244:247], v2, s[4:7], s72 offen sc1")]
        if "i" in which: l += [f"s_add_u32 s72, s68, {WS_H2 + 0x100000}", ("CLR", "buffer_store_dwordx4 v[244:247], v2, s[4:7], s72 offen sc1")]
        return l
    def clr():
        for o in clr_ops("bhi"): a(o)
    LD = dict(w=w4, x=lambda: xt(8, 0), y=lambda: xt(4, 0), z=lambda: xt(4, 256), m=ld_mod, n=ld_mod2, q=ld_q, t=ld_touch, d=ld_touchd, c=clr)
    PRE, MID, POST, AFT, LATE = OPT["ord"].split("/")
    assert sorted(set(PRE + MID + POST + AFT + LATE) - set("tdwxyz")) == sorted("mnq" + ("" if OPT["cconv"] else "c"))
    for c in PRE: LD[c]()
    a("v_lshrrev_b32 v4, 3, v1")
    a("v_and_b32 v41, 7, v1")
    a("s_mul_i32 s72, s60, 4608")
    a("s_lshl_b32 s73, s61, 3")
    a("s_add_u32 s72, s72, s73")
    a(f"s_add_u32 s72, s72, {L_UU}")
    a(f"v_sub_u32 v{A_SW}, 3, v6")
    a(f"v_xor_b32 v{A_SW}, v{A_SW}, v41")
    a("v_lshlrev_b32 v38, 7, v5")
    a(f"v_lshl_add_u32 v{A_SW}, v{A_SW}, 4, v38")
    a(f"v_add_u32 v{A_SW}, s72, v{A_SW}")
    a(f"v_xor_b32 v{A_SW2}, 64, v{A_SW}")
    a(f"v_xor_b32 v{A_SR}, v1, v4")
    a(f"v_lshlrev_b32 v{A_SR}, 4, v{A_SR}")
    a(f"v_add_u32 v{A_SR}, s72, v{A_SR}")
    a(f"v_xor_b32 v{A_A}, 1, v{A_L1}")
    a(f"v_mul_u32_u24 v{A_A}, 4156, v{A_A}")
    a(f"v_lshl_add_u32 v{A_A}, v37, 2, v{A_A}")
    a(f"v_lshl_add_u32 v{A_A}, v6, 4, v{A_A}")
    a("s_add_u32 s72, s65, s61")
    a(f"s_add_u32 s72, s72, {L_KC + 4}")
    a(f"v_add_u32 v{A_A}, s72, v{A_A}")
    for i in range(1, 4): a(f"v_add_u32 v{A_A+i}, {1024*i}, v{A_A}")
    a(f"v_lshlrev_b32 v{A_KP}, 15, v4")
    a(f"v_lshl_add_u32 v{A_KP}, v41, 4, v{A_KP}")
    a(f"s_lshl_b32 s{S_KP}, s3, 19")
    a("s_lshl_b32 s72, s2, 7")
    a(f"s_add_u32 s{S_KP}, s{S_KP}, s72")
    a(f"s_add_u32 s{S_KP+1}, s{S_KP}, {8*32768}")
    a(f"v_bfe_u32 v{A_KW}, v1, 2, 1")
    a(f"v_mul_u32_u24 v{A_KW}, 4608, v{A_KW}")
    a(f"v_lshl_add_u32 v{A_KW}, v40, 4, v{A_KW}")
    a("v_lshlrev_b32 v38, 6, v4")
    a(f"v_sub_u32 v{A_KW}, v{A_KW}, v38")
    a("s_lshl_b32 s72, s3, 10")
    a(f"s_sub_u32 s73, {L_UU + 55*64}, s72")
    a(f"v_add_u32 v{A_KW}, s73, v{A_KW}")
    a(f"v_add_u32 v{A_RR}, s72, v2")
    a(f"s_add_u32 s72, s72, {L_EX}")
    a(f"v_xor_b32 v{A_XR}, v1, v4")
    a(f"v_lshlrev_b32 v{A_XR}, 4, v{A_XR}")
    a(f"v_add_u32 v{A_XR}, s72, v{A_XR}")
    a(f"v_lshlrev_b32 v{A_B}, 5, v5")
    a("v_lshlrev_b32 v38, 4, v6")
    a(f"v_sub_u32 v{A_B}, v38, v{A_B}")
    a("s_mul_i32 s72, s60, 4608")
    a("s_add_u32 s72, s72, s61")
    a(f"s_add_u32 s72, s72, {L_UU + 480}")
    a(f"v_add_u32 v{A_B}, s72, v{A_B}")
    a(f"v_lshl_add_u32 v{A_XW}, v5, 2, v6")
    a(f"v_lshrrev_b32 v38, 3, v{A_XW}")
    a(f"v_xor_b32 v{A_XW}, v{A_XW}, v38")
    a(f"v_lshlrev_b32 v{A_XW}, 4, v{A_XW}")
    a("s_lshl_b32 s72, s3, 12")
    a(f"s_add_u32 s72, s72, {L_EX}")
    a(f"v_add_u32 v{A_XW}, s72, v{A_XW}")
    a("s_lshl_b32 s72, s3, 9")
    a(f"s_sub_u32 s72, {L_UU + 4088 - 2048}, s72")
    a(f"v_lshlrev_b32 v{A_KE}, 3, v1")
    a(f"v_sub_u32 v{A_KE}, s72, v{A_KE}")
    w1_tr_setup(a, A_TR)
    a(f"v_lshlrev_b32 v{A_MW}, 3, v6")
    a(f"v_lshl_add_u32 v{A_MW}, v{A_L1}, 5, v{A_MW}")
    a("s_lshl_b32 s72, s3, 6")
    a(f"s_add_u32 s72, s72, {L_MP}")
    a(f"v_add_u32 v{A_MW}, s72, v{A_MW}")
    a(f"v_lshlrev_b32 v{A_MS}, 2, v5")
    a(f"v_add_u32 v{A_MR}, {L_MP}, v{A_MS}")
    a("v_min_u32 v38, 1, v6")
    a(f"v_lshl_add_u32 v{A_MS}, v38, 26, v{A_MS}")
    a(f"v_lshlrev_b32 v{A_FL}, {OPT['fs']}, v0")
    a(f"v_lshlrev_b32 v{A_ML}, 5, v1")
    a(f"v_lshlrev_b32 v{A_YL}, 6, v0")
    a(f"v_lshlrev_b32 v{A_RW}, 2, v0")
    a(f"s_lshr_b32 s{S_YL}, s{S_ROW}, 2")
    a(f"s_lshl_b32 s{S_YL}, s{S_YL}, 14")
    a(f"s_and_b32 s72, s{S_ROW}, 3")
    a("s_lshl_b32 s72, s72, 4")
    a(f"s_add_u32 s{S_YL}, s{S_YL}, s72")
    a(f"s_add_u32 s{S_YL}, s{S_YL}, {WS_Y}")
    for i in range(4): a(f"v_mov_b32 v{44+i}, 0")
    a("v_lshrrev_b32 v38, 5, v1")
    a("v_and_b32 v39, 31, v1")
    a("v_mul_u32_u24 v38, 4608, v38")
    a("v_lshl_add_u32 v38, v39, 4, v38")
    a(f"v_add_u32 v38, {L_UU + 4096}, v38")
    a("ds_write_b128 v38, v[44:47]")
    a("v_bfe_u32 v38, v1, 1, 1")
    a("v_mul_u32_u24 v38, 4160, v38")
    a(f"v_lshl_add_u32 v38, v{A_L1}, 4, v38")
    a(f"s_add_u32 s72, s65, {L_KC}")
    a("v_add_u32 v38, s72, v38")
    a("v_cmp_eq_u32 vcc, 3, v40")
    a("s_waitcnt lgkmcnt(0)")
    a("s_lshl_b32 s44, s44, 16")
    a("v_mov_b32 v39, s44")
    a("v_cndmask_b32 v47, v47, v39, vcc")
    a("s_mov_b64 exec, 0xf")
    a("ds_write_b128 v38, v[44:47]")
    a("s_mov_b64 exec, -1")
    a(f"s_mul_i32 s{S_TAG}, s{S_TAG}, 0x9e3779b1")
    a(f"s_add_u32 s{S_TAG}, s{S_TAG}, 0x7f4a7c15")
    a(f"v_mov_b32 v{A_TG}, s{S_TAG}")
    a(f"s_lshl_b32 s44, s{S_D}, 16")
    a(f"s_and_b32 s45, s{S_D}, s{S_HI}")
    stamp(a, 2)
    a.wait(tclr)
    a("s_barrier")
    stamp(a, 3)
    a(f"buffer_store_dword v{A_TG}, v{A_FS}, s[4:7], s70 offen sc1")
    for c in MID: LD[c]()
    for i in range(11):
        a(f"v_lshlrev_b32 v{50+2*i}, 16, v{10+i}")
        a(f"v_and_b32 v{51+2*i}, s{S_HI}, v{10+i}")
    for j in range(4):
        for c in range(2):
            src = 32 + 2 * c + (j >> 1)
            if j & 1: a(f"v_and_b32 v{88+2*j+c}, s{S_HI}, v{src}")
            else: a(f"v_lshlrev_b32 v{88+2*j+c}, 16, v{src}")
    for j in (3, 2, 1, 0):
        for i in range(8):
            if j == 3: a(f"v_pk_mul_f32 {P2(96+2*i)}, {P2(50+2*(i+3-j))}, {P2(88+2*j)}")
            else: a(f"v_pk_fma_f32 {P2(96+2*i)}, {P2(50+2*(i+3-j))}, {P2(88+2*j)}, {P2(96+2*i)}")
    for i in range(8):
        a(f"v_lshlrev_b32 v{72+2*i}, 16, v{21+i}")
        a(f"v_and_b32 v{73+2*i}, s{S_HI}, v{21+i}")
    for i in range(8):
        a(f"v_pk_mul_f32 {P2(96+2*i)}, {P2(96+2*i)}, {P2(72+2*i)}")
    for c in range(2):
        for d in range(4):
            a(f"v_cvt_pk_bf16_f32 v{112+4*c+d}, v{96+2*(7-2*d)+c}, v{96+2*(6-2*d)+c}")
        san(a, range(112 + 4 * c, 116 + 4 * c))
        a(f"ds_write_b128 v{A_SW2 if c else A_SW}, {Q4(112+4*c)}")
    r0 = a(f"ds_read_b128 v[112:115], v{A_SR}")
    r1 = a(f"ds_read_b128 v[116:119], v{A_SR} offset:1024")
    a.wait(r0)
    a("buffer_store_dwordx4 v[112:115], v2, s[4:7], s69 offen sc1")
    a.wait(r1)
    a("buffer_store_dwordx4 v[116:119], v2, s[4:7], s69 offen offset:1024 sc1")
    stamp(a, 4)
    for c in POST: LD[c]()
    a.wait(tkern)
    a("s_barrier")
    stamp(a, "k0")
    A = lambda rr, q: 128 + (rr * 8 + q) * 4
    n0 = OPT["n0"]
    ld_f0 = flag_load(WS_F0, 16)
    for rr in range(4):
        for q in range(8):
            if rr * 8 + q == OPT["f0at"]:
                for o in ld_f0: tf = a(o)
            if rr * 8 + q == OPT["aftat"]:
                for c in AFT: LD[c]()
            o = (64 * rr + 512 * (q & 1)) // 4
            a(f"ds_read2_b32 a[{A(rr,q)}:{A(rr,q)+1}], v{A_A + (q >> 1)} offset0:{o} offset1:{o+1}")
            a(f"ds_read2_b32 a[{A(rr,q)+2}:{A(rr,q)+3}], v{A_A + (q >> 1)} offset0:{o+2} offset1:{o+3}")
            if (q & 1) and n0 > 0:
                for o in w1q.pop(0): a(o)
                n0 -= 1
    stamp(a, "af")
    ld_kv = [f"buffer_load_dwordx4 v[16:19], v{A_KP}, s[4:7], s{S_KP} offen sc1", f"buffer_load_dwordx4 v[20:23], v{A_KP}, s[4:7], s{S_KP+1} offen sc1"]
    def poll():
        stamp(a, 5)
        a.wait(tf)
        for o in flag_chk(16): a(o)
        k.retry(ld_f0, flag_chk(16))
        for o in ld_kv: T["KV"] = a(o)
        stamp(a, 6)
        for c in LATE: LD[c]()
        for _ in range(OPT["n1"]):
            for o in w1q.pop(0): a(o)
    PR = (212, 248)
    def ln1():
        a.wait(T["q"])
        a("s_mov_b32 s67, 0x3f803f80")
        for i in range(4): a(f"v_mov_b32 v{188+i}, 0")
        for i in range(4):
            for h in range(2):
                a(f"v_dot2c_f32_bf16 v{188+2*h}, s67, v{180+4*h+i}")
                a(f"v_dot2c_f32_bf16 v{189+2*h}, v{180+4*h+i}, v{180+4*h+i}")
        for h in range(2):
            for i in range(4):
                a(f"v_lshlrev_b32 v{220+8*h+2*i}, 16, v{180+4*h+i}")
                a(f"v_and_b32 v{221+8*h+2*i}, s{S_HI}, v{180+4*h+i}")
        for dpp in WAVE_RED:
            for i in range(4): a(f"v_add_f32_dpp v{188+i}, v{188+i}, v{188+i} {dpp} bank_mask:0xf")
        ln_finish(a, [(188, 189, 192), (190, 191, 193)])
        for h in range(2):
            a(f"v_readlane_b32 s{36+2*h}, v{189+2*h}, 63")
            a(f"v_readlane_b32 s{37+2*h}, v{188+2*h}, 63")
        for h in range(2): a(f"v_mov_b32 v{192+2*h}, s{37+2*h}")
        for h in range(2):
            for i in range(0, 8, 2): a(f"v_pk_fma_f32 {P2(PR[h]+i)}, {P2(220+8*h+i)}, s[{36+2*h}:{37+2*h}], {P2(192+2*h)} op_sel_hi:[1,0,0]")
    if OPT["ln1at"] == 0: ln1()
    if OPT["pollat"] == -1: poll()
    if OPT["ln1at"] == 1: ln1()
    a.wait(T["mod"])
    stamp(a, "m0")
    for i in range(4):
        a(f"v_lshlrev_b32 v{160+i}, 16, v{160+i}")
        a(f"v_mul_f32 v{32+i}, 0xbfb8aa3b, v{160+i}")
    for i in range(4): a(f"v_exp_f32 v{32+i}, v{32+i}")
    for i in range(4): a(f"v_add_f32 v{32+i}, 1.0, v{32+i}")
    for i in range(4): a(f"v_rcp_f32 v{32+i}, v{32+i}")
    for i in range(4): a(f"v_mul_f32 v{160+i}, v{160+i}, v{32+i}")
    for i in range(4): a(f"v_cvt_pk_bf16_f32 v{32+i}, v{160+i}, v{160+i}")
    for i in range(4): a(f"v_lshlrev_b32 v{64+2*i}, 16, v{32+i}")
    def modacc(i):
        for d in range(4):
            a(f"v_lshlrev_b32 v{72+2*d}, 16, v{164+4*i+d}")
            a(f"v_and_b32 v{73+2*d}, s{S_HI}, v{164+4*i+d}")
        for d in range(4):
            if i == 0: a(f"v_pk_mul_f32 {P2(80+2*d)}, {P2(72+2*d)}, {P2(64+2*i)} op_sel_hi:[1,0]")
            else: a(f"v_pk_fma_f32 {P2(80+2*d)}, {P2(72+2*d)}, {P2(64+2*i)}, {P2(80+2*d)} op_sel_hi:[1,0,1]")
    for i in range(4):
        if i == OPT["pollat"]: poll()
        modacc(i)
    if OPT["pollat"] == 4: poll()
    for p in range(4): a(f"v_permlane32_swap_b32 v{80+p}, v{84+p}")
    for p in range(4): a(f"v_add_f32 v{80+p}, v{80+p}, v{84+p}")
    for p in range(2): a(f"v_permlane16_swap_b32 v{80+p}, v{82+p}")
    for p in range(2): a(f"v_add_f32 v{80+p}, v{80+p}, v{82+p}")
    for rr in (8, 4, 2):
        for p in range(2):
            a(f"v_add_f32_dpp v{80+p}, v{80+p}, v{80+p} row_ror:{rr} row_mask:0xf bank_mask:0xf")
    a(f"ds_write_b64 v{A_MW}, v[80:81]")
    if OPT["ln1at"] == 2: ln1()
    stamp(a, "tr")
    a.wait(T["KV"])
    stamp(a, "kv")
    ck = check_ops(range(16, 24), 29)
    for o in ck: a(o)
    k.retry(ld_kv, ck)
    a(f"ds_write_b128 v{A_KW}, v[16:19] offset:512")
    a(f"ds_write_b128 v{A_KW}, v[20:23]")
    a("s_waitcnt lgkmcnt(0)")
    a("s_barrier")
    stamp(a, 7)
    B = lambda rr, d: 64 + (rr & 1) * 32 + d * 4
    tb = {}
    def loadB(key, rr, d):
        tb[key, rr, d] = a.emit(f"ds_read_b128 {Q4(B(rr,d))}, v{A_B} offset:{3584 - 512*d + 64*rr}")
    for d in range(4): loadB(0, 0, d)
    G = Gaps(a, 4)
    G.pace[1] = OPT["p1"]
    def kd_ops(h):
        ops = []
        for c in range(2):
            for i in range(4):
                e = 3 - i
                kr = 10 + 4 * h + 2 * c + (e >> 1)
                ops.append(f"v_and_b32 v{160+8*h+4*c+i}, s{S_HI}, v{kr}" if e & 1 else f"v_lshlrev_b32 v{160+8*h+4*c+i}, 16, v{kr}")
        return ops
    rec = Rec()
    rec(f"ds_read2_b32 v[24:25], v{A_MR} offset0:0 offset1:16")
    rec(("MP", f"ds_read2_b32 v[26:27], v{A_MR} offset0:32 offset1:48"))
    for h in range(2):
        for c in range(2):
            rec(("KVE", f"ds_read_b64 {P2(10+4*h+2*c)}, v{A_KE} offset:{c*4608 + (1-h)*2048}"))
    rec(lambda: a.wait(T["MP"]))
    rec("v_add_f32 v24, v24, v25")
    rec("v_add_f32 v26, v26, v27")
    rec("v_add_f32 v24, v24, v26")
    rec("v_cvt_pk_bf16_f32 v24, v24, v24")
    rec("v_lshlrev_b32 v24, 16, v24")
    rec("v_add_f32 v24, s43, v24")
    rec("v_cvt_pk_bf16_f32 v24, v24, v24")
    rec("v_lshlrev_b32 v24, 16, v24")
    rec(f"buffer_store_dword v24, v{A_MS}, s[4:7], s{S_MO} offen sc1")
    rec(f"s_min_u32 s60, s{S_FO}, 1")
    rec("s_lshl_b32 s60, s60, 30")
    rec(f"s_add_u32 s60, s60, {WS_EP}")
    rec(f"buffer_store_dword v{A_TG}, v{A_FS}, s[4:7], s60 offen sc1")
    rec(lambda: a.wait(T["KVE"]))
    for o in kd_ops(0) + kd_ops(1): rec(o)
    G.add(0, rec.l)
    rec = Rec()
    if OPT["t2"]:
        for o in xt_ops(4, 256, 18, 19): rec(o)
    if OPT["dt"]:
        srd(rec, 52, P_WD, 1792 * 1024)
        rec("s_lshl2_add_u32 s72, s2, s3")
        rec("s_mul_i32 s72, s72, 1792")
        rec("v_min_u32 v19, 13, v1")
        rec("v_lshlrev_b32 v19, 7, v19")
        rec("buffer_load_dword v238, v19, s[52:55], s72 offen")
    cl = clr_ops("bhi") if OPT["cconv"] else []
    G.add(1, sum(w1q, []) + [lambda: T.__setitem__("W1done", 1)] + rec.l)
    ACC = lambda nt: 32 + nt * 4
    ml = []
    for key in range(2):
        nd = 4 if key == 0 else 8
        lo = 4 * key
        for rr in range(4):
            if rr < 3: ml += [(key, rr, d, nt) for d in range(nd) for nt in range(max(lo, d), lo + 4)]
            else: ml += [(key, rr, d, nt) for nt in range(lo, lo + 4) for d in range(nt + 1)]
    pend = []
    seen = set()
    waited = set([(0, 0, 0)])
    hooks = {}
    def run_m(i):
        key, rr, d, nt = ml[i]
        for f in hooks.get(i, []): f()
        if (key, rr, d) not in seen:
            seen.add((key, rr, d))
            if key == 0: pend.extend([(0, rr + 1, d)] if rr < 3 else [(1, 0, d), (1, 0, d + 4)])
            elif rr < 3: pend.append((1, rr + 1, d))
        c = "0" if (rr == 0 and d == 0) else Q4(ACC(nt))
        a.emit(f"v_mfma_f32_16x16x32_bf16 {Q4(ACC(nt))}, {Q4(A(rr,nt-d),'a')}, {Q4(B(rr,d))}, {c}")
        fs = None
        if i + 1 < len(ml):
            nk = ml[i + 1][:3]
            if nk not in waited:
                waited.add(nk)
                while nk not in tb: loadB(*pend.pop(0))
                fs = lambda: a.wait(tb[nk])
        fm = (lambda: loadB(*pend.pop(0))) if pend else None
        G.gap(fs, fm)
    xw = lambda nt: ("XW", f"ds_write_b128 v{A_XW}, {Q4(ACC(nt))} offset:{(nt & 3)*1024}")
    last = {nt: max(i for i, m in enumerate(ml) if m[3] == nt) for nt in range(8)}
    def yfinal(h, pk):
        ops = []
        for c in range(2):
            y = 192 + c * 8; kd = 160 + 8 * h + 4 * c
            if pk:
                for i in (0, 2): ops.append(f"v_pk_add_f32 {P2(y+i)}, {P2(y+i)}, {P2(y+4+i)}")
                for i in (0, 2): ops.append(f"v_pk_fma_f32 {P2(y+i)}, {P2(kd+i)}, s[44:45], {P2(y+i)} op_sel:[0,{c},0] op_sel_hi:[1,{c},1]")
            else:
                for i in range(4): ops.append(f"v_add_f32 v{y+i}, v{y+i}, v{y+4+i}")
                for i in range(4): ops.append(f"v_fmac_f32 v{y+i}, s{44+c}, v{kd+i}")
        if h: ops.append(f"s_add_u32 s{S_YO}, s{S_YO}, {64*16384}")
        for i in range(4): ops.append(f"v_cvt_pk_bf16_f32 v{208+i}, v{192+i}, v{200+i}")
        for i in range(4): ops.append(f"v_min_u32 v{208+i}, s{S_SENT}, v{208+i}")
        ops.append(f"buffer_store_dwordx4 v[208:211], v9, s[4:7], s{S_YO} offen sc1")
        return ops
    yreads = [("Y", f"ds_read_b128 {Q4(192 + 4*w)}, v{A_XR} offset:{w*4096}") for w in range(4)]
    MR = dict(sa=(0, 64), ca=(1, 72), ga=(2, 24), sb=(3, 88), cb=(4, 80))
    ld_m = []
    for nm, (vec, r) in MR.items():
        ld_m.append(f"s_mov_b32 s62, {WS_MOD + vec*2048}")
        ld_m.append(f"buffer_load_dwordx4 {Q4(r)}, v{A_ML}, s[4:7], s62 offen sc1")
        ld_m.append(f"buffer_load_dwordx4 {Q4(r+4)}, v{A_ML}, s[4:7], s62 offen offset:16 sc1")
    ckm = check_ops(list(range(64, 96)) + list(range(24, 32)), 18)
    def ld_y(h, sr=62):
        return [f"s_add_u32 s{sr}, s{S_YL}, {h*64*16384}", f"buffer_load_dwordx4 v[20:23], v{A_YL}, s[4:7], s{sr} offen sc1"]
    cky = check_ops(range(20, 24), 18)
    rec = Rec()
    rec(lambda: a.wait(T["XW"], T["CLR"]))
    rec(lambda: stamp(a, "xb0"))
    rec("s_barrier")
    rec(lambda: stamp(a, "xb1"))
    for o in yreads: rec(o)
    for o in flag_store2(WS_F1): rec(o)
    rec(lambda: a.wait(T["Y"]))
    for o in yfinal(0, False): rec(o)
    rec(lambda: stamp(a, "za"))
    rec(lambda: T.__setitem__("ZAdone", 1))
    xa_rest = rec.l
    def hook(i, f): hooks.setdefault(i, []).append(f)
    for nt in range(4): hook(last[nt] + 3, lambda nt=nt: G.st[0].insert(0, xw(nt)) if nt < 3 else G.add(0, [xw(nt)] + xa_rest))
    b4ops = [lambda: a.wait(T["W1"]), lambda: stamp(a, "zb"), "s_barrier", lambda: T.__setitem__("B4done", 1)] + w1_tr(0, A_TR)
    b4 = [None]
    xdone = set()
    i3 = min(i for i, m in enumerate(ml) if m[:2] == (1, 3))
    hook(i3 + 1, lambda: G.add(0, named("M", plain(ld_m))))
    ld_f1 = flag_load(WS_F1, 236)
    hook(i3 + OPT["yat"], lambda: G.add(0, ld_f1 + named("YL", ld_y(0))))
    a.wait(tb[0, 0, 0])
    for i in range(len(ml)):
        if i == 40: stamp(a, 8)
        if b4[0] is None and "W1done" in T and "ZAdone" in T: b4[0] = i + OPT["b4lag"]
        if i == b4[0]: G.add(3, b4ops); print("b4 at mfma", i, file=sys.stderr)
        for nt in range(4, 7):
            if "B4done" in T and nt not in xdone and i >= last[nt] + 3:
                xdone.add(nt); G.st[0].insert(0, xw(nt))
        run_m(i)
    print("conv leftovers", [len(x) for x in G.st], file=sys.stderr)
    stamp(a, "cm")
    G.drain([0, 1, 2])
    if b4[0] is None or b4[0] >= len(ml): G.add(3, b4ops)
    while "B4done" not in T: a(G.st[3].pop(0))
    stamp(a, "c1")
    for nt in range(4, 8):
        if nt not in xdone: a(xw(nt))
    G.drain([3])
    a(f"v_add_u32 v18, {L_RSA}, v{A_RW}")
    a(f"v_add_u32 v19, {L_RSA}, v{A_RR}")
    for j in range(4): a(f"v_add_u32 v{VW+j}, {256*3584}, v{VW+j}")
    stamp(a, "c2")
    ckm = check_ops(list(range(64, 96)) + list(range(24, 32)), 96)
    cky = check_ops(range(20, 24), 96)
    a.wait(T["M"])
    for o in ckm: a(o)
    k.retry(ld_m, ckm)
    for i in range(0, 8, 2): a(f"v_pk_mul_f32 {P2(64+i)}, {P2(64+i)}, {P2(24+i)}")
    for i in range(0, 8, 2): a(f"v_pk_mul_f32 {P2(72+i)}, {P2(72+i)}, {P2(24+i)}")
    a.wait(T["YL"])
    stamp(a, "y0")
    for o in cky: a(o)
    k.retry(ld_y(0), cky)
    a("ds_write2st64_b32 v18, v20, v21 offset0:0 offset1:4")
    a("ds_write2st64_b32 v18, v22, v23 offset0:8 offset1:12")
    for o in flag_chk(236): a(o)
    k.retry(ld_f1, flag_chk(236))
    for h in range(2):
        for i in range(0, 8, 2): a(f"v_pk_fma_f32 {P2(PR[h]+i)}, {P2(PR[h]+i)}, {P2(72+i)}, {P2(64+i)}")
    a("s_waitcnt lgkmcnt(0)")
    a("s_barrier")
    stamp(a, "c3")
    XR = (176, 188)
    def row_ops(h, b, pk):
        r = Rec()
        x, hh_, st = b + 4, b + 12, b + 16
        r(f"v_mov_b32 v{st}, 0")
        r(f"v_mov_b32 v{st+1}, 0")
        for i in range(4):
            r(f"v_lshlrev_b32 v{x+2*i}, 16, v{b+i}")
            r(f"v_and_b32 v{x+1+2*i}, s{S_HI}, v{b+i}")
        if pk:
            for i in range(4): r(f"v_pk_fma_f32 {P2(x+2*i)}, {P2(x+2*i)}, {P2(PR[h]+2*i)}, {P2(220+8*h+2*i)}")
        else:
            for i in range(8): r(f"v_fma_f32 v{x+i}, v{x+i}, v{PR[h]+i}, v{220+8*h+i}")
        for i in range(4): r(f"v_cvt_pk_bf16_f32 v{XR[h]+i}, v{x+2*i}, v{x+1+2*i}")
        for i in range(4):
            r(f"v_dot2c_f32_bf16 v{st}, s67, v{XR[h]+i}")
            r(f"v_dot2c_f32_bf16 v{st+1}, v{XR[h]+i}, v{XR[h]+i}")
        r(f"s_add_u32 s66, s68, {WS_H2 + h*0x100000}")
        for dpp in WAVE_RED:
            for i in range(2): r(f"v_add_f32_dpp v{st+i}, v{st+i}, v{st+i} {dpp} bank_mask:0xf")
        ln_finish(r, [(st, st + 1, st + 2)])
        r(f"v_readlane_b32 s72, v{st+1}, 63")
        r(f"v_readlane_b32 s73, v{st}, 63")
        r(f"v_mov_b32 v{st}, s73")
        if pk:
            for i in range(4): r(f"v_pk_fma_f32 {P2(x+2*i)}, {P2(x+2*i)}, s[72:73], {P2(st)} op_sel_hi:[1,0,0]")
            for i in range(4): r(f"v_pk_fma_f32 {P2(x+2*i)}, {P2(x+2*i)}, {P2(80+2*i)}, {P2(88+2*i)}")
        else:
            for i in range(8): r(f"v_fma_f32 v{x+i}, v{x+i}, s72, v{st}")
            for i in range(8): r(f"v_fma_f32 v{x+i}, v{x+i}, v{80+i}, v{88+i}")
        for i in range(4): r(f"v_cvt_pk_bf16_f32 v{hh_+i}, v{x+2*i}, v{x+1+2*i}")
        san(r, range(hh_, hh_ + 4))
        r(f"buffer_store_dwordx4 {Q4(hh_)}, v2, s[4:7], s66 offen sc1")
        return r.l
    t = a("ds_read_b128 v[32:35], v19")
    for o in yreads: ty = a(o)
    a.bg = w1_groups(); a.bg_every = OPT["p2"]; a.flush_bg(OPT["n2"])
    a.wait(t)
    for o in row_ops(0, 32, True): a(o)
    stamp(a, "h0")
    a.wait(ty)
    for o in yfinal(1, True): a(o)
    stamp(a, 9)
    a.bg_every = OPT["p2b"]
    S_ZS, S_ZM, S_PF = 70, 69, 61
    VZ = 108
    SL = lambda t: ((t + 2) % 4) * 16384
    def ld_z(t, sr=63):
        return [f"s_add_u32 m0, s{S_ZM}, {SL(t)}", f"s_add_u32 s{sr}, s{S_ZS}, {t*16*16384}"] + \
               [(f"Z{t}", f"buffer_load_dwordx4 v{VZ+i}, s[4:7], s{sr} offen offset:{i*1024} sc1 lds") for i in range(4)]
    a(f"s_lshl_b32 s{S_ZS}, s{S_RB}, 14")
    a(f"s_lshl_b32 s{S_ZM}, s3, 12")
    a(f"s_add_u32 s{S_ZS}, s{S_ZS}, s{S_ZM}")
    a(f"s_add_u32 s{S_ZS}, s{S_ZS}, {WS_H2}")
    a(f"s_add_u32 s{S_ZS}, s{S_ZS}, s{S_SPARE}")
    a(f"s_add_u32 s{S_ZM}, s{S_ZM}, {L_Z}")
    a("s_lshl_b32 s63, s3, 6")
    a(f"v_xor_b32 v{VZ}, s63, v2")
    for i in range(1, 4): a(f"v_xor_b32 v{VZ+i}, {16*i}, v{VZ}")
    S_DB, S_T2, S_HS, S_F2 = 16, 17, 24, 25
    a(f"s_and_b32 s{S_DB}, s{S_IDX}, 7")
    a(f"s_lshr_b32 s60, s{S_IDX}, 3")
    a(f"s_lshl_b32 s63, s{S_XCD}, 1")
    a("s_lshr_b32 s62, s60, 1")
    a("s_add_u32 s63, s63, s62")
    a(f"s_lshl_b32 s{S_F2}, s63, 13")
    a(f"s_mul_i32 s62, s3, {14*128}")
    a(f"s_add_u32 s{S_F2}, s{S_F2}, s62")
    a("s_and_b32 s60, s60, 1")
    a("s_lshl_b32 s60, s60, 4")
    a(f"s_add_u32 s{S_T2}, s60, s63")
    a(f"s_mul_i32 s{S_HS}, s{S_T2}, 56")
    a("s_mul_i32 s60, s3, 14")
    a(f"s_add_u32 s{S_HS}, s{S_HS}, s60")
    a(f"s_lshl_b32 s{S_HS}, s{S_HS}, 10")
    a(f"s_add_u32 s{S_HS}, s{S_HS}, {WS_HH}")
    a(f"s_mul_i32 s60, s{S_RB}, 56")
    a(f"s_add_u32 s60, s60, s{S_CT}")
    a("s_lshl_b32 s60, s60, 10")
    a(f"s_add_u32 s60, s60, s{S_SPARE}")
    a(f"s_add_u32 s{S_HO}, s60, {WS_HH}")
    a(f"s_lshl_b32 s{S_PF}, s{S_RB}, 13")
    a(f"s_lshl_b32 s60, s{S_CT}, 7")
    a(f"s_add_u32 s{S_PF}, s{S_PF}, s60")
    a(f"s_and_b32 s60, s{S_FO}, {OOB}")
    a(f"s_lshl_b32 s62, s{S_ROW}, 7")
    a(f"s_add_u32 s{S_FO}, s62, s60")
    ZA = 104
    a("v_xor_b32 v3, v6, v5")
    a("v_lshlrev_b32 v3, 4, v3")
    a("v_lshl_add_u32 v3, v5, 10, v3")
    a(f"v_add_u32 v{ZA}, {L_Z}, v3")
    for i in range(1, 4): a(f"v_xor_b32 v{ZA+i}, {64*i}, v{ZA}")
    a(f"v_add_u32 v3, s{S_ZM}, v2")
    a("s_barrier")
    print("W1b left:", len(a.bg), file=sys.stderr)
    a.flush_bg()
    stamp(a, "w2")
    for o in ld_z(0): a(o)
    srd(a, 48, P_WD, 1792 * 1024)
    a(f"s_mul_i32 s{S_WS}, s3, {448*1024}")
    a(f"s_lshl_b32 s60, s{S_DB}, 7")
    a(f"s_add_u32 s{S_WS}, s{S_WS}, s60")
    a(f"s_mul_i32 s{S_WM}, s3, 24576")
    VD, VT = 116, 124
    setup2 = Rec()
    setup2("v_bfe_u32 v120, v1, 1, 2")
    setup2("v_xor_b32 v120, v120, v6")
    setup2("v_and_b32 v121, 1, v1")
    setup2("v_lshl_add_u32 v120, v120, 1, v121")
    setup2("v_lshlrev_b32 v121, 10, v4")
    setup2(f"v_lshl_add_u32 v{VD}, v120, 4, v121")
    for j in range(1, 4): setup2(f"v_add_u32 v{VD+j}, {j*(8192-1024)}, v{VD}")
    setup2("v_lshrrev_b32 v120, 2, v1")
    setup2("v_lshlrev_b32 v120, 7, v120")
    setup2("v_and_b32 v121, 3, v1")
    setup2("v_lshl_add_u32 v120, v121, 3, v120")
    setup2(f"v_add_u32 v120, s{S_WM}, v120")
    setup2("v_bfe_u32 v121, v1, 3, 2")
    for dt in range(4):
        setup2(f"v_xor_b32 v122, {dt}, v121")
        setup2(f"v_lshl_add_u32 v{VT+dt}, v122, 5, v120")
    def wd_dma(u):
        l = [f"s_add_u32 m0, s{S_WM}, {(u % 6)*4096}"]
        for j in range(4): l.append((f"WD{u}", f"buffer_load_dwordx4 v{VD+j}, s[48:51], s{S_WS} offen offset:{j*1024} lds"))
        l.append(f"s_add_u32 s{S_WS}, s{S_WS}, 32768")
        return l
    WR = lambda u, dt: ("v", 128 + (u * 4 + dt) * 4) if u < 8 else ("a", 112 + ((u - 8) * 4 + dt) * 4)
    def wd_tr(u):
        l = []
        for dt in range(4):
            kk, r = WR(u, dt)
            for h in range(2):
                l.append((f"WT{u}", f"ds_read_b64_tr_b16 {kk}[{r+2*h}:{r+2*h+1}], v{VT+dt} offset:{(u % 6)*4096 + h*2048}"))
        return l
    H3R = [64, 68, 72, 76, 96, 100, 104, 108, 4, 12, 116, 120, 112, 124]
    HB = lambda p, s: ("v", H3R[s]) if p == 3 else ("a", (208 + 4 * s) % 256) if p == 2 else ("a", p * 56 + 4 * s)
    def ld_h(p, s, sr=63):
        o = []
        if s % 4 == 0: o.append(f"s_add_u32 s{sr}, s{S_HS}, {p*32*56*1024 + s*1024}")
        kk, r = HB(p, s)
        o.append((f"H{p}_{s}", f"buffer_load_dwordx4 {Q4(r, kk)}, v2, s[4:7], s{sr} offen offset:{(s%4)*1024} sc1"))
        return o
    def ld_f2(base, vd, va):
        return [f"v_min_u32 v{va}, 13, v1", f"v_lshlrev_b32 v{va}, 7, v{va}", f"s_add_u32 s62, s{S_F2}, {base}",
                f"buffer_load_dword v{vd}, v{va}, s[4:7], s62 offen sc1"]
    def ht_ops(p0, np_, va, vb):
        r = Rec()
        r(f"v_min_u32 v{va}, 13, v5")
        r(f"v_lshlrev_b32 v{va}, 7, v{va}")
        if np_ > 1:
            r(f"v_and_b32 v{vb}, {np_-1}, v6")
            r(f"v_mul_u32_u24 v{vb}, {32*56*1024}, v{vb}")
            r(f"v_add_u32 v{va}, v{va}, v{vb}")
        r(f"s_mul_i32 s62, s{S_DB}, {14*128}")
        r(f"s_add_u32 s62, s62, s{S_HS}")
        if p0: r(f"s_add_u32 s62, s62, {p0*32*56*1024}")
        r(f"buffer_load_dword v{vb}, v{va}, s[4:7], s62 offen sc1")
        return r.l
    chk1 = lambda vd: [f"v_cmp_ne_u32 vcc, s{S_TAG}, v{vd}"]
    def ld_fb(vd, va):
        return [f"v_bfe_u32 v{va}, v1, 2, 1", f"v_lshlrev_b32 v{va}, 7, v{va}", f"v_and_b32 v{vd}, 3, v1", f"v_add_lshl_u32 v{va}, v{va}, v{vd}, 7",
                f"s_lshl_b32 s62, s{S_T2}, 9", f"s_add_u32 s62, s62, {WS_FB}", f"buffer_load_dword v{vd}, v{va}, s[4:7], s62 offen sc1"]
    RB0 = 131072
    XV, GV, WV = 80, 88, 92
    rec = Rec()
    srd(rec, 8, P_OUT, 0x200000)
    rec("v_lshrrev_b32 v96, 4, v0")
    rec("v_lshlrev_b32 v11, 10, v96")
    rec("v_lshl_add_u32 v11, v5, 3, v11")
    rec("v_lshlrev_b32 v97, 4, v5")
    rec(f"s_lshl_b32 s72, s{S_T2}, 14")
    rec(f"s_lshl_b32 s73, s{S_DB}, 7")
    rec("s_add_u32 s71, s72, s73")
    rec(f"s_lshl_b32 s73, s{S_DB}, 8")
    rec(f"s_add_u32 s66, s73, {WS_MOD + 5*2048}")
    rec("v_xor_b32 v98, v6, v5")
    rec("v_lshlrev_b32 v98, 4, v98")
    rec("v_lshl_add_u32 v98, v5, 8, v98")
    rec("s_lshl_b32 s72, s3, 12")
    rec(f"s_add_u32 s72, s72, {RB0}")
    rec(f"v_add_u32 v{WV}, s72, v98")
    for dt in range(1, 4): rec(f"v_xor_b32 v{WV+dt}, {64*dt}, v{WV}")
    rec("v_xor_b32 v10, v5, v96")
    rec("v_lshlrev_b32 v10, 4, v10")
    rec("v_lshl_add_u32 v10, v96, 8, v10")
    rec(f"v_add_u32 v10, {RB0}, v10")
    setup3 = rec.l
    ld_g = [f"buffer_load_dwordx4 {Q4(GV)}, v97, s[4:7], s66 offen sc1"]
    ld_r = []
    for p in range(4):
        ld_r.append(f"s_add_u32 s62, s71, {WS_X1 + p*32*16384}")
        ld_r.append(f"buffer_load_dwordx2 {P2(XV+2*p)}, v11, s[4:7], s62 offen sc1")
    ckg = check_ops(range(GV, GV + 4), 14)
    res1 = setup3 + ld_fb(99, 98) + named("GB", ld_g)
    res2 = [lambda: a.wait(T["GB"])] + chk1(99) + [lambda: k.retry(ld_fb(99, 98), chk1(99))] + ld_r + ckg + [lambda: k.retry(ld_g, ckg)]
    xs_ops = [f"s_add_u32 s60, s68, {WS_X1}", f"buffer_store_dwordx4 {Q4(XR[0])}, v2, s[4:7], s60 offen sc1",
              "s_add_u32 s60, s60, 0x100000", f"buffer_store_dwordx4 {Q4(XR[1])}, v2, s[4:7], s60 offen sc1"]
    for o in setup2.l: a(o)
    L_RS2 = L_Z - 4096
    a(f"v_add_u32 v{A_RW}, {L_RS2}, v{A_RW}")
    a(f"v_add_u32 v{A_RR}, {L_RS2}, v{A_RR}")
    ld_yb = [f"s_add_u32 s62, s{S_YL}, {64*16384}", f"buffer_load_dwordx4 v[156:159], v{A_YL}, s[4:7], s62 offen sc1"]
    ckyb = check_ops(range(156, 160), 14)
    yb1 = [lambda: a.wait(T["YB"])] + ckyb + [lambda: k.retry(ld_yb, ckyb),
           f"ds_write2st64_b32 v{A_RW}, v156, v157 offset0:0 offset1:4", ("YW", f"ds_write2st64_b32 v{A_RW}, v158, v159 offset0:8 offset1:12"),
           lambda: a.wait(T["YW"])]
    yb2 = [("YR", f"ds_read_b128 v[156:159], v{A_RR}"), lambda: a.wait(T["YR"])]
    a.wait(T["W1"])
    stamp(a, "y1")
    a("s_barrier")
    a(f"s_cmp_lg_u32 s{S_SPARE}, 0")
    a("s_cbranch_scc1 L_spare")
    for o in w1_tr(1, A_TR): a(o)
    def verify_ops(t):
        rd = [("ZV", f"ds_read_b128 {Q4(64+4*i)}, v3 offset:{SL(t) + i*1024}") for i in range(4)]
        ck = check_ops(range(64, 80), 14)
        return [lambda: a.wait(T[f"Z{t}"])] + rd + [lambda: a.wait(T["ZV"])] + ck + [lambda: k.retry(ld_z(t, 62), ck, mid=rd)]
    stamp(a, 10)
    for o in verify_ops(0): a(o)
    a("s_barrier")
    stamp(a, 11)
    NB = 4
    BF = lambda n: 16 + (n % NB) * 4
    tok = {}
    def loadZ(n):
        t, s = divmod(n, 16)
        tok[n] = a.emit(f"ds_read_b128 {Q4(BF(n))}, v{ZA + (s & 3)} offset:{SL(t) + (s >> 2)*256}")
    for n in range(NB - 1): loadZ(n)
    for o in ld_z(1): a(o)
    GA = lambda t: 32 + (t & 1) * 16
    def epi_ops(t):
        acc = GA(t)
        ops = [f"v_mul_f32 v{acc+i}, v{acc+i}, v{acc+8+i}" for i in range(8)]
        ops += [f"v_cvt_pk_bf16_f32 v{112+i}, v{acc+2*i}, v{acc+2*i+1}" for i in range(4)]
        if t >= 6: ops += [f"v_min_u32 v{112+i}, s{S_SENT}, v{112+i}" for i in range(4)]
        ops.append((f"HS{t}", f"buffer_store_dwordx4 v[112:115], v2, s[4:7], s{S_HO} offen sc1"))
        ops.append(f"s_add_u32 s{S_HO}, s{S_HO}, {16*56*1024}")
        return ops
    G = Gaps(a, 4)
    G.pace[1] = OPT.get("p3", 4)
    a.wait(tok[0])
    for t in range(8):
        stamp(a, f"t{t}")
        if t >= 1: G.add(0, ["s_nop 0"] * 4 + epi_ops(t - 1))
        if t + 2 < 8 and t != 2: G.add(1, ld_z(t + 2))
        if t == 0:
            G.add(2, [f"s_add_u32 s60, s{S_HO}, {6*16*56*1024}", "buffer_store_dwordx4 v[244:247], v2, s[4:7], s60 offen sc1",
                      f"s_add_u32 s60, s60, {16*56*1024}", "buffer_store_dwordx4 v[244:247], v2, s[4:7], s60 offen sc1"])
        if t == 2: G.add(2, xs_ops)
        if 2 <= t <= 5:
            u = 2 * (t - 2)
            G.add(2, [lambda u=u: a.wait(T[f"WD{u+1}"])] + wd_tr(u) + wd_tr(u + 1))
        if t <= 6:
            u = 2 * t
            if u >= 6: G.add(1, [lambda u=u: a.wait(T[f"WT{u-5}"])])
            G.add(1, wd_dma(u) + wd_dma(u + 1))
            if t == 2: G.add(1, ld_z(4))
        for s in range(16):
            n = t * 16 + s
            if s == (9 if t == 3 else 7) and t + 1 < 8: G.add(0, verify_ops(t + 1))
            if s == 4 and t in (5, 7):
                G.add(3, [lambda t=t: a.wait(T[f"HS{t-2}"])] + flag_store(WS_F2A if t == 5 else WS_F2B, 8, 7, off=f"s{S_PF}"))
            if (t, s) == (0, 0): G.add(0, named("YB", ld_yb))
            if (t, s) == (0, 9): G.add(0, yb1)
            if (t, s) == (5, 13): G.add(0, res1)
            if (t, s) == (6, 5): G.add(0, res2)
            if t == 7 and s == 8: G.add(2, [lambda: a.wait(T["WD13"])])
            if t == 7 and 8 <= s <= 13: G.add(2, wd_tr(s))
            if (t, s) == OPT["f2ld"]: G.add(0, named("F2", ld_f2(WS_F2A, 15, 9)))
            if (t, s) == OPT["f2ck"]:
                G.add(0, [lambda: a.wait(T["F2"])] + chk1(15) + [lambda: (k.retry(ld_f2(WS_F2A, 15, 9), chk1(15)), T.__setitem__("F2Adone", 1))] + (ht_ops(0, 2, 96, 97) if OPT["ht"] else []))
            if (t, s) == OPT["f2bld"]: G.add(0, named("F2", ld_f2(WS_F2B, 12, 13)))
            if t == 7 and s >= OPT["hstart"] and "F2Adone" in T and "Hgo" not in T:
                T["Hgo"] = 1
                G.pace[1] = OPT["hp"]
                G.add(1, sum((ld_h(0, ss) for ss in range(14)), []) + sum((ld_h(1, ss) for ss in range(14)), []))
            if s == 13:
                if t != 5 and G.left([0]): print("tile", t, "pre-barrier drain", G.left([0]), file=sys.stderr)
                while len(G.st[0]) > (len(res1) if t == 5 else 0): a.item(G.st[0].pop(0))
                a.emit("s_barrier")
                if t == 0: G.add(2, yb2 + row_ops(1, 156, False))
                if t == 3: G.add(3, flag_store(WS_FB, 9, 7))
            for ct in range(4):
                d = Q4(GA(t) + 4 * ct)
                a.emit(f"v_mfma_f32_16x16x32_bf16 {d}, {Q4((s*4+ct)*4,'a')}, {Q4(BF(n))}, {'0' if s == 0 else d}")
                nn = n + NB - 1
                fm = (lambda: loadZ(nn)) if (ct == 0 and nn < 128) else None
                fs = (lambda: a.wait(tok[n + 1])) if (ct == 3 and n + 1 < 128) else None
                G.gap(fs, fm)
        if G.left(): print("tile", t, "leftover", [len(x) for x in G.st], file=sys.stderr)
        if t < 7: G.drain([1, 2, 3] if t == 5 else [0, 1, 3] if t == 0 else None)
    G.drain([0, 3])
    wtleft = G.st[2]
    nwtleft = len(wtleft)
    while f"H0_13" not in T: a.item(G.st[1].pop(0))
    h1left = G.st[1]
    nh1left = len(h1left)
    a.label("L_gemm2")
    stamp(a, 12)
    G = Gaps(a, 3)
    G.pace[1] = OPT["hp"]
    G.add(1, h1left)
    G.add(2, wtleft)
    def ost(p, sr=60):
        return [f"s_add_u32 s{sr}, s71, {p*32*16384}", f"buffer_store_dwordx2 {P2(XV+2*p)}, v11, s[8:11], s{sr} offen {OPT['outf']}"]
    rw = lambda p, dt: ("RW", f"ds_write_b128 v{WV+dt}, {Q4(GA(p)+4*dt)} offset:{(p & 1)*16384}")
    def red_ops(p, pk=False):
        ops = [lambda: a.wait(T["RW"]), "s_barrier"]
        ro = (p & 1) * 16384
        for w in range(4): ops.append(("RR", f"ds_read_b128 {Q4(16+4*w)}, v10 offset:{ro + w*4096}"))
        u = GA(p)
        for e in range(2):
            ops.append(f"v_lshlrev_b32 v{u+2*e}, 16, v{XV+2*p+e}")
            ops.append(f"v_and_b32 v{u+1+2*e}, s{S_HI}, v{XV+2*p+e}")
        ops.append(lambda: a.wait(T["RR"]))
        if pk:
            for j in (0, 2): ops += [f"v_pk_add_f32 {P2(16+j)}, {P2(16+j)}, {P2(20+j)}", f"v_pk_add_f32 {P2(24+j)}, {P2(24+j)}, {P2(28+j)}"]
            for j in (0, 2): ops.append(f"v_pk_add_f32 {P2(16+j)}, {P2(16+j)}, {P2(24+j)}")
            for j in (0, 2): ops.append(f"v_pk_fma_f32 {P2(16+j)}, {P2(16+j)}, {P2(GV+j)}, {P2(u+j)}")
        else:
            for j in range(4): ops += [f"v_add_f32 v{16+j}, v{16+j}, v{20+j}", f"v_add_f32 v{24+j}, v{24+j}, v{28+j}"]
            for j in range(4): ops.append(f"v_add_f32 v{16+j}, v{16+j}, v{24+j}")
            for j in range(4): ops.append(f"v_fma_f32 v{16+j}, v{16+j}, v{GV+j}, v{u+j}")
        for j in (0, 2): ops.append(f"v_cvt_pk_bf16_f32 v{XV+2*p+j//2}, v{16+j}, v{17+j}")
        if p >= OPT["defer"]: ops += ost(p)
        return ops
    ck3 = check_ops(sum((list(range(r, r + 4)) for r in H3R), []), 1)
    a.wait(T["H0_0"])
    for p in range(4):
        stamp(a, f"p{p}")
        if p == 0: G.add(0, ["s_nop 0"] * 3 + epi_ops(7))
        else: G.add(0, ["s_nop 0"] * 2 + [rw(p - 1, dt) for dt in range(4)] + red_ops(p - 1))
        if p == 3: G.add(1, sum((ost(pp, 63) for pp in range(OPT["defer"])), []))
        order = [(s, dt) for s in range(14) for dt in range(4)] if p < 3 else [(s, dt) for dt in range(4) for s in range(14)]
        for ii, (s, dt) in enumerate(order):
            if dt == 0 and p < 3:
                if (p, s) == OPT["f2bck"]:
                    G.add(0, [lambda: a.wait(T["F2"])] + chk1(12) + [lambda: k.retry(ld_f2(WS_F2B, 12, 13), chk1(12))] +
                          (ht_ops(2, 1, 96, 97) if OPT["ht"] else []) + [lambda: G.add(1, sum((ld_h(2, ss) for ss in range(14)), []))])
                if (p, s) == OPT["h3t"]: G.add(1, ht_ops(3, 1, 8, 9))
                if (p, s) == OPT["h3at"]: G.add(1, sum((ld_h(3, ss) for ss in range(14)), []))
                if (p, s) == OPT["h3ck"]:
                    G.drain([1])
                    G.add(0, [lambda: a.wait(T["H3_13"])] + ck3 + [lambda: k.retry(sum((ld_h(3, ss, 62) for ss in range(14)), []), ck3)])
            if p == 3 and s == 3 and dt > 0: G.add(0, [rw(3, dt - 1)])
            d = Q4(GA(p) + 4 * dt)
            wk, wr = WR(s, dt); hk, hr = HB(p, s)
            a.emit(f"v_mfma_f32_16x16x32_bf16 {d}, {Q4(wr, wk)}, {Q4(hr, hk)}, {'0' if s == 0 else d}")
            fs = None
            if dt == 3 and p < 3:
                np_, ns = (p, s + 1) if s < 13 else (p + 1, 0)
                toks = []
                if np_ < 3:
                    while f"H{np_}_{ns}" not in T: a.item(G.st[1].pop(0))
                    toks.append(f"H{np_}_{ns}")
                if np_ == 0 and ns >= 8:
                    while any(isinstance(o, tuple) and o[0] == f"WT{ns}" for o in G.st[2]): a.item(G.st[2].pop(0))
                    toks.append(f"WT{ns}")
                if toks: fs = lambda toks=toks: a.wait(*[T[x] for x in toks])
            G.gap(fs, None)
        if G.left(): print("gemm2 p", p, "leftover", [len(x) for x in G.st], file=sys.stderr)
        G.drain([0, 2] if p < 3 else None)
    stamp(a, "p4")
    a(rw(3, 3))
    for o in red_ops(3, True): a(o)
    if STAMP and DIAG is None:
        a("s_waitcnt vmcnt(0)")
        a("s_memrealtime s[72:73]")
        a("s_waitcnt lgkmcnt(0)")
        a("s_lshl_b32 s60, s2, 2")
        a("s_add_u32 s60, s60, s3")
        a("s_lshl_b32 s60, s60, 6")
        a(f"s_add_u32 s60, s60, {WS_STAMP}")
        a("s_mov_b64 exec, 1")
        for i in range(16):
            a(f"v_mov_b32 v2, s{76+2*i if i < 13 else (72, 20, 21)[i-13]}")
            a(f"buffer_store_dword v2, off, s[4:7], s60 offset:{4*i}")
    if DIAG is not None:
        a("s_waitcnt vmcnt(0)")
        a("s_memrealtime s[72:73]")
        a("s_waitcnt lgkmcnt(0)")
        a("s_cmp_lg_u32 s2, 100")
        a("s_cbranch_scc1 L_end")
        src = 72 if DIAG == 13 else 76 + 2 * DIAG
        a(f"s_sub_u32 s60, s{src}, s76")
        a("s_add_u32 s60, s60, 6000")
        a("s_min_u32 s60, s60, 20000")
        a.label("L_diag")
        a("s_memrealtime s[72:73]")
        a("s_waitcnt lgkmcnt(0)")
        a("s_sub_u32 s61, s72, s76")
        a("s_cmp_lt_u32 s61, s60")
        a("s_cbranch_scc1 L_diag")
    a.label("L_end")
    a("s_endpgm")
    a.label("L_spare")
    a("s_sleep 8")
    for o in named("YB", ld_yb) + yb1: a(o)
    a("s_barrier")
    for o in yb2: a(o)
    for o in row_ops(1, 156, True): a(o)
    for o in xs_ops: a(o)
    a("s_waitcnt vmcnt(0)")
    a("s_barrier")
    for o in flag_store(WS_FB, 9, 7): a(o)
    for grp in ((range(0, 6), range(0, 6)), (range(6, 12), range(6, 8)), (range(12, 14), ())):
        for u in grp[0]:
            for o in wd_dma(u): a(txt(o))
        a("s_waitcnt vmcnt(0)")
        for u in grp[1]:
            for o in wd_tr(u): a(txt(o))
        a("s_waitcnt lgkmcnt(0)")
    allw = sum((wd_tr(u) for u in range(8, 14)), [])
    for o in allw[:len(allw) - nwtleft]: a(txt(o))
    a(f"s_sleep {OPT['spsl']}")
    for o in res1: a(txt(o))
    a("s_waitcnt vmcnt(0)")
    for o in res2[1:]: a(o)
    for o in ld_f2(WS_F2A, 15, 9): a(o)
    a("s_waitcnt vmcnt(0)")
    for o in chk1(15): a(o)
    k.retry(ld_f2(WS_F2A, 15, 9), chk1(15), sleep=8)
    allh = sum((ld_h(p, s) for p in range(2) for s in range(14)), [])
    for o in allh[:len(allh) - nh1left]: a(txt(o))
    for o in ld_f2(WS_F2B, 12, 13): a(o)
    a("s_waitcnt vmcnt(0) lgkmcnt(0)")
    a("s_nop 4")
    a("s_branch L_gemm2")
    k.emit_slow()
    a.label("L_codeend")
    print("instrs", a.ninstr, "nops", a.nnop, file=sys.stderr)
    return a.text()

def main(path):
    t = f"; @launch grid=(256,1,1) block=(256,1,1) lds={LDS_BYTES}\n"
    t += '.amdgcn_target "amdgcn-amd-amdhsa--gfx950"\n.text\n'
    t += build()
    t += f""".section .rodata,"a"
.p2align 6
.amdhsa_kernel {NAME}_kernel
  .amdhsa_next_free_vgpr 512
  .amdhsa_next_free_sgpr 102
  .amdhsa_accum_offset 256
  .amdhsa_group_segment_fixed_size 0
  .amdhsa_kernarg_size 120
  .amdhsa_user_sgpr_count 2
  .amdhsa_user_sgpr_kernarg_segment_ptr 1
  .amdhsa_system_sgpr_workgroup_id_x 1
  .amdhsa_float_denorm_mode_32 3
.end_amdhsa_kernel
"""
    open(path, "w").write(t)

if __name__ == "__main__":
    for x in sys.argv[2:]:
        kk, _, vv = x.partition("=")
        if kk == "stamp":
            STAMP = True
            if vv: SLIST = [int(y) if y.isdigit() else y for y in vv.split(",")]
        elif kk == "diag":
            STAMP = True; DIAG = int(vv)
        elif vv == "none": OPT[kk] = ""
        elif ":" in vv: OPT[kk] = tuple(int(y) for y in vv.split(":"))
        else: OPT[kk] = int(vv) if vv.lstrip("-").isdigit() else vv
    main(sys.argv[1])
```

```python
import re

TRANS = ("v_exp_f32", "v_log_f32", "v_rcp_f32", "v_rsq_f32", "v_sqrt_f32", "v_sin_f32", "v_cos_f32", "v_rcp_iflag_f32")
REG_RE = re.compile(r"^(-|abs\()?([vas])(\d+|\[\d+:\d+\])\)?$")

def regs_of(op):
    op = op.strip()
    if op in ("vcc",): return [("s", "vcc")]
    if op in ("exec",): return [("s", "exec")]
    if op == "m0": return [("s", "m0")]
    m = REG_RE.match(op)
    if not m: return []
    k = m.group(2); r = m.group(3)
    if r.startswith("["):
        lo, hi = map(int, r[1:-1].split(":"))
        return [(k, i) for i in range(lo, hi + 1)]
    return [(k, int(r))]

def split_ops(text):
    text = text.split(";")[0].strip()
    parts = text.split(None, 1)
    mn = parts[0]
    if len(parts) == 1: return mn, [], ""
    rest = parts[1]
    ops = [x.strip() for x in re.split(r",(?![^\[]*\])", rest)]
    last = ops[-1].split()
    mods = " ".join(last[1:]) if len(last) > 1 else ""
    ops[-1] = last[0] if last else ""
    return mn, ops, mods

class Ins:
    def __init__(self, text):
        self.text = text
        mn, ops, mods = split_ops(text)
        self.mn, self.ops, self.mods = mn, ops, mods
        self.dst, self.src = [], []
        self.kind = "other"
        R = regs_of
        if mn.startswith("v_mfma"):
            self.kind = "mfma"
            self.passes = 8 if "32x32x16" in mn else 4 if "16x16x32" in mn else None
            assert self.passes
            self.dst = R(ops[0]); self.a = R(ops[1]) + R(ops[2]); self.c = R(ops[3]); self.src = self.a + self.c
        elif mn.startswith("v_"):
            self.kind = "valu"
            if mn.startswith("v_cmp"):
                self.dst = R(ops[0]); self.src = sum((R(o) for o in ops[1:]), [])
            elif mn.startswith("v_permlane") and "swap" in mn:
                self.dst = R(ops[0]) + R(ops[1]); self.src = list(self.dst)
            elif mn.startswith(("v_add_co", "v_sub_co", "v_addc_co", "v_subb_co")):
                self.dst = R(ops[0]) + R(ops[1]); self.src = sum((R(o) for o in ops[2:]), [])
            elif mn.startswith("v_nop"):
                pass
            else:
                self.dst = R(ops[0]); self.src = sum((R(o) for o in ops[1:]), [])
                if mn.startswith(("v_fmac", "v_dot2c", "v_writelane")) or "dpp" in mn or "sdwa" in mn:
                    self.src += self.dst
        elif mn.startswith(("buffer_load", "global_load")):
            self.kind = "vmem"
            if "lds" in mn or " lds" in (" " + mods):
                self.dma = True
                self.src = sum((R(o) for o in ops), []) + [("s", "m0")]
            else:
                self.dst = R(ops[0]); self.src = sum((R(o) for o in ops[1:]), [])
        elif mn.startswith(("buffer_store", "global_store", "buffer_atomic", "global_atomic")):
            self.kind = "vmem"
            self.src = sum((R(o) for o in ops), [])
            self.wide = mn.endswith(("x3", "x4"))
            self.data = R(ops[0]) if mn.startswith("buffer") else R(ops[1])
        elif mn.startswith(("buffer_wbl2", "buffer_inv")):
            self.kind = "vmem"
        elif mn.startswith("ds_"):
            self.kind = "ds"
            if mn.startswith(("ds_read", "ds_bpermute", "ds_permute", "ds_swizzle")):
                self.dst = R(ops[0]); self.src = sum((R(o) for o in ops[1:]), [])
            else:
                self.src = sum((R(o) for o in ops), [])
        elif mn.startswith("s_"):
            self.kind = "salu"
            if mn.startswith(("s_load", "s_buffer_load", "s_memtime", "s_memrealtime")):
                self.kind = "smem"
            if mn.startswith(("s_cmp", "s_cbranch", "s_branch", "s_waitcnt", "s_barrier", "s_nop", "s_endpgm", "s_sleep", "s_setprio", "s_bitcmp")):
                self.src = sum((R(o) for o in ops), [])
            else:
                self.dst = R(ops[0]) if ops else []
                self.src = sum((R(o) for o in ops[1:]), [])

class Asm:
    def __init__(self):
        self.out = []
        self.clock = 0
        self.ev = {}
        self.snap = {}
        self.vm = 0
        self.lg = 0
        self.nnop = 0
        self.ninstr = 0
        self.bg = []
        self.bg_every = 16
        self.bg_cnt = 0
        self.bg_off = 0
        self.bg2 = []
        self.bg2_every = 3
        self.bg2_cnt = 0
        self.T = {}

    def raw(self, s): self.out.append(s)
    def c(self, s): self.out.append("    ; " + s)

    def age(self, reg, kind):
        e = self.ev.get((reg, kind))
        if e is None: return None
        return self.clock - e[0] - 1, e[1]

    def need(self, ins):
        n = 0
        def req(reg, kind, ws):
            nonlocal n
            a = self.age(reg, kind)
            if a is not None and a[0] < ws: n = max(n, ws - a[0])
        k = ins.kind
        mn = ins.mn
        isv = lambda r: r[0] in "va"
        if k == "mfma":
            for r in ins.src:
                req(r, "valu_w", 2)
                req(r, "dot_w", 3)
            for r in ins.a:
                a = self.age(r, "mfma_w")
                if a: req(r, "mfma_w", a[1][0] + 4)
            for r in ins.c + ins.dst:
                a = self.age(r, "mfma_w")
                if a:
                    p, d = a[1]
                    if not (d == tuple(ins.c) and p == ins.passes): req(r, "mfma_w", p + 2)
        else:
            if k in ("valu", "vmem", "ds"):
                for r in ins.src + ins.dst:
                    if not isv(r): continue
                    a = self.age(r, "mfma_w")
                    if a: req(r, "mfma_w", a[1][0] + 4)
                    a = self.age(r, "dot_w")
                    if a and not (mn == a[1] and r in ins.dst and r not in regs_of(ins.ops[1]) + regs_of(ins.ops[2])):
                        req(r, "dot_w", 3)
            if k == "valu":
                for r in ins.dst:
                    if isv(r):
                        a = self.age(r, "mfma_c")
                        if a: req(r, "mfma_c", a[1] - 1)
                        req(r, "wstore", 2)
                for r in ins.src:
                    if isv(r):
                        if "dpp" in mn or mn.startswith("v_permlane"): req(r, "valu_w", 2); req(r, "ld_w", 0)
                        if mn.startswith(("v_readlane", "v_readfirstlane")): req(r, "valu_w", 1)
                        if not mn.startswith(TRANS): req(r, "trans_w", 1)
                        req(r, "sdwa_w", 1)
                    else:
                        req(r, "valu_sw", 4 if mn.startswith(("v_readlane", "v_writelane")) else 2)
                if mn.startswith(("v_cndmask", "v_addc", "v_subb")) : req(("s", "vcc"), "valu_sw", 2)
            if k in ("vmem", "ds"):
                for r in ins.dst:
                    req(r, "wstore", 1)
                for r in ins.src:
                    if isv(r): req(r, "trans_w", 1)
            if k == "vmem":
                for r in ins.src:
                    if not isv(r): req(r, "valu_sw", 5)
                if getattr(ins, "dma", False): req(("s", "m0"), "salu_w", 1)
            if k in ("salu", "smem"):
                for r in ins.src:
                    req(r, "valu_sw", 1)
                if mn.startswith("s_cbranch_vcc"): req(("s", "vcc"), "valu_sw", 1)
        return n

    def record(self, ins):
        t = self.clock
        k = ins.kind
        if k == "mfma":
            for r in ins.dst: self.ev[(r, "mfma_w")] = (t, (ins.passes, tuple(ins.dst)))
            for r in ins.c: self.ev[(r, "mfma_c")] = (t, ins.passes)
        elif k == "valu":
            for r in ins.dst:
                if r[0] in "va":
                    self.ev[(r, "valu_w")] = (t, None)
                    if ins.mn.startswith(TRANS): self.ev[(r, "trans_w")] = (t, None)
                    if ins.mn.startswith("v_dot"): self.ev[(r, "dot_w")] = (t, ins.mn)
                    if "sdwa" in ins.mn or ("op_sel" in ins.mods and not ins.mn.startswith("v_pk_")): self.ev[(r, "sdwa_w")] = (t, None)
                else:
                    self.ev[(r, "valu_sw")] = (t, None)
        elif k == "salu":
            for r in ins.dst: self.ev[(r, "salu_w")] = (t, None)
        elif k == "vmem" and getattr(ins, "wide", False):
            for r in ins.data: self.ev[(r, "wstore")] = (t, None)

    def item(self, o):
        if callable(o): return o()
        if isinstance(o, tuple):
            self.T[o[0]] = self.emit(o[1]); return self.T[o[0]]
        return self.emit(o)

    def flush_bg(self, n=10**9):
        while self.bg and n > 0:
            for o in self.bg.pop(0): self.item(o)
            n -= 1
        self.bg_cnt = 0

    def __call__(self, text):
        tok = self.item(text)
        if self.bg and not self.bg_off:
            self.bg_cnt += 1
            if self.bg_cnt >= self.bg_every: self.flush_bg(1)
        if self.bg2 and not self.bg_off:
            self.bg2_cnt += 1
            if self.bg2_cnt >= self.bg2_every:
                self.bg2_cnt = 0
                self.item(self.bg2.pop(0))
        return tok

    def emit(self, text):
        ins = Ins(text)
        n = self.need(ins)
        while n > 0:
            m = min(n, 16)
            self.out.append(f"    s_nop {m-1}")
            self.clock += m; n -= m; self.nnop += 1
        self.out.append("    " + text)
        self.ninstr += 1
        self.record(ins)
        if ins.mn == "s_nop": self.clock += int(ins.ops[0]) + 1
        else: self.clock += 1
        if ins.mn.startswith(("s_cbranch", "s_branch")):
            self.snap.setdefault(ins.ops[0], []).append({k: (self.clock - v[0], v[1]) for k, v in self.ev.items() if self.clock - v[0] < 32})
        tok = None
        if ins.kind == "vmem":
            self.vm += 1; tok = ("vm", self.vm)
        elif ins.kind == "ds":
            self.lg += 1; tok = ("lg", self.lg)
        return tok

    def label(self, name):
        self.out.append(name + ":")
        for s in self.snap.get(name, []):
            for k, (age, ex) in s.items():
                cur = self.ev.get(k)
                if cur is None or self.clock - cur[0] > age:
                    self.ev[k] = (self.clock - age, ex)

    def wait(self, *toks):
        vm = [t[1] for t in toks if t and t[0] == "vm"]
        lg = [t[1] for t in toks if t and t[0] == "lg"]
        s = []
        if vm: s.append(f"vmcnt({min(63, self.vm - max(vm))})")
        if lg: s.append(f"lgkmcnt({min(15, self.lg - max(lg))})")
        if s: self.emit("s_waitcnt " + " ".join(s))

    def text(self): return "\n".join(self.out) + "\n"


class Delay:
    def __init__(self, n, cond=None): self.n = n; self.t0 = None; self.cond = cond
    def __call__(self): pass

def cls_of(o):
    if callable(o): return "S"
    t = o[1] if isinstance(o, tuple) else o
    mn = t.split()[0]
    if mn.startswith("s_"): return "S"
    if mn.startswith("v_"): return "V"
    return "M"

class Gaps:
    def __init__(self, a, nstreams):
        self.a = a
        self.st = [[] for _ in range(nstreams)]
        self.pace = [0] * nstreams
        self.lastm = [-999] * nstreams
        self.n = 0
        self.order = list(range(nstreams))
    def add(self, i, ops): self.st[i] += list(ops)
    def left(self, which=None):
        return sum(len(x) for i, x in enumerate(self.st) if which is None or i in which)
    def take(self, cls, skip=()):
        for i in self.order:
            q = self.st[i]
            if i in skip or not q: continue
            while q and isinstance(q[0], Delay):
                if q[0].cond is not None and not q[0].cond(): break
                if q[0].t0 is None: q[0].t0 = self.n
                if self.n - q[0].t0 >= q[0].n: q.pop(0)
                else: break
            if not q or isinstance(q[0], Delay): continue
            if cls_of(q[0]) == cls:
                if cls == "M":
                    if self.n - self.lastm[i] < self.pace[i]: continue
                    self.lastm[i] = self.n
                o = q.pop(0); self.a.item(o); return i, o
        return None
    def gap(self, fixedS=None, fixedM=None):
        skip = set()
        self.n += 1
        def takeS():
            r = self.take("S")
            if r:
                t = r[1][1] if isinstance(r[1], tuple) else r[1]
                if isinstance(t, str) and " m0," in t: skip.add(r[0])
            return r
        if fixedS: fixedS()
        else: takeS()
        if fixedM: fixedM()
        else:
            if not self.take("M", skip):
                if not self.take("V"): takeS()
        if not self.take("V"): takeS()
    def drain(self, which=None):
        for i, q in enumerate(self.st):
            if which is not None and i not in which: continue
            while q: self.a.item(q.pop(0))
```

```python
import sys
from dsl import Asm, Gaps, Delay
NAME = "adaLN_cond__ssm_conv_h3__glu_gated_bilinear__prompt"

WS_KV, WS_Y, WS_H2, WS_X1, WS_HH = 0x0, 0x200000, 0x400000, 0x600000, 0x800000
WS_MOD = 0x1000000
WS_F0, WS_F1, WS_FB, WS_F2A, WS_F2B, WS_EP = 0x1030000, 0x1040000, 0x1050000, 0x1060000, 0x1080000, 0x10a0000
WS_F20 = 0x10c0000
WS_STAMP = 0x1800000
WS_SIZE = 0x2000000
OOB = 0x40000000
SPIN = 3000

L_KC, L_UU, L_RSA, L_MP = 131072, 147712, 156928, 161024
L_EX, L_RSB = L_KC, L_UU
L_Z = 98304
LDS_BYTES = 163840

P_Q, P_K, P_V, P_SH, P_SK, P_SD, P_WG, P_WU, P_WD, P_C, P_WM, P_OUT, P_DBG, P_WS = 16, 18, 20, 22, 24, 26, 30, 32, 34, 36, 38, 40, 42, 44
S_XCD, S_IDX, S_TAG, S_HI, S_SENT, S_RB, S_CT, S_D, S_SPARE = 46, 47, 56, 57, 58, 59, 28, 29, 75
S_WS, S_WM = 18, 19
S_FO, S_HO, S_YO, S_ROW, S_MO = 64, 65, 71, 22, 42
STAMP = False
DIAG = None
OPT = dict(ord="//m/n/cq", f0ld=(5, 4), f0ck=(6, 3), spf=1, z4late=1, hcd=30, dpost=1, mat=1, f1at=4, modat=60, cord="ncWzd", fset=2, cf=1, bg1=0, qconv=0, spsl=1, zsleep=0, ln1at=3, cconv=0, yat=12, defer=2, fs=6, ht=1, hp=3, hstart=1, f2ld=(6, 1), f2ck=(6, 9), f2bld=(7, 14), h3t=(9, 9), f2bck=(0, 5), h3at=(1, 9), h3ck=(2, 10), rot=1, early2=1, f0at=12, aftat=20, t2=1, dt=0, n0=0, n1=0, pollat=-1, b4lag=10, p1=3, p2=12, n2=8, p2b=4, touch=1, outf="sc1", zearly=1)
Q4 = lambda r, k="v": f"{k}[{r}:{r+3}]"
P2 = lambda r: f"v[{r}:{r+1}]"
SLIST = [0, 1, 2, 3, 4, 5, 6, 7, 8, 9, 10, 11, 12]

def stamp(a, name):
    if STAMP and name in SLIST:
        i = SLIST.index(name)
        a.emit(f"s_memrealtime s[{76+2*i}:{77+2*i}]")

def srd(a, d, p, nbytes):
    a(f"s_mov_b32 s{d}, s{p}")
    a(f"s_mov_b32 s{d+1}, s{p+1}")
    a(f"s_mov_b32 s{d+2}, {hex(nbytes)}")
    a(f"s_mov_b32 s{d+3}, 0x20000")

def ln_finish(a, pairs):
    def each(f):
        for p in pairs: a(f(*p))
    each(lambda s, q, t: f"v_mul_f32 v{s}, 0x3b000000, v{s}")
    each(lambda s, q, t: f"v_mul_f32 v{q}, 0x3b000000, v{q}")
    each(lambda s, q, t: f"v_fma_f32 v{q}, -v{s}, v{s}, v{q}")
    each(lambda s, q, t: f"v_max_f32 v{q}, 0, v{q}")
    each(lambda s, q, t: f"v_cvt_pk_bf16_f32 v{t}, v{q}, v{s}")
    each(lambda s, q, t: f"v_lshlrev_b32 v{q}, 16, v{t}")
    each(lambda s, q, t: f"v_and_b32 v{s}, s{S_HI}, v{t}")
    each(lambda s, q, t: f"v_add_f32 v{q}, 0x3727c5ac, v{q}")
    each(lambda s, q, t: f"v_cvt_pk_bf16_f32 v{t}, v{q}, v{q}")
    each(lambda s, q, t: f"v_lshlrev_b32 v{q}, 16, v{t}")
    each(lambda s, q, t: f"v_sqrt_f32 v{q}, v{q}")
    each(lambda s, q, t: f"v_cvt_pk_bf16_f32 v{t}, v{q}, v{q}")
    each(lambda s, q, t: f"v_lshlrev_b32 v{q}, 16, v{t}")
    each(lambda s, q, t: f"v_rcp_f32 v{q}, v{q}")
    each(lambda s, q, t: f"v_mul_f32 v{s}, -v{s}, v{q}")

WAVE_RED = ("quad_perm:[1,0,3,2] row_mask:0xf", "quad_perm:[2,3,0,1] row_mask:0xf", "row_half_mirror row_mask:0xf",
            "row_mirror row_mask:0xf", "row_bcast:15 row_mask:0xa", "row_bcast:31 row_mask:0xc")

def san(a, regs):
    for r in regs: a(f"v_min_u32 v{r}, s{S_SENT}, v{r}")

def check_ops(regs, t):
    ops = []
    regs = list(regs)
    if len(regs) == 2:
        ops.append(f"v_max_u32 v{t}, v{regs[0]}, v{regs[1]}"); rest = []
    else:
        ops.append(f"v_max3_u32 v{t}, v{regs[0]}, v{regs[1]}, v{regs[2]}"); rest = regs[3:]
    while rest:
        if len(rest) >= 2:
            ops.append(f"v_max3_u32 v{t}, v{t}, v{rest[0]}, v{rest[1]}"); rest = rest[2:]
        else:
            ops.append(f"v_max_u32 v{t}, v{t}, v{rest[0]}"); rest = rest[1:]
    ops.append(f"v_cmp_eq_u32 vcc, -1, v{t}")
    return ops

def txt(o): return o[1] if isinstance(o, tuple) else o
def named(name, l): return list(l[:-1]) + [(name, txt(l[-1]))]

class Rec:
    def __init__(s): s.l = []
    def __call__(s, t): s.l.append(t)

class K:
    def __init__(self):
        self.a = Asm(); self.slow = []; self.nl = 0
    def retry(self, loads, chk, mid=(), sleep=4):
        a = self.a
        self.nl += 1; n = self.nl
        a.emit(f"s_cbranch_vccnz L_slow{n}")
        a.label(f"L_back{n}")
        self.slow.append((n, [txt(o) for o in loads], list(chk), [txt(o) for o in mid], sleep))
        if STAMP: print("retry site", n, txt(loads[-1])[:70], file=sys.stderr)
    def emit_slow(self):
        a = self.a
        for n, loads, chk, mid, sleep in self.slow:
            a.label(f"L_slow{n}")
            a("s_nop 7"); a("s_nop 7")
            a("s_mov_b32 s33, 0")
            a("s_mov_b32 s23, m0")
            if STAMP: a(f"s_bitset1_b32 s20, {n}")
            a.label(f"L_sl{n}")
            if STAMP: a("s_add_u32 s21, s21, 1")
            a(f"s_sleep {sleep}")
            for o in loads: a(o)
            a("s_waitcnt vmcnt(0)")
            if mid:
                for o in mid: a(o)
                a("s_waitcnt lgkmcnt(0)")
            for o in chk: a(o)
            a("s_add_u32 s33, s33, 1")
            a(f"s_cmp_ge_u32 s33, {SPIN}")
            a(f"s_cbranch_scc1 L_sx{n}")
            a(f"s_cbranch_vccnz L_sl{n}")
            a.label(f"L_sx{n}")
            a("s_mov_b32 m0, s23")
            a("s_nop 4")
            a(f"s_branch L_back{n}")

A_SW, A_SR, A_A, A_KP, A_KW, A_B, A_XW, A_XR, A_KE, A_TR = 128, 129, 130, 134, 135, 136, 137, 138, 139, 140
A_MW, A_MR, A_MS, A_FS, A_FL, A_TG, A_ML, A_YL, A_RW, A_RR, A_WM, A_C, A_L1 = 144, 145, 146, 146, 148, 149, 150, 151, 152, 153, 154, 155, 156
A_SW2 = 157
S_KP, S_YL = 30, 32
def flag_store(base, vt, va, so="s60", off=f"s{S_FO}"):
    return [f"s_add_u32 {so}, {off}, {base}", f"v_lshlrev_b32 v{va}, 26, v6", f"v_lshl_add_u32 v{va}, v5, 2, v{va}",
            f"v_mov_b32 v{vt}, s{S_TAG}", f"buffer_store_dword v{vt}, v{va}, s[4:7], {so} offen sc1"]
def flag_store2(base, so="s60"):
    return [f"s_add_u32 {so}, s{S_FO}, {base}", f"buffer_store_dword v{A_TG}, v{A_FS}, s[4:7], {so} offen sc1"]
def flag_load(base, vd, so="s62"):
    return [f"s_mov_b32 {so}, {base}", f"buffer_load_dword v{vd}, v{A_FL}, s[4:7], {so} offen sc1"]
def plain(l): return [(o[0], o[1].replace(" sc1", "")) if isinstance(o, tuple) else o.replace(" sc1", "") for o in l]
def flag_chk(vd): return [f"v_cmp_ne_u32 vcc, s{S_TAG}, v{vd}"]

VW = 240
def w1_groups():
    g = []
    for j in range(32):
        l = []
        if j % 4 == 0:
            if OPT["rot"]:
                l.append("s_add_u32 s26, s26, 4096")
                l.append("s_and_b32 s26, s26, 0x7fff")
                l.append(f"s_add_u32 m0, s{S_WM}, s26")
                l.append("s_mul_i32 s27, s26, 14")
            else:
                l.append(f"s_add_u32 m0, s{S_WM}, {j*1024}")
                l.append(f"s_mov_b32 s27, {j*14336}")
        l.append(("W1", f"buffer_load_dwordx4 v{VW + j % 4}, s[48:51], s27 offen offset:{(j % 4)*1024} lds"))
        g.append(l)
    return g

def w1_tr_setup(a, b):
    a(f"v_bfe_u32 v{b+1}, v1, 2, 3")
    a("s_lshl_b32 s63, s3, 1")
    a(f"v_xor_b32 v{b+1}, s63, v{b+1}")
    a(f"v_bfe_u32 v{b}, v1, 2, 2")
    a(f"v_lshl_add_u32 v{b}, v6, 3, v{b}")
    a(f"v_lshlrev_b32 v{b}, 8, v{b}")
    a(f"v_and_b32 v{b+2}, 3, v1")
    a(f"v_lshl_add_u32 v{b}, v{b+2}, 3, v{b}")
    a(f"v_lshl_add_u32 v{b}, v{b+1}, 5, v{b}")
    a(f"v_xor_b32 v{b+1}, 32, v{b}")
    a(f"v_add_u32 v{b+2}, 0x10000, v{b}")
    a(f"v_add_u32 v{b+3}, 0x10000, v{b+1}")
def w1_tr(half, b):
    l = []
    for s in range(8):
        for ct in range(4):
            r = ((half * 8 + s) * 4 + ct) * 4
            for h in range(2):
                l.append(("WTR", f"ds_read_b64_tr_b16 a[{r+2*h}:{r+2*h+1}], v{b+ct} offset:{s*8192 + h*1024}"))
    return l

def build():
    k = K(); a = k.a; T = a.T
    a.raw(f".globl {NAME}_kernel\n.p2align 8\n.type {NAME}_kernel,@function\n{NAME}_kernel:")
    a("s_cmp_ge_u32 s2, 256")
    a("s_cbranch_scc1 L_end")
    stamp(a, 0)
    a("s_load_dwordx16 s[16:31], s[0:1], 0")
    a("s_load_dwordx8 s[32:39], s[0:1], 64")
    a("s_load_dwordx2 s[40:41], s[0:1], 96")
    a("s_load_dwordx2 s[44:45], s[0:1], 112")
    a("s_getpc_b64 s[4:5]")
    a.label("L_pc0")
    a("s_lshl_b32 s6, s2, 3")
    a("s_and_b32 s6, s6, 0xc0")
    a("v_lshrrev_b32 v3, 2, v0")
    a("v_add_lshl_u32 v3, v3, s6, 7")
    a("v_min_u32 v3, L_codeend-L_pc0-4, v3")
    a("global_load_dword v236, v3, s[4:5]")
    a("v_lshrrev_b32 v1, 6, v0")
    a("v_readfirstlane_b32 s3, v1")
    a("v_and_b32 v1, 63, v0")
    a("v_lshlrev_b32 v2, 4, v1")
    a(f"s_and_b32 s{S_XCD}, s2, 7")
    a(f"s_lshr_b32 s{S_IDX}, s2, 3")
    if OPT.get("remap"):
        a(f"s_xor_b32 s60, s{S_IDX}, 4")
        a("s_and_b32 s61, s60, 7")
        a("s_lshr_b32 s60, s60, 3")
        a(f"s_lshl2_add_u32 s{S_IDX}, s61, s60")
    a(f"s_mov_b32 s{S_HI}, 0xffff0000")
    a(f"s_mov_b32 s{S_SENT}, 0xfffffffe")
    a(f"s_lshr_b32 s60, s{S_IDX}, 2")
    a(f"s_lshl_b32 s61, s{S_XCD}, 3")
    a("s_add_u32 s66, s60, s61")
    a(f"s_and_b32 s61, s{S_IDX}, 3")
    a("s_lshl_b32 s62, s66, 15")
    a("s_lshl_b32 s63, s61, 8")
    a("s_add_u32 s62, s62, s63")
    a("s_lshl_b32 s63, s3, 6")
    a("s_add_u32 s62, s62, s63")
    a("v_and_b32 v5, 15, v1")
    a("v_lshrrev_b32 v6, 4, v1")
    a("v_lshlrev_b32 v7, 13, v6")
    a("v_lshl_add_u32 v7, v5, 2, v7")
    a("v_add_u32 v7, s62, v7")
    a("v_subrev_u32 v3, 3072, v7")
    a("v_add_u32 v4, 4096, v7")
    a("s_lshl_b32 s63, s61, 2")
    a("s_add_u32 s63, s63, s3")
    a("s_lshl_b32 s63, s63, 4")
    a("s_lshl_b32 s73, s63, 4")
    a("v_lshlrev_b32 v8, 4, v5")
    a("s_lshl2_add_u32 s65, s66, s61")
    a(f"s_lshl_b32 s65, s65, {OPT['fs']}")
    a("s_lshl_b32 s69, s66, 8")
    a("s_add_u32 s69, s69, s63")
    a("s_lshl_b32 s69, s69, 7")
    for i in range(4): a(f"v_mov_b32 v{244+i}, -1")
    a(f"s_mul_i32 s67, s{S_XCD}, 6")
    a("s_add_u32 s67, s67, s60")
    a("s_lshl_b32 s67, s67, 2")
    a("s_add_u32 s67, s67, s61")
    a(f"s_cmp_ge_u32 s{S_IDX}, 24")
    a(f"s_cselect_b32 s74, {OOB}, 0")
    a("s_cmp_eq_u32 s3, 0")
    a(f"s_cselect_b32 s70, 0, {OOB}")
    a(f"s_lshl_b32 s{S_MO}, s67, 6")
    a(f"s_add_u32 s{S_MO}, s{S_MO}, {WS_MOD}")
    a("s_or_b32 s63, s74, s70")
    a(f"s_add_u32 s{S_MO}, s{S_MO}, s63")
    a("s_lshr_b32 s63, s67, 5")
    a("s_lshr_b32 s63, 0x12, s63")
    a("s_and_b32 s63, s63, 1")
    a("s_mul_i32 s43, s63, 0x3f800000")
    a(f"s_lshl_b32 s63, s2, {OPT['fs']}")
    a(f"s_add_u32 s{S_FO}, s63, s70")
    a("s_add_u32 s70, s65, s70")
    a(f"s_add_u32 s70, s70, {WS_F0}")
    a("v_lshrrev_b32 v9, 2, v1")
    a("v_lshlrev_b32 v9, 14, v9")
    a("v_and_b32 v40, 3, v1")
    a("v_lshl_add_u32 v9, v40, 4, v9")
    a(f"s_lshl_b32 s{S_YO}, s3, 18")
    a("s_lshl_b32 s72, s2, 6")
    a(f"s_add_u32 s{S_YO}, s{S_YO}, s72")
    a(f"s_add_u32 s{S_YO}, s{S_YO}, {WS_Y}")
    a(f"v_and_b32 v{A_L1}, 1, v1")
    a("s_waitcnt lgkmcnt(0)")
    stamp(a, 1)
    srd(a, 4, P_WS, WS_SIZE)
    a(f"s_add_u32 s72, s{P_WS}, {WS_EP}")
    a(f"s_addc_u32 s63, s{P_WS+1}, 0")
    a("s_mov_b32 s62, s72")
    a(f"s_load_dword s{S_TAG}, s[62:63], 0")
    def first_clears():
        a("buffer_store_dwordx4 v[244:247], v2, s[4:7], s69 offen sc1")
        a("buffer_store_dwordx4 v[244:247], v2, s[4:7], s69 offen offset:1024 sc1")
        a(f"buffer_store_dwordx4 v[244:247], v9, s[4:7], s{S_YO} offen sc1")
        a("s_mov_b64 exec, 0xf")
        T["clr0"] = a(f"buffer_store_dwordx4 v[244:247], v2, s[4:7], s{S_MO} offen sc1")
        a("s_mov_b64 exec, -1")
    if OPT["cf"]: first_clears()
    srd(a, 8, P_K, 0x200000)
    srd(a, 12, P_V, 0x200000)
    for i in range(11):
        base, off = (3, i) if i < 3 else (7, i - 3) if i < 7 else (4, i - 7)
        a(f"buffer_load_dword v{10+i}, v{base}, s[8:11], 0 offen offset:{off*1024}")
    for i in range(8):
        base, off = (7, i) if i < 4 else (4, i - 4)
        a(f"buffer_load_dword v{21+i}, v{base}, s[12:15], 0 offen offset:{off*1024}")
    if STAMP: a("s_mov_b64 s[20:21], 0")
    srd(a, 52, P_SH, 4096)
    tkv0 = a("buffer_load_dwordx4 v[32:35], v8, s[52:55], s73 offen")
    a("s_lshl_b32 s72, s2, 2")
    a(f"s_load_dword s{S_D}, s[{P_SD}:{P_SD+1}], s72")
    a("s_lshr_b32 s60, s3, 1")
    a("s_and_b32 s61, s3, 1")
    a("s_lshl1_add_u32 s62, s2, s60")
    a("s_lshl_b32 s62, s62, 12")
    a(f"s_load_dword s44, s[{P_SK}:{P_SK+1}], s62")
    if not OPT["cf"]: first_clears()
    tclr = T["clr0"]
    srd(a, 52, P_SK, 0x200000)
    a("s_mul_i32 s65, s60, 8320")
    a("s_lshl_b32 s63, s61, 11")
    a("s_add_u32 s62, s62, s63")
    a("s_add_u32 s63, s63, s65")
    a(f"s_add_u32 m0, s63, {L_KC + 32}")
    a("v_add_u32 v36, 2, v2")
    a("buffer_load_dwordx4 v2, s[52:55], s62 offen lds")
    a("buffer_load_dwordx4 v2, s[52:55], s62 offen offset:1024 lds")
    a(f"s_add_u32 m0, s63, {L_KC + 32 + 4160}")
    a("s_lshl_b32 s61, s61, 8")
    a("buffer_load_dwordx4 v36, s[52:55], s62 offen lds")
    tkern = a("buffer_load_dwordx4 v36, s[52:55], s62 offen offset:1024 lds")
    a(f"s_lshl_b32 s{S_ROW}, s{S_XCD}, 5")
    a(f"s_add_u32 s{S_ROW}, s{S_ROW}, s{S_IDX}")
    a(f"s_and_b32 s72, s{S_XCD}, 3")
    a("s_mul_i32 s72, s72, 28")
    a(f"s_add_u32 s72, s72, s{S_IDX}")
    a(f"s_lshr_b32 s73, s{S_XCD}, 2")
    a("s_lshl_b32 s73, s73, 3")
    a(f"s_and_b32 s{S_RB}, s72, 7")
    a(f"s_lshl_b32 s26, s{S_RB}, 12")
    a(f"s_add_u32 s{S_RB}, s{S_RB}, s73")
    a("s_lshr_b32 s66, s72, 3")
    a(f"s_lshl2_add_u32 s{S_CT}, s66, s3")
    a(f"s_cmp_ge_u32 s{S_IDX}, 28")
    a(f"s_cselect_b32 s{S_SPARE}, {OOB}, 0")
    a("s_cmp_ge_u32 s3, 2")
    a(f"s_cselect_b32 s48, s{P_WU}, s{P_WG}")
    a(f"s_cselect_b32 s49, s{P_WU+1}, s{P_WG+1}")
    a(f"s_mov_b32 s50, {512*3584}")
    a("s_mov_b32 s51, 0x20000")
    a(f"s_lshl2_add_u32 s72, s{S_ROW}, s3")
    a("s_lshl_b32 s68, s72, 10")
    a("s_and_b32 s73, s3, 1")
    a(f"s_mul_i32 s73, s73, {128*3584}")
    a("s_lshl_b32 s72, s66, 8")
    a("s_add_u32 s73, s73, s72")
    a(f"s_add_u32 s73, s73, s{S_SPARE}")
    a(f"s_lshl_b32 s{S_WM}, s3, 15")
    a("v_bfe_u32 v37, v1, 1, 3")
    a("v_xor_b32 v38, v37, v6")
    a(f"v_lshl_add_u32 v38, v38, 1, v{A_L1}")
    a("v_mul_u32_u24 v39, 3584, v6")
    a("v_add_u32 v39, s73, v39")
    a(f"v_lshl_add_u32 v{VW}, v38, 4, v39")
    a(f"v_add_u32 v{VW+1}, {14336-1024}, v{VW}")
    a("v_xor_b32 v38, 8, v38")
    a(f"v_lshl_add_u32 v{VW+2}, v38, 4, v39")
    a(f"v_add_u32 v{VW+2}, {2*(14336-1024)}, v{VW+2}")
    a(f"v_add_u32 v{VW+3}, {14336-1024}, v{VW+2}")
    w1q = w1_groups()
    def w4():
        for _ in range(4):
            for o in w1q.pop(0): a(o)
    def xt_ops(nrows, row0, vt, vt2):
        r = Rec()
        r(f"v_bfe_u32 v{vt}, v1, 3, {nrows.bit_length()-1}")
        r(f"v_mul_u32_u24 v{vt}, 3584, v{vt}")
        r(f"v_and_b32 v{vt2}, 7, v1")
        r(f"v_lshl_add_u32 v{vt}, v{vt2}, 7, v{vt}")
        r("s_and_b32 s73, s3, 1")
        r(f"s_lshl1_add_u32 s72, s{S_IDX}, s73")
        r(f"s_mul_i32 s72, s72, {nrows*3584}")
        r(f"s_and_b32 s73, s{S_XCD}, 3")
        r("s_mul_i32 s73, s73, 28")
        r("s_lshr_b32 s73, s73, 3")
        r("s_lshl_b32 s73, s73, 8")
        r("s_add_u32 s72, s72, s73")
        if row0: r(f"s_add_u32 s72, s72, {row0*3584}")
        r(f"buffer_load_dword v159, v{vt}, s[48:51], s72 offen")
        return r.l
    def xt(nrows, row0):
        for o in xt_ops(nrows, row0, 158, 147): a(o)
    def mod_blk(i):
        a(f"s_add_u32 s72, s{S_IDX}, {i}")
        a("s_and_b32 s72, s72, 3")
        a("s_lshl2_add_u32 s72, s3, s72")
        a("s_lshl_b32 s73, s72, 6")
        a(f"buffer_load_ushort v{160+i}, v{A_C}, s[12:15], s73 offen")
        a(f"s_mul_i32 s72, s72, {32*6144}")
        T["mod"] = a(f"buffer_load_dwordx4 {Q4(164+4*i)}, v{A_WM}, s[8:11], s72 offen")
    def ld_mod():
        srd(a, 8, P_WM, 512 * 6144)
        srd(a, 12, P_C, 1024)
        a(f"v_lshrrev_b32 v{A_C}, 1, v1")
        a(f"v_mul_u32_u24 v{A_WM}, 6144, v{A_C}")
        a(f"v_lshl_add_u32 v{A_WM}, v{A_L1}, 4, v{A_WM}")
        a("s_lshl_b32 s73, s67, 5")
        a("s_add_u32 s73, s73, s74")
        a(f"v_add_u32 v{A_WM}, s73, v{A_WM}")
        a(f"v_lshlrev_b32 v{A_C}, 1, v{A_C}")
        mod_blk(0)
    def ld_mod2():
        for i in range(1, 4): mod_blk(i)
    def ld_touch():
        a("s_and_b32 s73, s3, 1")
        a("s_lshl1_add_u32 s72, s2, s73")
        a("s_mul_i32 s72, s72, 3584")
        a("v_min_u32 v237, 27, v1")
        a("v_lshlrev_b32 v237, 7, v237")
        a("buffer_load_dword v237, v237, s[48:51], s72 offen")
    def ld_touchd():
        srd(a, 52, P_WD, 1792 * 1024)
        a(f"s_lshl2_add_u32 s72, s{S_XCD}, s{S_IDX}")
        a("s_sub_u32 s72, s72, 28")
        a("s_and_b32 s72, s72, 31")
        a("s_lshl2_add_u32 s72, s72, s3")
        a("s_mul_i32 s72, s72, 14336")
        a(f"s_xor_b32 s73, s{S_SPARE}, {OOB}")
        a("s_add_u32 s72, s72, s73")
        a("v_lshlrev_b32 v158, 7, v1")
        a("buffer_load_dword v159, v158, s[52:55], s72 offen")
        a("s_add_u32 s72, s72, 6144")
        a("buffer_load_dword v159, v158, s[52:55], s72 offen")
    def ld_q():
        srd(a, 52, P_Q, 0x200000)
        a("s_add_u32 s73, s68, 0x100000")
        a("buffer_load_dwordx4 v[180:183], v2, s[52:55], s68 offen")
        T["q"] = a("buffer_load_dwordx4 v[184:187], v2, s[52:55], s73 offen")
    def clr_ops(which):
        l = []
        if "a" in which: l += [("CLR", f"buffer_store_dwordx4 v[244:247], v9, s[4:7], s{S_YO} offen sc1")]
        if "b" in which: l += [f"s_add_u32 s72, s{S_YO}, {64*16384}", ("CLR", "buffer_store_dwordx4 v[244:247], v9, s[4:7], s72 offen sc1")]
        if "h" in which: l += [f"s_add_u32 s72, s68, {WS_H2}", ("CLR", "buffer_store_dwordx4 v[244:247], v2, s[4:7], s72 offen sc1")]
        if "i" in which: l += [f"s_add_u32 s72, s68, {WS_H2 + 0x100000}", ("CLR", "buffer_store_dwordx4 v[244:247], v2, s[4:7], s72 offen sc1")]
        return l
    def clr():
        for o in clr_ops("bhi"): a(o)
    LD = dict(w=w4, x=lambda: xt(8, 0), y=lambda: xt(4, 0), z=lambda: xt(4, 256), m=ld_mod, n=ld_mod2, q=ld_q, t=ld_touch, d=ld_touchd, c=clr)
    PRE, MID, POST, AFT, LATE = OPT["ord"].split("/")
    assert sorted(set(PRE + MID + POST + AFT + LATE + OPT["cord"]) - set("tdDwxyzW-")) == sorted("mnqc")
    for c in PRE: LD[c]()
    a("v_lshrrev_b32 v4, 3, v1")
    a("v_and_b32 v41, 7, v1")
    a("s_mul_i32 s72, s60, 4608")
    a("s_lshl_b32 s73, s61, 3")
    a("s_add_u32 s72, s72, s73")
    a(f"s_add_u32 s72, s72, {L_UU}")
    a(f"v_sub_u32 v{A_SW}, 3, v6")
    a(f"v_xor_b32 v{A_SW}, v{A_SW}, v41")
    a("v_lshlrev_b32 v38, 7, v5")
    a(f"v_lshl_add_u32 v{A_SW}, v{A_SW}, 4, v38")
    a(f"v_add_u32 v{A_SW}, s72, v{A_SW}")
    a(f"v_xor_b32 v{A_SW2}, 64, v{A_SW}")
    a(f"v_xor_b32 v{A_SR}, v1, v4")
    a(f"v_lshlrev_b32 v{A_SR}, 4, v{A_SR}")
    a(f"v_add_u32 v{A_SR}, s72, v{A_SR}")
    a(f"v_xor_b32 v{A_A}, 1, v{A_L1}")
    a(f"v_mul_u32_u24 v{A_A}, 4156, v{A_A}")
    a(f"v_lshl_add_u32 v{A_A}, v37, 2, v{A_A}")
    a(f"v_lshl_add_u32 v{A_A}, v6, 4, v{A_A}")
    a("s_add_u32 s72, s65, s61")
    a(f"s_add_u32 s72, s72, {L_KC + 4}")
    a(f"v_add_u32 v{A_A}, s72, v{A_A}")
    for i in range(1, 4): a(f"v_add_u32 v{A_A+i}, {1024*i}, v{A_A}")
    a(f"v_lshlrev_b32 v{A_KP}, 15, v4")
    a(f"v_lshl_add_u32 v{A_KP}, v41, 4, v{A_KP}")
    a(f"s_lshl_b32 s{S_KP}, s3, 19")
    a("s_lshl_b32 s72, s2, 7")
    a(f"s_add_u32 s{S_KP}, s{S_KP}, s72")
    a(f"s_add_u32 s{S_KP+1}, s{S_KP}, {8*32768}")
    a(f"v_bfe_u32 v{A_KW}, v1, 2, 1")
    a(f"v_mul_u32_u24 v{A_KW}, 4608, v{A_KW}")
    a(f"v_lshl_add_u32 v{A_KW}, v40, 4, v{A_KW}")
    a("v_lshlrev_b32 v38, 6, v4")
    a(f"v_sub_u32 v{A_KW}, v{A_KW}, v38")
    a("s_lshl_b32 s72, s3, 10")
    a(f"s_sub_u32 s73, {L_UU + 55*64}, s72")
    a(f"v_add_u32 v{A_KW}, s73, v{A_KW}")
    a(f"v_add_u32 v{A_RR}, s72, v2")
    a(f"s_add_u32 s72, s72, {L_EX}")
    a(f"v_xor_b32 v{A_XR}, v1, v4")
    a(f"v_lshlrev_b32 v{A_XR}, 4, v{A_XR}")
    a(f"v_add_u32 v{A_XR}, s72, v{A_XR}")
    a(f"v_lshlrev_b32 v{A_B}, 5, v5")
    a("v_lshlrev_b32 v38, 4, v6")
    a(f"v_sub_u32 v{A_B}, v38, v{A_B}")
    a("s_mul_i32 s72, s60, 4608")
    a("s_add_u32 s72, s72, s61")
    a(f"s_add_u32 s72, s72, {L_UU + 480}")
    a(f"v_add_u32 v{A_B}, s72, v{A_B}")
    a(f"v_lshl_add_u32 v{A_XW}, v5, 2, v6")
    a(f"v_lshrrev_b32 v38, 3, v{A_XW}")
    a(f"v_xor_b32 v{A_XW}, v{A_XW}, v38")
    a(f"v_lshlrev_b32 v{A_XW}, 4, v{A_XW}")
    a("s_lshl_b32 s72, s3, 12")
    a(f"s_add_u32 s72, s72, {L_EX}")
    a(f"v_add_u32 v{A_XW}, s72, v{A_XW}")
    a("s_lshl_b32 s72, s3, 9")
    a(f"s_sub_u32 s72, {L_UU + 4088 - 2048}, s72")
    a(f"v_lshlrev_b32 v{A_KE}, 3, v1")
    a(f"v_sub_u32 v{A_KE}, s72, v{A_KE}")
    w1_tr_setup(a, A_TR)
    a(f"v_lshlrev_b32 v{A_MW}, 3, v6")
    a(f"v_lshl_add_u32 v{A_MW}, v{A_L1}, 5, v{A_MW}")
    a("s_lshl_b32 s72, s3, 6")
    a(f"s_add_u32 s72, s72, {L_MP}")
    a(f"v_add_u32 v{A_MW}, s72, v{A_MW}")
    a(f"v_lshlrev_b32 v{A_MS}, 2, v5")
    a(f"v_add_u32 v{A_MR}, {L_MP}, v{A_MS}")
    a("v_min_u32 v38, 1, v6")
    a(f"v_lshl_add_u32 v{A_MS}, v38, 26, v{A_MS}")
    a(f"v_lshlrev_b32 v{A_FL}, {OPT['fs']}, v0")
    a(f"v_lshlrev_b32 v{A_ML}, 5, v1")
    a(f"v_lshlrev_b32 v{A_YL}, 6, v0")
    a(f"v_lshlrev_b32 v{A_RW}, 2, v0")
    a(f"s_lshr_b32 s{S_YL}, s{S_ROW}, 2")
    a(f"s_lshl_b32 s{S_YL}, s{S_YL}, 14")
    a(f"s_and_b32 s72, s{S_ROW}, 3")
    a("s_lshl_b32 s72, s72, 4")
    a(f"s_add_u32 s{S_YL}, s{S_YL}, s72")
    a(f"s_add_u32 s{S_YL}, s{S_YL}, {WS_Y}")
    for i in range(4): a(f"v_mov_b32 v{44+i}, 0")
    a("v_lshrrev_b32 v38, 5, v1")
    a("v_and_b32 v39, 31, v1")
    a("v_mul_u32_u24 v38, 4608, v38")
    a("v_lshl_add_u32 v38, v39, 4, v38")
    a(f"v_add_u32 v38, {L_UU + 4096}, v38")
    a("ds_write_b128 v38, v[44:47]")
    a("v_bfe_u32 v38, v1, 1, 1")
    a("v_mul_u32_u24 v38, 4160, v38")
    a(f"v_lshl_add_u32 v38, v{A_L1}, 4, v38")
    a(f"s_add_u32 s72, s65, {L_KC}")
    a("v_add_u32 v38, s72, v38")
    a("v_cmp_eq_u32 vcc, 3, v40")
    a("s_waitcnt lgkmcnt(0)")
    a("s_lshl_b32 s44, s44, 16")
    a("v_mov_b32 v39, s44")
    a("v_cndmask_b32 v47, v47, v39, vcc")
    a("s_mov_b64 exec, 0xf")
    a("ds_write_b128 v38, v[44:47]")
    a("s_mov_b64 exec, -1")
    a(f"s_mul_i32 s{S_TAG}, s{S_TAG}, 0x9e3779b1")
    a(f"s_add_u32 s{S_TAG}, s{S_TAG}, 0x7f4a7c15")
    a(f"v_mov_b32 v{A_TG}, s{S_TAG}")
    a(f"s_lshl_b32 s44, s{S_D}, 16")
    a(f"s_and_b32 s45, s{S_D}, s{S_HI}")
    stamp(a, 2)
    a.wait(tclr)
    a("s_barrier")
    stamp(a, 3)
    a(f"buffer_store_dword v{A_TG}, v{A_FS}, s[4:7], s70 offen sc1")
    for c in MID: LD[c]()
    a.wait(tkv0)
    stamp(a, "kd")
    ld_f0 = flag_load(WS_F0, 239)
    if OPT["f0at"] == -2:
        for o in ld_f0: tf = a(o)
    for i in range(11):
        a(f"v_lshlrev_b32 v{50+2*i}, 16, v{10+i}")
        a(f"v_and_b32 v{51+2*i}, s{S_HI}, v{10+i}")
    for j in range(4):
        for c in range(2):
            src = 32 + 2 * c + (j >> 1)
            if j & 1: a(f"v_and_b32 v{88+2*j+c}, s{S_HI}, v{src}")
            else: a(f"v_lshlrev_b32 v{88+2*j+c}, 16, v{src}")
    for j in (3, 2, 1, 0):
        for i in range(8):
            if j == 3: a(f"v_pk_mul_f32 {P2(96+2*i)}, {P2(50+2*(i+3-j))}, {P2(88+2*j)}")
            else: a(f"v_pk_fma_f32 {P2(96+2*i)}, {P2(50+2*(i+3-j))}, {P2(88+2*j)}, {P2(96+2*i)}")
    for i in range(8):
        a(f"v_lshlrev_b32 v{72+2*i}, 16, v{21+i}")
        a(f"v_and_b32 v{73+2*i}, s{S_HI}, v{21+i}")
    for i in range(8):
        a(f"v_pk_mul_f32 {P2(96+2*i)}, {P2(96+2*i)}, {P2(72+2*i)}")
    for c in range(2):
        for d in range(4):
            a(f"v_cvt_pk_bf16_f32 v{112+4*c+d}, v{96+2*(7-2*d)+c}, v{96+2*(6-2*d)+c}")
        san(a, range(112 + 4 * c, 116 + 4 * c))
        a(f"ds_write_b128 v{A_SW2 if c else A_SW}, {Q4(112+4*c)}")
    r0 = a(f"ds_read_b128 v[112:115], v{A_SR}")
    r1 = a(f"ds_read_b128 v[116:119], v{A_SR} offset:1024")
    a.wait(r0)
    a("buffer_store_dwordx4 v[112:115], v2, s[4:7], s69 offen sc1")
    a.wait(r1)
    a("buffer_store_dwordx4 v[116:119], v2, s[4:7], s69 offen offset:1024 sc1")
    stamp(a, 4)
    if OPT["f0at"] == -1:
        for o in ld_f0: tf = a(o)
    for c in POST: LD[c]()
    a.wait(tkern)
    a("s_barrier")
    stamp(a, "k0")
    A = lambda rr, q: 128 + (rr * 8 + q) * 4
    n0 = OPT["n0"]
    for rr in range(4):
        for q in range(8):
            if rr * 8 + q == OPT["f0at"]:
                for o in ld_f0: tf = a(o)
            if rr * 8 + q == OPT["aftat"]:
                for c in AFT: LD[c]()
            o = (64 * rr + 512 * (q & 1)) // 4
            a(f"ds_read2_b32 a[{A(rr,q)}:{A(rr,q)+1}], v{A_A + (q >> 1)} offset0:{o} offset1:{o+1}")
            a(f"ds_read2_b32 a[{A(rr,q)+2}:{A(rr,q)+3}], v{A_A + (q >> 1)} offset0:{o+2} offset1:{o+3}")
            if (q & 1) and n0 > 0:
                for o in w1q.pop(0): a(o)
                n0 -= 1
    stamp(a, "af")
    ld_kv = [f"buffer_load_dwordx4 v[16:19], v{A_KP}, s[4:7], s{S_KP} offen sc1", f"buffer_load_dwordx4 v[20:23], v{A_KP}, s[4:7], s{S_KP+1} offen sc1"]
    def poll():
        stamp(a, 5)
        a.wait(tf)
        for o in flag_chk(239): a(o)
        k.retry(ld_f0, flag_chk(239))
        for o in ld_kv: T["KV"] = a(o)
        stamp(a, 6)
        for c in LATE: LD[c]()
        for _ in range(OPT["n1"]):
            for o in w1q.pop(0): a(o)
        if OPT["bg1"]: a.bg = w1q; a.bg_every = OPT["bg1"]
    PR = (212, 248)
    def ln1():
        a.wait(T["q"])
        a("s_mov_b32 s67, 0x3f803f80")
        for i in range(4): a(f"v_mov_b32 v{188+i}, 0")
        for i in range(4):
            for h in range(2):
                a(f"v_dot2c_f32_bf16 v{188+2*h}, s67, v{180+4*h+i}")
                a(f"v_dot2c_f32_bf16 v{189+2*h}, v{180+4*h+i}, v{180+4*h+i}")
        for h in range(2):
            for i in range(4):
                a(f"v_lshlrev_b32 v{220+8*h+2*i}, 16, v{180+4*h+i}")
                a(f"v_and_b32 v{221+8*h+2*i}, s{S_HI}, v{180+4*h+i}")
        for dpp in WAVE_RED:
            for i in range(4): a(f"v_add_f32_dpp v{188+i}, v{188+i}, v{188+i} {dpp} bank_mask:0xf")
        ln_finish(a, [(188, 189, 192), (190, 191, 193)])
        for h in range(2):
            a(f"v_readlane_b32 s{36+2*h}, v{189+2*h}, 63")
            a(f"v_readlane_b32 s{37+2*h}, v{188+2*h}, 63")
        for h in range(2): a(f"v_mov_b32 v{192+2*h}, s{37+2*h}")
        for h in range(2):
            for i in range(0, 8, 2): a(f"v_pk_fma_f32 {P2(PR[h]+i)}, {P2(220+8*h+i)}, s[{36+2*h}:{37+2*h}], {P2(192+2*h)} op_sel_hi:[1,0,0]")
    if OPT["ln1at"] == 0: ln1()
    if OPT["pollat"] == -1: poll()

    def modblock():
        a.wait(T["mod"])
        stamp(a, "m0")
        E, SV, UP, AC = 236, 212, 220, 228
        for i in range(4):
            a(f"v_lshlrev_b32 v{160+i}, 16, v{160+i}")
            a(f"v_mul_f32 v{E+i}, 0xbfb8aa3b, v{160+i}")
        for i in range(4): a(f"v_exp_f32 v{E+i}, v{E+i}")
        for i in range(4): a(f"v_add_f32 v{E+i}, 1.0, v{E+i}")
        for i in range(4): a(f"v_rcp_f32 v{E+i}, v{E+i}")
        for i in range(4): a(f"v_mul_f32 v{160+i}, v{160+i}, v{E+i}")
        for i in range(4): a(f"v_cvt_pk_bf16_f32 v{E+i}, v{160+i}, v{160+i}")
        for i in range(4): a(f"v_lshlrev_b32 v{SV+2*i}, 16, v{E+i}")
        for i in range(4):
            for d in range(4):
                a(f"v_lshlrev_b32 v{UP+2*d}, 16, v{164+4*i+d}")
                a(f"v_and_b32 v{UP+1+2*d}, s{S_HI}, v{164+4*i+d}")
            for d in range(4):
                if i == 0: a(f"v_pk_mul_f32 {P2(AC+2*d)}, {P2(UP+2*d)}, {P2(SV+2*i)} op_sel_hi:[1,0]")
                else: a(f"v_pk_fma_f32 {P2(AC+2*d)}, {P2(UP+2*d)}, {P2(SV+2*i)}, {P2(AC+2*d)} op_sel_hi:[1,0,1]")
        for p in range(4): a(f"v_permlane32_swap_b32 v{AC+p}, v{AC+4+p}")
        for p in range(4): a(f"v_add_f32 v{AC+p}, v{AC+p}, v{AC+4+p}")
        for p in range(2): a(f"v_permlane16_swap_b32 v{AC+p}, v{AC+2+p}")
        for p in range(2): a(f"v_add_f32 v{AC+p}, v{AC+p}, v{AC+2+p}")
        for rr in (8, 4, 2):
            for p in range(2):
                a(f"v_add_f32_dpp v{AC+p}, v{AC+p}, v{AC+p} row_ror:{rr} row_mask:0xf bank_mask:0xf")
        T["MW"] = a(f"ds_write_b64 v{A_MW}, {P2(AC)}")
        stamp(a, "m1")
    if OPT["modat"] < 0: modblock()
    if OPT["ln1at"] == 2: ln1()
    a.bg = []
    print("W1a left at conv start", len(w1q), file=sys.stderr)
    stamp(a, "tr")
    a.wait(T["KV"])
    stamp(a, "kv")
    ck = check_ops(range(16, 24), 29)
    for o in ck: a(o)
    k.retry(ld_kv, ck)
    a(f"ds_write_b128 v{A_KW}, v[16:19] offset:512")
    a(f"ds_write_b128 v{A_KW}, v[20:23]")
    a("s_waitcnt lgkmcnt(0)")
    a("s_barrier")
    stamp(a, 7)
    B = lambda rr, d: 64 + (rr & 1) * 32 + d * 4
    tb = {}
    def loadB(key, rr, d):
        tb[key, rr, d] = a.emit(f"ds_read_b128 {Q4(B(rr,d))}, v{A_B} offset:{3584 - 512*d + 64*rr}")
    for d in range(4): loadB(0, 0, d)
    G = Gaps(a, 4)
    G.pace[1] = OPT["p1"]
    KD = (24, 168)
    def kd_ops(h):
        ops = []
        for c in range(2):
            for i in range(4):
                e = 3 - i
                kr = 10 + 4 * h + 2 * c + (e >> 1)
                ops.append(f"v_and_b32 v{KD[h]+4*c+i}, s{S_HI}, v{kr}" if e & 1 else f"v_lshlrev_b32 v{KD[h]+4*c+i}, 16, v{kr}")
        return ops
    rec = Rec()
    rec(f"ds_read2_b32 v[20:21], v{A_MR} offset0:0 offset1:16")
    rec(("MP", f"ds_read2_b32 v[22:23], v{A_MR} offset0:32 offset1:48"))
    rec(Delay(4))
    rec(lambda: a.wait(T["MP"]))
    rec("v_add_f32 v20, v20, v21")
    rec("v_add_f32 v22, v22, v23")
    rec("v_add_f32 v20, v20, v22")
    rec("v_cvt_pk_bf16_f32 v20, v20, v20")
    rec("v_lshlrev_b32 v20, 16, v20")
    rec("v_add_f32 v20, s43, v20")
    rec("v_cvt_pk_bf16_f32 v20, v20, v20")
    rec("v_lshlrev_b32 v20, 16, v20")
    rec(f"buffer_store_dword v20, v{A_MS}, s[4:7], s{S_MO} offen sc1")
    rec(lambda: stamp(a, "m2"))
    modfin = rec.l + kd_ops(1)
    rec = Rec()
    for h in range(2):
        for c in range(2):
            rec(("KVE", f"ds_read_b64 {P2(10+4*h+2*c)}, v{A_KE} offset:{c*4608 + (1-h)*2048}"))
    rec(f"s_min_u32 s60, s{S_FO}, 1")
    rec("s_lshl_b32 s60, s60, 30")
    rec(f"s_add_u32 s60, s60, {WS_EP}")
    rec(f"buffer_store_dword v{A_TG}, v{A_FS}, s[4:7], s60 offen sc1")
    rec(lambda: a.wait(T["KVE"]))
    for o in kd_ops(0): rec(o)
    if OPT["modat"] < 0: rec.l += modfin
    G.add(0, rec.l)
    class Cap:
        pass
    def cap(f):
        r = []
        save = a.item
        def fake(o):
            r.append(o); return None
        a.item = fake
        f()
        a.item = save
        return r
    st1 = []
    for c in OPT["cord"]:
        if c == "W": st1 += sum(w1q, []) + [lambda: T.__setitem__("W1done", 1)]; w1q.clear()
        elif c == "w":
            for _ in range(4): st1 += w1q.pop(0)
        elif c == "c": st1 += clr_ops("bhi")
        elif c == "n": st1 += named("mod", cap(ld_mod2))
        elif c == "q": st1 += named("q", cap(ld_q))
        elif c == "z": st1 += xt_ops(4, 256, 18, 19)
        elif c == "d": st1 += cap(ld_touchd)
        elif c == "D":
            r = Rec()
            srd(r, 52, P_WD, 1792 * 1024)
            r("s_lshl2_add_u32 s72, s2, s3")
            r("s_mul_i32 s72, s72, 1792")
            r("v_min_u32 v158, 13, v1")
            r("v_lshlrev_b32 v158, 7, v158")
            r("buffer_load_dword v159, v158, s[52:55], s72 offen")
            st1 += r.l
        elif c == "-": st1 += [Delay(8)]
    G.add(1, st1)
    ACC = lambda nt: 32 + nt * 4
    ml = []
    for key in range(2):
        nd = 4 if key == 0 else 8
        lo = 4 * key
        for rr in range(4):
            if rr < 3: ml += [(key, rr, d, nt) for d in range(nd) for nt in range(max(lo, d), lo + 4)]
            else: ml += [(key, rr, d, nt) for nt in range(lo, lo + 4) for d in range(nt + 1)]
    pend = []
    seen = set()
    waited = set([(0, 0, 0)])
    hooks = {}
    def run_m(i):
        key, rr, d, nt = ml[i]
        for f in hooks.get(i, []): f()
        if (key, rr, d) not in seen:
            seen.add((key, rr, d))
            if key == 0: pend.extend([(0, rr + 1, d)] if rr < 3 else [(1, 0, d), (1, 0, d + 4)])
            elif rr < 3: pend.append((1, rr + 1, d))
        c = "0" if (rr == 0 and d == 0) else Q4(ACC(nt))
        a.emit(f"v_mfma_f32_16x16x32_bf16 {Q4(ACC(nt))}, {Q4(A(rr,nt-d),'a')}, {Q4(B(rr,d))}, {c}")
        fs = None
        if i + 1 < len(ml):
            nk = ml[i + 1][:3]
            if nk not in waited:
                waited.add(nk)
                while nk not in tb: loadB(*pend.pop(0))
                fs = lambda: a.wait(tb[nk])
        fm = (lambda: loadB(*pend.pop(0))) if pend else None
        G.gap(fs, fm)
    xw = lambda nt: ("XW", f"ds_write_b128 v{A_XW}, {Q4(ACC(nt))} offset:{(nt & 3)*1024}")
    last = {nt: max(i for i, m in enumerate(ml) if m[3] == nt) for nt in range(8)}
    def yfinal(h, pk):
        ops = []
        for c in range(2):
            y = 192 + c * 8; kd = KD[h] + 4 * c
            if pk:
                for i in (0, 2): ops.append(f"v_pk_add_f32 {P2(y+i)}, {P2(y+i)}, {P2(y+4+i)}")
                for i in (0, 2): ops.append(f"v_pk_fma_f32 {P2(y+i)}, {P2(kd+i)}, s[44:45], {P2(y+i)} op_sel:[0,{c},0] op_sel_hi:[1,{c},1]")
            else:
                for i in range(4): ops.append(f"v_add_f32 v{y+i}, v{y+i}, v{y+4+i}")
                for i in range(4): ops.append(f"v_fmac_f32 v{y+i}, s{44+c}, v{kd+i}")
        if h: ops.append(f"s_add_u32 s{S_YO}, s{S_YO}, {64*16384}")
        for i in range(4): ops.append(f"v_cvt_pk_bf16_f32 v{208+i}, v{192+i}, v{200+i}")
        for i in range(4): ops.append(f"v_min_u32 v{208+i}, s{S_SENT}, v{208+i}")
        ops.append(f"buffer_store_dwordx4 v[208:211], v9, s[4:7], s{S_YO} offen sc1")
        return ops
    yreads = [("Y", f"ds_read_b128 {Q4(192 + 4*w)}, v{A_XR} offset:{w*4096}") for w in range(4)]
    MR = dict(sa=(0, 64), ca=(1, 72), ga=(2, 24), sb=(3, 88), cb=(4, 80))
    ld_m = []
    for nm, (vec, r) in MR.items():
        ld_m.append(f"s_mov_b32 s62, {WS_MOD + vec*2048}")
        ld_m.append(f"buffer_load_dwordx4 {Q4(r)}, v{A_ML}, s[4:7], s62 offen sc1")
        ld_m.append(f"buffer_load_dwordx4 {Q4(r+4)}, v{A_ML}, s[4:7], s62 offen offset:16 sc1")
    ckm = check_ops(list(range(64, 96)) + list(range(24, 32)), 18)
    def ld_y(h, sr=62):
        return [f"s_add_u32 s{sr}, s{S_YL}, {h*64*16384}", f"buffer_load_dwordx4 v[20:23], v{A_YL}, s[4:7], s{sr} offen sc1"]
    cky = check_ops(range(20, 24), 18)
    rec = Rec()
    rec(Delay(4))
    rec(lambda: a.wait(T["XW"], T["CLR"]) if OPT["f1at"] == 3 else a.wait(T["XW"]))
    rec(lambda: stamp(a, "xb0"))
    rec("s_barrier")
    rec(lambda: stamp(a, "xb1"))
    for o in yreads: rec(o)
    if OPT["f1at"] == 3:
        for o in flag_store2(WS_F1): rec(o)
    rec(Delay(3))
    rec(lambda: a.wait(T["Y"]))
    for o in yfinal(0, False): rec(o)
    rec(lambda: stamp(a, "za"))
    rec(lambda: T.__setitem__("ZAdone", 1))
    xa_rest = rec.l
    def hook(i, f): hooks.setdefault(i, []).append(f)
    for nt in range(4): hook(last[nt] + 3, lambda nt=nt: G.st[0].insert(0, xw(nt)) if nt < 3 else G.add(0, [xw(nt)] + xa_rest))
    b4ops = [lambda: a.wait(T["W1"], T["CLR"]), lambda: stamp(a, "zb"), "s_barrier", lambda: T.__setitem__("B4done", 1)] + \
            (flag_store2(WS_F1, "s63") if OPT["f1at"] == 4 else []) + w1_tr(0, A_TR)
    b4 = [None]
    xdone = set()
    i3 = min(i for i, m in enumerate(ml) if m[:2] == (1, 3))
    if OPT["mat"] >= 0: hook(i3 + OPT["mat"], lambda: G.add(0, named("M", plain(ld_m))))
    ld_f1 = flag_load(WS_F1, 236)
    def yhook():
        assert not G.st[2], "mod final still pending"
        G.add(0, named("YL", ld_y(0)))
    hook(i3 + OPT["yat"], yhook)
    a.wait(tb[0, 0, 0])
    for i in range(len(ml)):
        if i == 40: stamp(a, 8)
        if i == OPT["modat"]:
            while T.get("mod") is None: a.item(G.st[1].pop(0))
            modblock()
            G.add(2, [Delay(2), lambda: a.wait(T["MW"]), "s_barrier"] + modfin)
        if b4[0] is None and "W1done" in T and "ZAdone" in T: b4[0] = i + OPT["b4lag"]
        if i == b4[0]: G.add(3, b4ops); print("b4 at mfma", i, file=sys.stderr)
        for nt in range(4, 7):
            if "B4done" in T and nt not in xdone and i >= last[nt] + 3:
                xdone.add(nt); G.st[0].insert(0, xw(nt))
        run_m(i)
    print("conv leftovers", [len(x) for x in G.st], file=sys.stderr)
    stamp(a, "cm")
    G.drain([0, 1, 2])
    if b4[0] is None or b4[0] >= len(ml): G.add(3, b4ops)
    while "B4done" not in T: a(G.st[3].pop(0))
    stamp(a, "c1")
    for nt in range(4, 8):
        if nt not in xdone: a(xw(nt))
    G.drain([3])
    a(f"v_add_u32 v18, {L_RSA}, v{A_RW}")
    a(f"v_add_u32 v19, {L_RSA}, v{A_RR}")
    for j in range(4): a(f"v_add_u32 v{VW+j}, {256*3584}, v{VW+j}")
    if OPT["mat"] < 0:
        for o in named("M", plain(ld_m)): a(o)
    if OPT["ln1at"] == 3: ln1()
    stamp(a, "c2")
    ckm = check_ops(list(range(64, 96)) + list(range(24, 32)), 96)
    cky = check_ops(range(20, 24), 96)
    a.wait(T["M"])
    for o in ckm: a(o)
    k.retry(ld_m, ckm)
    for i in range(0, 8, 2): a(f"v_pk_mul_f32 {P2(64+i)}, {P2(64+i)}, {P2(24+i)}")
    for i in range(0, 8, 2): a(f"v_pk_mul_f32 {P2(72+i)}, {P2(72+i)}, {P2(24+i)}")
    a.wait(T["YL"])
    stamp(a, "y0")
    for o in cky: a(o)
    k.retry(ld_y(0), cky)
    a("ds_write2st64_b32 v18, v20, v21 offset0:0 offset1:4")
    a("ds_write2st64_b32 v18, v22, v23 offset0:8 offset1:12")
    for h in range(2):
        for i in range(0, 8, 2): a(f"v_pk_fma_f32 {P2(PR[h]+i)}, {P2(PR[h]+i)}, {P2(72+i)}, {P2(64+i)}")
    a("s_waitcnt lgkmcnt(0)")
    a("s_barrier")
    stamp(a, "c3")
    XR = (176, 188)
    def row_ops(h, b, pk):
        r = Rec()
        x, hh_, st = b + 4, b + 12, b + 16
        r(f"v_mov_b32 v{st}, 0")
        r(f"v_mov_b32 v{st+1}, 0")
        for i in range(4):
            r(f"v_lshlrev_b32 v{x+2*i}, 16, v{b+i}")
            r(f"v_and_b32 v{x+1+2*i}, s{S_HI}, v{b+i}")
        if pk:
            for i in range(4): r(f"v_pk_fma_f32 {P2(x+2*i)}, {P2(x+2*i)}, {P2(PR[h]+2*i)}, {P2(220+8*h+2*i)}")
        else:
            for i in range(8): r(f"v_fma_f32 v{x+i}, v{x+i}, v{PR[h]+i}, v{220+8*h+i}")
        for i in range(4): r(f"v_cvt_pk_bf16_f32 v{XR[h]+i}, v{x+2*i}, v{x+1+2*i}")
        for i in range(4):
            r(f"v_dot2c_f32_bf16 v{st}, s67, v{XR[h]+i}")
            r(f"v_dot2c_f32_bf16 v{st+1}, v{XR[h]+i}, v{XR[h]+i}")
        r(f"s_add_u32 s66, s68, {WS_H2 + h*0x100000}")
        for dpp in WAVE_RED:
            for i in range(2): r(f"v_add_f32_dpp v{st+i}, v{st+i}, v{st+i} {dpp} bank_mask:0xf")
        ln_finish(r, [(st, st + 1, st + 2)])
        r(f"v_readlane_b32 s72, v{st+1}, 63")
        r(f"v_readlane_b32 s73, v{st}, 63")
        r(f"v_mov_b32 v{st}, s73")
        if pk:
            for i in range(4): r(f"v_pk_fma_f32 {P2(x+2*i)}, {P2(x+2*i)}, s[72:73], {P2(st)} op_sel_hi:[1,0,0]")
            for i in range(4): r(f"v_pk_fma_f32 {P2(x+2*i)}, {P2(x+2*i)}, {P2(80+2*i)}, {P2(88+2*i)}")
        else:
            for i in range(8): r(f"v_fma_f32 v{x+i}, v{x+i}, s72, v{st}")
            for i in range(8): r(f"v_fma_f32 v{x+i}, v{x+i}, v{80+i}, v{88+i}")
        for i in range(4): r(f"v_cvt_pk_bf16_f32 v{hh_+i}, v{x+2*i}, v{x+1+2*i}")
        san(r, range(hh_, hh_ + 4))
        r(f"buffer_store_dwordx4 {Q4(hh_)}, v2, s[4:7], s66 offen sc1")
        return r.l
    t = a("ds_read_b128 v[32:35], v19")
    for o in ld_f1: tf1 = a(o)
    for o in yreads: ty = a(o)
    a.bg = w1_groups(); a.bg_every = OPT["p2"]; a.flush_bg(OPT["n2"])
    a.wait(t)
    for o in row_ops(0, 32, True): a(o)
    stamp(a, "h0")
    a.wait(ty)
    for o in yfinal(1, True): a(o)
    stamp(a, 9)
    if OPT["dpost"] == 1: ld_touchd()
    a.bg_every = OPT["p2b"]
    S_ZS, S_ZM, S_PF = 70, 69, 61
    VZ = 108
    SL = lambda t: ((t + 2) % 4) * 16384
    def ld_z(t, sr=63):
        return [f"s_add_u32 m0, s{S_ZM}, {SL(t)}", f"s_add_u32 s{sr}, s{S_ZS}, {t*16*16384}"] + \
               [(f"Z{t}", f"buffer_load_dwordx4 v{VZ+i}, s[4:7], s{sr} offen offset:{i*1024} sc1 lds") for i in range(4)]
    a(f"s_lshl_b32 s{S_ZS}, s{S_RB}, 14")
    a(f"s_lshl_b32 s{S_ZM}, s3, 12")
    a(f"s_add_u32 s{S_ZS}, s{S_ZS}, s{S_ZM}")
    a(f"s_add_u32 s{S_ZS}, s{S_ZS}, {WS_H2}")
    a(f"s_add_u32 s{S_ZS}, s{S_ZS}, s{S_SPARE}")
    a(f"s_add_u32 s{S_ZM}, s{S_ZM}, {L_Z}")
    a("s_lshl_b32 s63, s3, 6")
    a(f"v_xor_b32 v{VZ}, s63, v2")
    for i in range(1, 4): a(f"v_xor_b32 v{VZ+i}, {16*i}, v{VZ}")
    S_DB, S_T2, S_HS, S_F2 = 16, 17, 24, 25
    a(f"s_and_b32 s{S_DB}, s{S_IDX}, 7")
    a(f"s_lshr_b32 s60, s{S_IDX}, 3")
    a(f"s_lshl_b32 s63, s{S_XCD}, 1")
    a("s_lshr_b32 s62, s60, 1")
    a("s_add_u32 s63, s63, s62")
    a(f"s_lshl_b32 s{S_F2}, s63, 13")
    a(f"s_mul_i32 s62, s3, {14*128}")
    a(f"s_add_u32 s{S_F2}, s{S_F2}, s62")
    a("s_and_b32 s60, s60, 1")
    a("s_lshl_b32 s60, s60, 4")
    a(f"s_add_u32 s{S_T2}, s60, s63")
    a(f"s_mul_i32 s{S_HS}, s{S_T2}, 56")
    a("s_mul_i32 s60, s3, 14")
    a(f"s_add_u32 s{S_HS}, s{S_HS}, s60")
    a(f"s_lshl_b32 s{S_HS}, s{S_HS}, 10")
    a(f"s_add_u32 s{S_HS}, s{S_HS}, {WS_HH}")
    a(f"s_mul_i32 s60, s{S_RB}, 56")
    a(f"s_add_u32 s60, s60, s{S_CT}")
    a("s_lshl_b32 s60, s60, 10")
    a(f"s_add_u32 s60, s60, s{S_SPARE}")
    a(f"s_add_u32 s{S_HO}, s60, {WS_HH}")
    a(f"s_lshl_b32 s{S_PF}, s{S_RB}, 13")
    a(f"s_lshl_b32 s60, s{S_CT}, 7")
    a(f"s_add_u32 s{S_PF}, s{S_PF}, s60")
    a(f"s_and_b32 s60, s{S_FO}, {OOB}")
    a(f"s_lshl_b32 s62, s{S_ROW}, 7")
    a(f"s_add_u32 s{S_FO}, s62, s60")
    ZA = 104
    a("v_xor_b32 v3, v6, v5")
    a("v_lshlrev_b32 v3, 4, v3")
    a("v_lshl_add_u32 v3, v5, 10, v3")
    a(f"v_add_u32 v{ZA}, {L_Z}, v3")
    for i in range(1, 4): a(f"v_xor_b32 v{ZA+i}, {64*i}, v{ZA}")
    a(f"v_add_u32 v3, s{S_ZM}, v2")
    a.wait(tf1)
    for o in flag_chk(236): a(o)
    k.retry(ld_f1, flag_chk(236))
    a("s_barrier")
    print("W1b left:", len(a.bg), file=sys.stderr)
    a.flush_bg()
    stamp(a, "w2")
    ld_yb = [f"s_add_u32 s62, s{S_YL}, {64*16384}", f"buffer_load_dwordx4 v[156:159], v{A_YL}, s[4:7], s62 offen sc1"]
    for o in ld_z(0) + named("YB", ld_yb) + ld_z(1): a(o)
    srd(a, 48, P_WD, 1792 * 1024)
    a(f"s_mul_i32 s{S_WS}, s3, {448*1024}")
    a(f"s_lshl_b32 s60, s{S_DB}, 7")
    a(f"s_add_u32 s{S_WS}, s{S_WS}, s60")
    if OPT.get("x_lin"):
        a(f"s_lshl2_add_u32 s{S_WS}, s{S_DB}, s3")
        a(f"s_mul_i32 s{S_WS}, s{S_WS}, 57344")
    a(f"s_mul_i32 s{S_WM}, s3, 24576")
    VD, VT = 116, 124
    setup2 = Rec()
    setup2("v_bfe_u32 v120, v1, 1, 2")
    setup2("v_xor_b32 v120, v120, v6")
    setup2("v_and_b32 v121, 1, v1")
    setup2("v_lshl_add_u32 v120, v120, 1, v121")
    setup2("v_lshlrev_b32 v121, 10, v4")
    setup2(f"v_lshl_add_u32 v{VD}, v120, 4, v121")
    for j in range(1, 4): setup2(f"v_add_u32 v{VD+j}, {j*(8192-1024)}, v{VD}")
    setup2("v_lshrrev_b32 v120, 2, v1")
    setup2("v_lshlrev_b32 v120, 7, v120")
    setup2("v_and_b32 v121, 3, v1")
    setup2("v_lshl_add_u32 v120, v121, 3, v120")
    setup2(f"v_add_u32 v120, s{S_WM}, v120")
    setup2("v_bfe_u32 v121, v1, 3, 2")
    for dt in range(4):
        setup2(f"v_xor_b32 v122, {dt}, v121")
        setup2(f"v_lshl_add_u32 v{VT+dt}, v122, 5, v120")
    def wd_dma(u):
        l = [f"s_add_u32 m0, s{S_WM}, {(u % 6)*4096}"]
        for j in range(4): l.append((f"WD{u}", f"buffer_load_dwordx4 v{2 if OPT.get('x_lin') else VD+j}, s[48:51], s{S_WS} offen offset:{j*1024} lds"))
        l.append(f"s_add_u32 s{S_WS}, s{S_WS}, {4096 if OPT.get('x_lin') else 32768}")
        return l
    WR = lambda u, dt: ("v", 128 + (u * 4 + dt) * 4) if u < 8 else ("a", 112 + ((u - 8) * 4 + dt) * 4)
    def wd_tr(u):
        l = []
        for dt in range(4):
            kk, r = WR(u, dt)
            for h in range(2):
                l.append((f"WT{u}", f"ds_read_b64_tr_b16 {kk}[{r+2*h}:{r+2*h+1}], v{VT+dt} offset:{(u % 6)*4096 + h*2048}"))
        return l
    H3R = [64, 68, 72, 76, 96, 100, 104, 108, 4, 12, 116, 120, 112, 124]
    HB = lambda p, s: ("v", H3R[s]) if p == 3 else ("a", (208 + 4 * s) % 256) if p == 2 else ("a", p * 56 + 4 * s)
    def ld_h(p, s, sr=63):
        o = []
        if s % 4 == 0: o.append(f"s_add_u32 s{sr}, s{S_HS}, {p*32*56*1024 + s*1024}")
        kk, r = HB(p, s)
        o.append((f"H{p}_{s}", f"buffer_load_dwordx4 {Q4(r, kk)}, v2, s[4:7], s{sr} offen offset:{(s%4)*1024} sc1"))
        return o
    def ld_f2(base, vd, va):
        return [f"v_min_u32 v{va}, 13, v1", f"v_lshlrev_b32 v{va}, 7, v{va}", f"s_add_u32 s62, s{S_F2}, {base}",
                f"buffer_load_dword v{vd}, v{va}, s[4:7], s62 offen sc1"]
    def ht_ops(p0, np_, va, vb):
        r = Rec()
        r(f"v_min_u32 v{va}, 13, v5")
        r(f"v_lshlrev_b32 v{va}, 7, v{va}")
        if np_ > 1:
            r(f"v_and_b32 v{vb}, {np_-1}, v6")
            r(f"v_mul_u32_u24 v{vb}, {32*56*1024}, v{vb}")
            r(f"v_add_u32 v{va}, v{va}, v{vb}")
        r(f"s_mul_i32 s62, s{S_DB}, {14*128}")
        r(f"s_add_u32 s62, s62, s{S_HS}")
        if p0: r(f"s_add_u32 s62, s62, {p0*32*56*1024}")
        r(f"buffer_load_dword v{vb}, v{va}, s[4:7], s62 offen sc1")
        return r.l
    chk1 = lambda vd: [f"v_cmp_ne_u32 vcc, s{S_TAG}, v{vd}"]
    def ld_fb(vd, va, sr=62):
        return [f"v_bfe_u32 v{va}, v1, 2, 1", f"v_lshlrev_b32 v{va}, 7, v{va}", f"v_and_b32 v{vd}, 3, v1", f"v_add_lshl_u32 v{va}, v{va}, v{vd}, 7",
                f"s_lshl_b32 s{sr}, s{S_T2}, 9", f"s_add_u32 s{sr}, s{sr}, {WS_FB}", f"buffer_load_dword v{vd}, v{va}, s[4:7], s{sr} offen sc1"]
    RB0 = 131072
    XV, GV, WV = 80, 88, 92
    rec = Rec()
    srd(rec, 8, P_OUT, 0x200000)
    rec("v_lshrrev_b32 v96, 4, v0")
    rec("v_lshlrev_b32 v11, 10, v96")
    rec("v_lshl_add_u32 v11, v5, 3, v11")
    rec("v_lshlrev_b32 v97, 4, v5")
    rec(f"s_lshl_b32 s72, s{S_T2}, 14")
    rec(f"s_lshl_b32 s73, s{S_DB}, 7")
    rec("s_add_u32 s71, s72, s73")
    rec(f"s_lshl_b32 s73, s{S_DB}, 8")
    rec(f"s_add_u32 s66, s73, {WS_MOD + 5*2048}")
    rec("v_xor_b32 v98, v6, v5")
    rec("v_lshlrev_b32 v98, 4, v98")
    rec("v_lshl_add_u32 v98, v5, 8, v98")
    rec("s_lshl_b32 s72, s3, 12")
    rec(f"s_add_u32 s72, s72, {RB0}")
    rec(f"v_add_u32 v{WV}, s72, v98")
    for dt in range(1, 4): rec(f"v_xor_b32 v{WV+dt}, {64*dt}, v{WV}")
    rec("v_xor_b32 v10, v5, v96")
    rec("v_lshlrev_b32 v10, 4, v10")
    rec("v_lshl_add_u32 v10, v96, 8, v10")
    rec(f"v_add_u32 v10, {RB0}, v10")
    setup3 = rec.l
    ld_g = [f"buffer_load_dwordx4 {Q4(GV)}, v97, s[4:7], s66 offen sc1"]
    ld_r = []
    for p in range(4):
        ld_r.append(f"s_add_u32 s62, s71, {WS_X1 + p*32*16384}")
        ld_r.append(f"buffer_load_dwordx2 {P2(XV+2*p)}, v11, s[4:7], s62 offen sc1")
    ckg = check_ops(range(GV, GV + 4), 14)
    res1 = setup3 + ld_fb(99, 98, 72) + named("GB", ld_g)
    res2 = [lambda: a.wait(T["GB"])] + chk1(99) + [lambda: k.retry(ld_fb(99, 98), chk1(99))] + ld_r + ckg + [lambda: k.retry(ld_g, ckg)]
    xs_ops = [f"s_add_u32 s60, s68, {WS_X1}", f"buffer_store_dwordx4 {Q4(XR[0])}, v2, s[4:7], s60 offen sc1",
              "s_add_u32 s60, s60, 0x100000", ("XS", f"buffer_store_dwordx4 {Q4(XR[1])}, v2, s[4:7], s60 offen sc1")]
    for o in setup2.l: a(o)
    L_RS2 = L_Z - 4096
    a(f"v_add_u32 v{A_RW}, {L_RS2}, v{A_RW}")
    a(f"v_add_u32 v{A_RR}, {L_RS2}, v{A_RR}")
    ckyb = check_ops(range(156, 160), 14)
    yb1 = [lambda: a.wait(T["YB"])] + ckyb + [lambda: k.retry(ld_yb, ckyb),
           f"ds_write2st64_b32 v{A_RW}, v156, v157 offset0:0 offset1:4", ("YW", f"ds_write2st64_b32 v{A_RW}, v158, v159 offset0:8 offset1:12"),
           Delay(3), lambda: a.wait(T["YW"])]
    yb2 = [("YR", f"ds_read_b128 v[156:159], v{A_RR}"), Delay(5), lambda: a.wait(T["YR"])]
    a.wait(T["W1"])
    stamp(a, "y1")
    a("s_barrier")
    a(f"s_cmp_lg_u32 s{S_SPARE}, 0")
    a("s_cbranch_scc1 L_spare")
    for o in w1_tr(1, A_TR): a(o)
    def verify_ops(t):
        rd = [("ZV", f"ds_read_b128 {Q4(64+4*i)}, v3 offset:{SL(t) + i*1024}") for i in range(4)]
        ck = check_ops(range(64, 80), 14)
        return [lambda: a.wait(T[f"Z{t}"])] + rd + [Delay(5), lambda: a.wait(T["ZV"])] + ck + [lambda: k.retry(ld_z(t, 62), ck, mid=rd)]
    stamp(a, 10)
    for o in verify_ops(0): a(o)
    a("s_barrier")
    for o in yb1: a(o)
    a("s_barrier")
    a(yb2[0])
    stamp(a, 11)
    NB = 4
    BF = lambda n: 16 + (n % NB) * 4
    tok = {}
    def loadZ(n):
        t, s = divmod(n, 16)
        tok[n] = a.emit(f"ds_read_b128 {Q4(BF(n))}, v{ZA + (s & 3)} offset:{SL(t) + (s >> 2)*256}")
    for n in range(NB - 1): loadZ(n)
    GA = lambda t: 32 + (t & 1) * 16
    def epi_ops(t):
        acc = GA(t)
        ops = [f"v_mul_f32 v{acc+i}, v{acc+i}, v{acc+8+i}" for i in range(8)]
        ops += [f"v_cvt_pk_bf16_f32 v{112+i}, v{acc+2*i}, v{acc+2*i+1}" for i in range(4)]
        if t >= 6: ops += [f"v_min_u32 v{112+i}, s{S_SENT}, v{112+i}" for i in range(4)]
        ops.append((f"HS{t}", f"buffer_store_dwordx4 v[112:115], v2, s[4:7], s{S_HO} offen sc1"))
        ops.append(f"s_add_u32 s{S_HO}, s{S_HO}, {16*56*1024}")
        return ops
    G = Gaps(a, 5)
    G.order = [0, 3, 4, 1, 2]
    G.pace[1] = OPT.get("p3", 4)
    a.wait(tok[0])
    for t in range(8):
        stamp(a, f"t{t}")
        if t >= 1: G.add(0, [Delay(3)] + epi_ops(t - 1))
        if t + 2 < 8 and not (t == 2 and OPT["z4late"]): G.add(1, ld_z(t + 2))
        if t == 0:
            G.add(3, [Delay(OPT["hcd"]), f"s_add_u32 s60, s{S_HO}, {6*16*56*1024}", "buffer_store_dwordx4 v[244:247], v2, s[4:7], s60 offen sc1",
                      f"s_add_u32 s60, s60, {16*56*1024}", "buffer_store_dwordx4 v[244:247], v2, s[4:7], s60 offen sc1"])
        if t == 1: G.add(2, xs_ops)
        if 2 <= t <= 5:
            u = 2 * (t - 2)
            G.add(2, [lambda u=u: a.wait(T[f"WD{u+1}"])] + wd_tr(u) + wd_tr(u + 1))
        if t <= 6:
            u = 2 * t
            if u >= 6: G.add(1, [lambda u=u: a.wait(T[f"WT{u-5}"])])
            G.add(1, wd_dma(u) + wd_dma(u + 1))
            if t == 2 and OPT["z4late"]: G.add(1, ld_z(4))
        for s in range(16):
            n = t * 16 + s
            if s == (8 if t == 3 else 6) and t + 1 < 8: G.add(0, verify_ops(t + 1))
            if s == OPT["fset"] and t in (3, 5, 7):
                G.add(3, [lambda t=t: a.wait(T[f"HS{t-2}"])] + flag_store({3: WS_F20, 5: WS_F2A, 7: WS_F2B}[t], 8, 7, off=f"s{S_PF}"))
            if (t, s) == OPT["f0ld"]: G.add(0, named("F20", ld_f2(WS_F20, 12, 13)))
            if (t, s) == OPT["f0ck"]:
                G.add(0, [lambda: a.wait(T["F20"])] + chk1(12) + [lambda: k.retry(ld_f2(WS_F20, 12, 13), chk1(12))] + (ht_ops(0, 1, 96, 97) if OPT["ht"] else []))
            if (t, s) == (7, 1):
                G.pace[1] = OPT["hp"]
                G.add(1, sum((ld_h(0, ss) for ss in range(14)), []))
            if (t, s) == (0, 0): G.add(2, row_ops(1, 156, False))
            if (t, s) == (4, 9): G.add(4, res1)
            if (t, s) == (6, 3): G.add(0, res2)
            if t == 7 and s == 8: G.add(2, [lambda: a.wait(T["WD13"])])
            if t == 7 and 8 <= s <= 13: G.add(2, wd_tr(s))
            if (t, s) == OPT["f2ld"]: G.add(0, named("F2", ld_f2(WS_F2A, 15, 9)))
            if (t, s) == OPT["f2ck"]:
                G.add(0, [lambda: a.wait(T["F2"])] + chk1(15) + [lambda: (k.retry(ld_f2(WS_F2A, 15, 9), chk1(15)), T.__setitem__("F2Adone", 1))] + (ht_ops(1, 1, 96, 97) if OPT["ht"] else []))
            if (t, s) == OPT["f2bld"]: G.add(0, named("F2", ld_f2(WS_F2B, 12, 13)))
            if t == 7 and s >= OPT["hstart"] and "F2Adone" in T and "Hgo" not in T:
                T["Hgo"] = 1
                G.pace[1] = OPT["hp"]
                G.add(1, sum((ld_h(1, ss) for ss in range(14)), []))
            if s == 13:
                if G.left([0]): print("tile", t, "pre-barrier drain", G.left([0]), file=sys.stderr)
                G.drain([0])
                if t == 2: a.wait(T["XS"])
                a.emit("s_barrier")
                if t == 2: G.add(3, flag_store(WS_FB, 8, 7))
            for ct in range(4):
                d = Q4(GA(t) + 4 * ct)
                a.emit(f"v_mfma_f32_16x16x32_bf16 {d}, {Q4((s*4+ct)*4,'a')}, {Q4(BF(n))}, {'0' if s == 0 else d}")
                nn = n + NB - 1
                fm = (lambda: loadZ(nn)) if (ct == 0 and nn < 128) else None
                fs = (lambda: a.wait(tok[n + 1])) if (ct == 3 and n + 1 < 128) else None
                G.gap(fs, fm)
        if G.left(): print("tile", t, "leftover", [len(x) for x in G.st], file=sys.stderr)
        if t < 7: G.drain()
    G.drain([0, 3])
    wtleft = G.st[2]
    nwtleft = len(wtleft)
    while f"H0_13" not in T: a.item(G.st[1].pop(0))
    h1left = G.st[1]
    nh1left = len(h1left)
    a.label("L_gemm2")
    stamp(a, 12)
    G = Gaps(a, 3)
    G.pace[1] = OPT["hp"]
    G.add(1, h1left)
    G.add(2, wtleft)
    def ost(p, sr=60):
        return [f"s_add_u32 s{sr}, s71, {p*32*16384}", f"buffer_store_dwordx2 {P2(XV+2*p)}, v11, s[8:11], s{sr} offen {OPT['outf']}"]
    rw = lambda p, dt: ("RW", f"ds_write_b128 v{WV+dt}, {Q4(GA(p)+4*dt)} offset:{(p & 1)*16384}")
    def red_ops(p, pk=False):
        ops = [lambda: a.wait(T["RW"]), "s_barrier"]
        ro = (p & 1) * 16384
        for w in range(4): ops.append(("RR", f"ds_read_b128 {Q4(16+4*w)}, v10 offset:{ro + w*4096}"))
        u = GA(p)
        for e in range(2):
            ops.append(f"v_lshlrev_b32 v{u+2*e}, 16, v{XV+2*p+e}")
            ops.append(f"v_and_b32 v{u+1+2*e}, s{S_HI}, v{XV+2*p+e}")
        ops += [Delay(4), lambda: a.wait(T["RR"])]
        if pk:
            for j in (0, 2): ops += [f"v_pk_add_f32 {P2(16+j)}, {P2(16+j)}, {P2(20+j)}", f"v_pk_add_f32 {P2(24+j)}, {P2(24+j)}, {P2(28+j)}"]
            for j in (0, 2): ops.append(f"v_pk_add_f32 {P2(16+j)}, {P2(16+j)}, {P2(24+j)}")
            for j in (0, 2): ops.append(f"v_pk_fma_f32 {P2(16+j)}, {P2(16+j)}, {P2(GV+j)}, {P2(u+j)}")
        else:
            for j in range(4): ops += [f"v_add_f32 v{16+j}, v{16+j}, v{20+j}", f"v_add_f32 v{24+j}, v{24+j}, v{28+j}"]
            for j in range(4): ops.append(f"v_add_f32 v{16+j}, v{16+j}, v{24+j}")
            for j in range(4): ops.append(f"v_fma_f32 v{16+j}, v{16+j}, v{GV+j}, v{u+j}")
        for j in (0, 2): ops.append(f"v_cvt_pk_bf16_f32 v{XV+2*p+j//2}, v{16+j}, v{17+j}")
        if p >= OPT["defer"]: ops += ost(p)
        return ops
    ck3 = check_ops(sum((list(range(r, r + 4)) for r in H3R), []), 1)
    a.wait(T["H0_0"])
    for p in range(4):
        stamp(a, f"p{p}")
        if p == 0: G.add(0, [Delay(3)] + epi_ops(7))
        else: G.add(0, [Delay(3)] + [rw(p - 1, dt) for dt in range(4)] + [Delay(6)] + red_ops(p - 1))
        if p == 3: G.add(1, sum((ost(pp, 63) for pp in range(OPT["defer"])), []))
        order = [(s, dt) for s in range(14) for dt in range(4)] if p < 3 else [(s, dt) for dt in range(4) for s in range(14)]
        for ii, (s, dt) in enumerate(order):
            if dt == 0 and p < 3:
                if (p, s) == OPT["f2bck"]:
                    G.add(0, [lambda: a.wait(T["F2"])] + chk1(12) + [lambda: k.retry(ld_f2(WS_F2B, 12, 13), chk1(12))] +
                          (ht_ops(2, 1, 96, 97) if OPT["ht"] else []) + [lambda: G.add(1, sum((ld_h(2, ss) for ss in range(14)), []))])
                if (p, s) == OPT["h3t"]: G.add(1, ht_ops(3, 1, 8, 9))
                if (p, s) == OPT["h3at"]: G.add(1, sum((ld_h(3, ss) for ss in range(14)), []))
                if (p, s) == OPT["h3ck"]:
                    G.drain([1])
                    G.add(0, [lambda: a.wait(T["H3_13"])] + ck3 + [lambda: k.retry(sum((ld_h(3, ss, 62) for ss in range(14)), []), ck3)])
            if p == 3 and s == 3 and dt > 0: G.add(0, [rw(3, dt - 1)])
            d = Q4(GA(p) + 4 * dt)
            wk, wr = WR(s, dt); hk, hr = HB(p, s)
            a.emit(f"v_mfma_f32_16x16x32_bf16 {d}, {Q4(wr, wk)}, {Q4(hr, hk)}, {'0' if s == 0 else d}")
            fs = None
            if dt == 3 and p < 3:
                np_, ns = (p, s + 1) if s < 13 else (p + 1, 0)
                toks = []
                if np_ < 3:
                    while f"H{np_}_{ns}" not in T: a.item(G.st[1].pop(0))
                    toks.append(f"H{np_}_{ns}")
                if np_ == 0 and ns >= 8:
                    while any(isinstance(o, tuple) and o[0] == f"WT{ns}" for o in G.st[2]): a.item(G.st[2].pop(0))
                    toks.append(f"WT{ns}")
                if toks: fs = lambda toks=toks: a.wait(*[T[x] for x in toks])
            G.gap(fs, None)
        if G.left(): print("gemm2 p", p, "leftover", [len(x) for x in G.st], file=sys.stderr)
        G.drain([0, 2] if p < 3 else None)
    stamp(a, "p4")
    a(rw(3, 3))
    for o in red_ops(3, True): a(o)
    if STAMP and DIAG is None:
        a("s_waitcnt vmcnt(0)")
        a("s_memrealtime s[72:73]")
        a("s_waitcnt lgkmcnt(0)")
        a("s_lshl_b32 s60, s2, 2")
        a("s_add_u32 s60, s60, s3")
        a("s_lshl_b32 s60, s60, 6")
        a(f"s_add_u32 s60, s60, {WS_STAMP}")
        a("s_mov_b64 exec, 1")
        for i in range(16):
            a(f"v_mov_b32 v2, s{76+2*i if i < 13 else (72, 20, 21)[i-13]}")
            a(f"buffer_store_dword v2, off, s[4:7], s60 offset:{4*i}")
    if DIAG is not None:
        a("s_waitcnt vmcnt(0)")
        a("s_memrealtime s[72:73]")
        a("s_waitcnt lgkmcnt(0)")
        a("s_cmp_lg_u32 s2, 100")
        a("s_cbranch_scc1 L_end")
        src = 72 if DIAG == 13 else 76 + 2 * DIAG
        a(f"s_sub_u32 s60, s{src}, s76")
        a("s_add_u32 s60, s60, 6000")
        a("s_min_u32 s60, s60, 20000")
        a.label("L_diag")
        a("s_memrealtime s[72:73]")
        a("s_waitcnt lgkmcnt(0)")
        a("s_sub_u32 s61, s72, s76")
        a("s_cmp_lt_u32 s61, s60")
        a("s_cbranch_scc1 L_diag")
    a.label("L_end")
    a("s_endpgm")
    a.label("L_spare")
    a("s_waitcnt vmcnt(0)")
    for o in yb1[1:]: a(o)
    a("s_barrier")
    for o in yb2: a(o)
    for o in row_ops(1, 156, True): a(o)
    for o in xs_ops: a(o)
    if OPT["dpost"] == 2: ld_touchd()
    a("s_waitcnt vmcnt(0)")
    a("s_barrier")
    for o in flag_store(WS_FB, 9, 7): a(o)
    for grp in ((range(0, 6), range(0, 6)), (range(6, 12), range(6, 8)), (range(12, 14), ())):
        for u in grp[0]:
            for o in wd_dma(u): a(txt(o))
        a("s_waitcnt vmcnt(0)")
        for u in grp[1]:
            for o in wd_tr(u): a(txt(o))
        a("s_waitcnt lgkmcnt(0)")
    allw = sum((wd_tr(u) for u in range(8, 14)), [])
    for o in allw[:len(allw) - nwtleft]: a(txt(o))
    a(f"s_sleep {OPT['spsl']}")
    for o in res1: a(txt(o))
    a("s_waitcnt vmcnt(0)")
    for o in res2[1:]: a(o)
    def spf(p, base):
        ld = [f"s_add_u32 s62, s30, {base}", "buffer_load_dword v15, v9, s[4:7], s62 offen sc1"]
        for o in ld: a(o)
        a("s_waitcnt vmcnt(0)")
        for o in chk1(15): a(o)
        k.retry(ld, chk1(15), sleep=6)
        a(f"s_add_u32 s62, s31, {p*32*56*1024}")
        a("buffer_load_dword v100, v101, s[4:7], s62 offen sc1")
        a("s_add_u32 s62, s62, 6144")
        a("buffer_load_dword v100, v101, s[4:7], s62 offen sc1")
    if OPT["spf"]:
        a(f"s_and_b32 s60, s{S_IDX}, 3")
        a("s_lshr_b32 s62, s60, 1")
        a(f"s_lshl1_add_u32 s62, s{S_XCD}, s62")
        a("s_lshl_b32 s30, s62, 13")
        a(f"s_mul_i32 s63, s3, {14*128}")
        a("s_add_u32 s30, s30, s63")
        a("s_and_b32 s60, s60, 1")
        a("s_lshl4_add_u32 s62, s60, s62")
        a("s_mul_i32 s31, s62, 56")
        a("s_mul_i32 s63, s3, 14")
        a("s_add_u32 s31, s31, s63")
        a("s_lshl_b32 s31, s31, 10")
        a(f"s_add_u32 s31, s31, {WS_HH}")
        a("v_min_u32 v9, 13, v1")
        a("v_lshlrev_b32 v9, 7, v9")
        a("v_lshlrev_b32 v101, 7, v1")
        spf(0, WS_F20)
        spf(1, WS_F2A)
    for o in ld_f2(WS_F2A, 15, 9): a(o)
    a("s_waitcnt vmcnt(0)")
    for o in chk1(15): a(o)
    k.retry(ld_f2(WS_F2A, 15, 9), chk1(15), sleep=8)
    allh = sum((ld_h(p, s) for p in range(2) for s in range(14)), [])
    for o in allh[:len(allh) - nh1left]: a(txt(o))
    if OPT["spf"]: spf(2, WS_F2B)
    for o in ld_f2(WS_F2B, 12, 13): a(o)
    a("s_waitcnt vmcnt(0) lgkmcnt(0)")
    a("s_nop 4")
    a("s_branch L_gemm2")
    k.emit_slow()
    a.label("L_codeend")
    print("instrs", a.ninstr, "nops", a.nnop, file=sys.stderr)
    return a.text()

def main(path):
    t = f"; @launch grid=(256,1,1) block=(256,1,1) lds={LDS_BYTES}\n"
    t += '.amdgcn_target "amdgcn-amd-amdhsa--gfx950"\n.text\n'
    t += build()
    t += f""".section .rodata,"a"
.p2align 6
.amdhsa_kernel {NAME}_kernel
  .amdhsa_next_free_vgpr 512
  .amdhsa_next_free_sgpr 102
  .amdhsa_accum_offset 256
  .amdhsa_group_segment_fixed_size 0
  .amdhsa_kernarg_size 120
  .amdhsa_user_sgpr_count 2
  .amdhsa_user_sgpr_kernarg_segment_ptr 1
  .amdhsa_system_sgpr_workgroup_id_x 1
  .amdhsa_float_denorm_mode_32 3
.end_amdhsa_kernel
"""
    open(path, "w").write(t)

if __name__ == "__main__":
    for x in sys.argv[2:]:
        kk, _, vv = x.partition("=")
        if kk == "stamp":
            STAMP = True
            if vv: SLIST = [int(y) if y.isdigit() else y for y in vv.split(",")]
        elif kk == "diag":
            STAMP = True; DIAG = int(vv)
        elif vv == "none": OPT[kk] = ""
        elif ":" in vv: OPT[kk] = tuple(int(y) for y in vv.split(":"))
        else: OPT[kk] = int(vv) if vv.lstrip("-").isdigit() else vv
    main(sys.argv[1])
```

```python
import sys
from dsl import Asm, Gaps, Delay
NAME = "adaLN_cond__ssm_conv_h3__glu_gated_bilinear__prompt"

WS_KV, WS_Y, WS_H2, WS_X1, WS_HH = 0x0, 0x200000, 0x400000, 0x600000, 0x800000
WS_MOD = 0x1000000
WS_F0, WS_F1, WS_FB, WS_F2A, WS_F2B, WS_EP = 0x1030000, 0x1040000, 0x1050000, 0x1060000, 0x1080000, 0x10a0000
WS_F20 = 0x10c0000
WS_STAMP = 0x1800000
WS_SIZE = 0x2000000
OOB = 0x40000000
SPIN = 3000

L_KC, L_UU, L_RSA, L_MP = 131072, 147712, 156928, 161024
L_EX, L_RSB = L_KC, L_UU
L_Z = 98304
LDS_BYTES = 163840

P_Q, P_K, P_V, P_SH, P_SK, P_SD, P_WG, P_WU, P_WD, P_C, P_WM, P_OUT, P_DBG, P_WS = 16, 18, 20, 22, 24, 26, 30, 32, 34, 36, 38, 40, 42, 44
S_XCD, S_IDX, S_TAG, S_HI, S_SENT, S_RB, S_CT, S_D, S_SPARE = 46, 47, 56, 57, 58, 59, 28, 29, 75
S_WS, S_WM = 18, 19
S_FO, S_HO, S_YO, S_ROW, S_MO = 64, 65, 71, 22, 42
STAMP = False
DIAG = None
OPT = dict(ord="//m/n/cq", f0ld=(5, 4), f0ck=(6, 3), spf=1, z4late=1, hcd=30, dpost=1, mat=1, f1at=4, modat=60, cord="ncWzd", fset=2, cf=1, bg1=0, qconv=0, spsl=1, zsleep=0, ln1at=3, cconv=0, yat=12, defer=2, fs=6, ht=1, hp=3, hstart=1, f2ld=(6, 1), f2ck=(6, 9), f2bld=(7, 14), h3t=(9, 9), f2bck=(0, 5), h3at=(1, 9), r1=2, h3d=8, xb=1, ddef=0, h3ck=(2, 2), rot=1, early2=1, f0at=12, aftat=20, t2=1, dt=0, n0=0, n1=0, pollat=-1, b4lag=10, p1=3, p2=12, n2=8, p2b=4, touch=1, outf="sc1", zearly=1)
Q4 = lambda r, k="v": f"{k}[{r}:{r+3}]"
P2 = lambda r: f"v[{r}:{r+1}]"
SLIST = [0, 1, 2, 3, 4, 5, 6, 7, 8, 9, 10, 11, 12]

def stamp(a, name):
    if STAMP and name in SLIST:
        i = SLIST.index(name)
        a.emit(f"s_memrealtime s[{76+2*i}:{77+2*i}]")

def srd(a, d, p, nbytes):
    a(f"s_mov_b32 s{d}, s{p}")
    a(f"s_mov_b32 s{d+1}, s{p+1}")
    a(f"s_mov_b32 s{d+2}, {hex(nbytes)}")
    a(f"s_mov_b32 s{d+3}, 0x20000")

def ln_finish(a, pairs):
    def each(f):
        for p in pairs: a(f(*p))
    each(lambda s, q, t: f"v_mul_f32 v{s}, 0x3b000000, v{s}")
    each(lambda s, q, t: f"v_mul_f32 v{q}, 0x3b000000, v{q}")
    each(lambda s, q, t: f"v_fma_f32 v{q}, -v{s}, v{s}, v{q}")
    each(lambda s, q, t: f"v_max_f32 v{q}, 0, v{q}")
    each(lambda s, q, t: f"v_cvt_pk_bf16_f32 v{t}, v{q}, v{s}")
    each(lambda s, q, t: f"v_lshlrev_b32 v{q}, 16, v{t}")
    each(lambda s, q, t: f"v_and_b32 v{s}, s{S_HI}, v{t}")
    each(lambda s, q, t: f"v_add_f32 v{q}, 0x3727c5ac, v{q}")
    each(lambda s, q, t: f"v_cvt_pk_bf16_f32 v{t}, v{q}, v{q}")
    each(lambda s, q, t: f"v_lshlrev_b32 v{q}, 16, v{t}")
    each(lambda s, q, t: f"v_sqrt_f32 v{q}, v{q}")
    each(lambda s, q, t: f"v_cvt_pk_bf16_f32 v{t}, v{q}, v{q}")
    each(lambda s, q, t: f"v_lshlrev_b32 v{q}, 16, v{t}")
    each(lambda s, q, t: f"v_rcp_f32 v{q}, v{q}")
    each(lambda s, q, t: f"v_mul_f32 v{s}, -v{s}, v{q}")

WAVE_RED = ("quad_perm:[1,0,3,2] row_mask:0xf", "quad_perm:[2,3,0,1] row_mask:0xf", "row_half_mirror row_mask:0xf",
            "row_mirror row_mask:0xf", "row_bcast:15 row_mask:0xa", "row_bcast:31 row_mask:0xc")

def san(a, regs):
    for r in regs: a(f"v_min_u32 v{r}, s{S_SENT}, v{r}")

def check_ops(regs, t):
    ops = []
    regs = list(regs)
    if len(regs) == 2:
        ops.append(f"v_max_u32 v{t}, v{regs[0]}, v{regs[1]}"); rest = []
    else:
        ops.append(f"v_max3_u32 v{t}, v{regs[0]}, v{regs[1]}, v{regs[2]}"); rest = regs[3:]
    while rest:
        if len(rest) >= 2:
            ops.append(f"v_max3_u32 v{t}, v{t}, v{rest[0]}, v{rest[1]}"); rest = rest[2:]
        else:
            ops.append(f"v_max_u32 v{t}, v{t}, v{rest[0]}"); rest = rest[1:]
    ops.append(f"v_cmp_eq_u32 vcc, -1, v{t}")
    return ops

def txt(o): return o[1] if isinstance(o, tuple) else o
def named(name, l): return list(l[:-1]) + [(name, txt(l[-1]))]

class Rec:
    def __init__(s): s.l = []
    def __call__(s, t): s.l.append(t)

class K:
    def __init__(self):
        self.a = Asm(); self.slow = []; self.nl = 0
    def retry(self, loads, chk, mid=(), sleep=4):
        a = self.a
        self.nl += 1; n = self.nl
        a.emit(f"s_cbranch_vccnz L_slow{n}")
        a.label(f"L_back{n}")
        self.slow.append((n, [txt(o) for o in loads], list(chk), [txt(o) for o in mid], sleep))
        if STAMP: print("retry site", n, txt(loads[-1])[:70], file=sys.stderr)
    def emit_slow(self):
        a = self.a
        for n, loads, chk, mid, sleep in self.slow:
            a.label(f"L_slow{n}")
            a("s_nop 7"); a("s_nop 7")
            a("s_mov_b32 s33, 0")
            a("s_mov_b32 s23, m0")
            if STAMP: a(f"s_bitset1_b32 s20, {n}")
            a.label(f"L_sl{n}")
            if STAMP: a("s_add_u32 s21, s21, 1")
            a(f"s_sleep {sleep}")
            for o in loads: a(o)
            a("s_waitcnt vmcnt(0)")
            if mid:
                for o in mid: a(o)
                a("s_waitcnt lgkmcnt(0)")
            for o in chk: a(o)
            a("s_add_u32 s33, s33, 1")
            a(f"s_cmp_ge_u32 s33, {SPIN}")
            a(f"s_cbranch_scc1 L_sx{n}")
            a(f"s_cbranch_vccnz L_sl{n}")
            a.label(f"L_sx{n}")
            a("s_mov_b32 m0, s23")
            a("s_nop 4")
            a(f"s_branch L_back{n}")

A_SW, A_SR, A_A, A_KP, A_KW, A_B, A_XW, A_XR, A_KE, A_TR = 128, 129, 130, 134, 135, 136, 137, 138, 139, 140
A_MW, A_MR, A_MS, A_FS, A_FL, A_TG, A_ML, A_YL, A_RW, A_RR, A_WM, A_C, A_L1 = 144, 145, 146, 146, 148, 149, 150, 151, 152, 153, 154, 155, 156
A_SW2 = 157
S_KP, S_YL = 30, 32
def flag_store(base, vt, va, so="s60", off=f"s{S_FO}"):
    return [f"s_add_u32 {so}, {off}, {base}", f"v_lshlrev_b32 v{va}, 26, v6", f"v_lshl_add_u32 v{va}, v5, 2, v{va}",
            f"v_mov_b32 v{vt}, s{S_TAG}", f"buffer_store_dword v{vt}, v{va}, s[4:7], {so} offen sc1"]
def flag_store2(base, so="s60"):
    return [f"s_add_u32 {so}, s{S_FO}, {base}", f"buffer_store_dword v{A_TG}, v{A_FS}, s[4:7], {so} offen sc1"]
def flag_load(base, vd, so="s62"):
    return [f"s_mov_b32 {so}, {base}", f"buffer_load_dword v{vd}, v{A_FL}, s[4:7], {so} offen sc1"]
def plain(l): return [(o[0], o[1].replace(" sc1", "")) if isinstance(o, tuple) else o.replace(" sc1", "") for o in l]
def flag_chk(vd): return [f"v_cmp_ne_u32 vcc, s{S_TAG}, v{vd}"]

VW = 240
def w1_groups():
    g = []
    for j in range(32):
        l = []
        if j % 4 == 0:
            if OPT["rot"]:
                l.append("s_add_u32 s26, s26, 4096")
                l.append("s_and_b32 s26, s26, 0x7fff")
                l.append(f"s_add_u32 m0, s{S_WM}, s26")
                l.append("s_mul_i32 s27, s26, 14")
            else:
                l.append(f"s_add_u32 m0, s{S_WM}, {j*1024}")
                l.append(f"s_mov_b32 s27, {j*14336}")
        l.append(("W1", f"buffer_load_dwordx4 v{VW + j % 4}, s[48:51], s27 offen offset:{(j % 4)*1024} lds"))
        g.append(l)
    return g

def w1_tr_setup(a, b):
    a(f"v_bfe_u32 v{b+1}, v1, 2, 3")
    a("s_lshl_b32 s63, s3, 1")
    a(f"v_xor_b32 v{b+1}, s63, v{b+1}")
    a(f"v_bfe_u32 v{b}, v1, 2, 2")
    a(f"v_lshl_add_u32 v{b}, v6, 3, v{b}")
    a(f"v_lshlrev_b32 v{b}, 8, v{b}")
    a(f"v_and_b32 v{b+2}, 3, v1")
    a(f"v_lshl_add_u32 v{b}, v{b+2}, 3, v{b}")
    a(f"v_lshl_add_u32 v{b}, v{b+1}, 5, v{b}")
    a(f"v_xor_b32 v{b+1}, 32, v{b}")
    a(f"v_add_u32 v{b+2}, 0x10000, v{b}")
    a(f"v_add_u32 v{b+3}, 0x10000, v{b+1}")
def w1_tr(half, b):
    l = []
    for s in range(8):
        for ct in range(4):
            r = ((half * 8 + s) * 4 + ct) * 4
            for h in range(2):
                l.append(("WTR", f"ds_read_b64_tr_b16 a[{r+2*h}:{r+2*h+1}], v{b+ct} offset:{s*8192 + h*1024}"))
    return l

def build():
    k = K(); a = k.a; T = a.T
    a.raw(f".globl {NAME}_kernel\n.p2align 8\n.type {NAME}_kernel,@function\n{NAME}_kernel:")
    a("s_cmp_ge_u32 s2, 256")
    a("s_cbranch_scc1 L_end")
    stamp(a, 0)
    a("s_load_dwordx16 s[16:31], s[0:1], 0")
    a("s_load_dwordx8 s[32:39], s[0:1], 64")
    a("s_load_dwordx2 s[40:41], s[0:1], 96")
    a("s_load_dwordx2 s[44:45], s[0:1], 112")
    a("s_getpc_b64 s[4:5]")
    a.label("L_pc0")
    a("s_lshl_b32 s6, s2, 3")
    a("s_and_b32 s6, s6, 0xc0")
    a("v_lshrrev_b32 v3, 2, v0")
    a("v_add_lshl_u32 v3, v3, s6, 7")
    a("v_min_u32 v3, L_codeend-L_pc0-4, v3")
    a("global_load_dword v236, v3, s[4:5]")
    a("v_lshrrev_b32 v1, 6, v0")
    a("v_readfirstlane_b32 s3, v1")
    a("v_and_b32 v1, 63, v0")
    a("v_lshlrev_b32 v2, 4, v1")
    a(f"s_and_b32 s{S_XCD}, s2, 7")
    a(f"s_lshr_b32 s{S_IDX}, s2, 3")
    if OPT.get("remap"):
        a(f"s_xor_b32 s60, s{S_IDX}, 4")
        a("s_and_b32 s61, s60, 7")
        a("s_lshr_b32 s60, s60, 3")
        a(f"s_lshl2_add_u32 s{S_IDX}, s61, s60")
    a(f"s_mov_b32 s{S_HI}, 0xffff0000")
    a(f"s_mov_b32 s{S_SENT}, 0xfffffffe")
    a(f"s_lshr_b32 s60, s{S_IDX}, 2")
    a(f"s_lshl_b32 s61, s{S_XCD}, 3")
    a("s_add_u32 s66, s60, s61")
    a(f"s_and_b32 s61, s{S_IDX}, 3")
    a("s_lshl_b32 s62, s66, 15")
    a("s_lshl_b32 s63, s61, 8")
    a("s_add_u32 s62, s62, s63")
    a("s_lshl_b32 s63, s3, 6")
    a("s_add_u32 s62, s62, s63")
    a("v_and_b32 v5, 15, v1")
    a("v_lshrrev_b32 v6, 4, v1")
    a("v_lshlrev_b32 v7, 13, v6")
    a("v_lshl_add_u32 v7, v5, 2, v7")
    a("v_add_u32 v7, s62, v7")
    a("v_subrev_u32 v3, 3072, v7")
    a("v_add_u32 v4, 4096, v7")
    a("s_lshl_b32 s63, s61, 2")
    a("s_add_u32 s63, s63, s3")
    a("s_lshl_b32 s63, s63, 4")
    a("s_lshl_b32 s73, s63, 4")
    a("v_lshlrev_b32 v8, 4, v5")
    a("s_lshl2_add_u32 s65, s66, s61")
    a(f"s_lshl_b32 s65, s65, {OPT['fs']}")
    a("s_lshl_b32 s69, s66, 8")
    a("s_add_u32 s69, s69, s63")
    a("s_lshl_b32 s69, s69, 7")
    for i in range(4): a(f"v_mov_b32 v{244+i}, -1")
    a(f"s_mul_i32 s67, s{S_XCD}, 6")
    a("s_add_u32 s67, s67, s60")
    a("s_lshl_b32 s67, s67, 2")
    a("s_add_u32 s67, s67, s61")
    a(f"s_cmp_ge_u32 s{S_IDX}, 24")
    a(f"s_cselect_b32 s74, {OOB}, 0")
    a("s_cmp_eq_u32 s3, 0")
    a(f"s_cselect_b32 s70, 0, {OOB}")
    a(f"s_lshl_b32 s{S_MO}, s67, 6")
    a(f"s_add_u32 s{S_MO}, s{S_MO}, {WS_MOD}")
    a("s_or_b32 s63, s74, s70")
    a(f"s_add_u32 s{S_MO}, s{S_MO}, s63")
    a("s_lshr_b32 s63, s67, 5")
    a("s_lshr_b32 s63, 0x12, s63")
    a("s_and_b32 s63, s63, 1")
    a("s_mul_i32 s43, s63, 0x3f800000")
    a(f"s_lshl_b32 s63, s2, {OPT['fs']}")
    a(f"s_add_u32 s{S_FO}, s63, s70")
    a("s_add_u32 s70, s65, s70")
    a(f"s_add_u32 s70, s70, {WS_F0}")
    a("v_lshrrev_b32 v9, 2, v1")
    a("v_lshlrev_b32 v9, 14, v9")
    a("v_and_b32 v40, 3, v1")
    a("v_lshl_add_u32 v9, v40, 4, v9")
    a(f"s_lshl_b32 s{S_YO}, s3, 18")
    a("s_lshl_b32 s72, s2, 6")
    a(f"s_add_u32 s{S_YO}, s{S_YO}, s72")
    a(f"s_add_u32 s{S_YO}, s{S_YO}, {WS_Y}")
    a(f"v_and_b32 v{A_L1}, 1, v1")
    a("s_waitcnt lgkmcnt(0)")
    stamp(a, 1)
    srd(a, 4, P_WS, WS_SIZE)
    a(f"s_add_u32 s72, s{P_WS}, {WS_EP}")
    a(f"s_addc_u32 s63, s{P_WS+1}, 0")
    a("s_mov_b32 s62, s72")
    a(f"s_load_dword s{S_TAG}, s[62:63], 0")
    def first_clears():
        a("buffer_store_dwordx4 v[244:247], v2, s[4:7], s69 offen sc1")
        a("buffer_store_dwordx4 v[244:247], v2, s[4:7], s69 offen offset:1024 sc1")
        a(f"buffer_store_dwordx4 v[244:247], v9, s[4:7], s{S_YO} offen sc1")
        a("s_mov_b64 exec, 0xf")
        T["clr0"] = a(f"buffer_store_dwordx4 v[244:247], v2, s[4:7], s{S_MO} offen sc1")
        a("s_mov_b64 exec, -1")
    if OPT["cf"]: first_clears()
    srd(a, 8, P_K, 0x200000)
    srd(a, 12, P_V, 0x200000)
    for i in range(11):
        base, off = (3, i) if i < 3 else (7, i - 3) if i < 7 else (4, i - 7)
        a(f"buffer_load_dword v{10+i}, v{base}, s[8:11], 0 offen offset:{off*1024}")
    for i in range(8):
        base, off = (7, i) if i < 4 else (4, i - 4)
        a(f"buffer_load_dword v{21+i}, v{base}, s[12:15], 0 offen offset:{off*1024}")
    if STAMP: a("s_mov_b64 s[20:21], 0")
    srd(a, 52, P_SH, 4096)
    tkv0 = a("buffer_load_dwordx4 v[32:35], v8, s[52:55], s73 offen")
    a("s_lshl_b32 s72, s2, 2")
    a(f"s_load_dword s{S_D}, s[{P_SD}:{P_SD+1}], s72")
    a("s_lshr_b32 s60, s3, 1")
    a("s_and_b32 s61, s3, 1")
    a("s_lshl1_add_u32 s62, s2, s60")
    a("s_lshl_b32 s62, s62, 12")
    a(f"s_load_dword s44, s[{P_SK}:{P_SK+1}], s62")
    if not OPT["cf"]: first_clears()
    tclr = T["clr0"]
    srd(a, 52, P_SK, 0x200000)
    a("s_mul_i32 s65, s60, 8320")
    a("s_lshl_b32 s63, s61, 11")
    a("s_add_u32 s62, s62, s63")
    a("s_add_u32 s63, s63, s65")
    a(f"s_add_u32 m0, s63, {L_KC + 32}")
    a("v_add_u32 v36, 2, v2")
    a("buffer_load_dwordx4 v2, s[52:55], s62 offen lds")
    a("buffer_load_dwordx4 v2, s[52:55], s62 offen offset:1024 lds")
    a(f"s_add_u32 m0, s63, {L_KC + 32 + 4160}")
    a("s_lshl_b32 s61, s61, 8")
    a("buffer_load_dwordx4 v36, s[52:55], s62 offen lds")
    tkern = a("buffer_load_dwordx4 v36, s[52:55], s62 offen offset:1024 lds")
    a(f"s_lshl_b32 s{S_ROW}, s{S_XCD}, 5")
    a(f"s_add_u32 s{S_ROW}, s{S_ROW}, s{S_IDX}")
    if OPT["r1"] == 1:
        a(f"s_mul_i32 s72, s{S_XCD}, 28")
        a(f"s_add_u32 s72, s72, s{S_IDX}")
        a(f"s_and_b32 s{S_RB}, s72, 15")
        a(f"s_lshl_b32 s26, s{S_RB}, 12")
        a("s_lshr_b32 s66, s72, 4")
    else:
        a(f"s_and_b32 s72, s{S_XCD}, 3")
        a("s_mul_i32 s72, s72, 28")
        a(f"s_add_u32 s72, s72, s{S_IDX}")
        a(f"s_lshr_b32 s73, s{S_XCD}, 2")
        a("s_lshl_b32 s73, s73, 3")
        a(f"s_and_b32 s{S_RB}, s72, 7")
        a(f"s_lshl_b32 s26, s{S_RB}, 12")
        a(f"s_add_u32 s{S_RB}, s{S_RB}, s73")
        a("s_lshr_b32 s66, s72, 3")
    a(f"s_lshl2_add_u32 s{S_CT}, s66, s3")
    a(f"s_cmp_ge_u32 s{S_IDX}, 28")
    a(f"s_cselect_b32 s{S_SPARE}, {OOB}, 0")
    a("s_cmp_ge_u32 s3, 2")
    a(f"s_cselect_b32 s48, s{P_WU}, s{P_WG}")
    a(f"s_cselect_b32 s49, s{P_WU+1}, s{P_WG+1}")
    a(f"s_mov_b32 s50, {512*3584}")
    a("s_mov_b32 s51, 0x20000")
    a(f"s_lshl2_add_u32 s72, s{S_ROW}, s3")
    a("s_lshl_b32 s68, s72, 10")
    a("s_and_b32 s73, s3, 1")
    a(f"s_mul_i32 s73, s73, {128*3584}")
    a("s_lshl_b32 s72, s66, 8")
    a("s_add_u32 s73, s73, s72")
    a(f"s_add_u32 s73, s73, s{S_SPARE}")
    a(f"s_lshl_b32 s{S_WM}, s3, 15")
    a("v_bfe_u32 v37, v1, 1, 3")
    a("v_xor_b32 v38, v37, v6")
    a(f"v_lshl_add_u32 v38, v38, 1, v{A_L1}")
    a("v_mul_u32_u24 v39, 3584, v6")
    a("v_add_u32 v39, s73, v39")
    a(f"v_lshl_add_u32 v{VW}, v38, 4, v39")
    a(f"v_add_u32 v{VW+1}, {14336-1024}, v{VW}")
    a("v_xor_b32 v38, 8, v38")
    a(f"v_lshl_add_u32 v{VW+2}, v38, 4, v39")
    a(f"v_add_u32 v{VW+2}, {2*(14336-1024)}, v{VW+2}")
    a(f"v_add_u32 v{VW+3}, {14336-1024}, v{VW+2}")
    w1q = w1_groups()
    def w4():
        for _ in range(4):
            for o in w1q.pop(0): a(o)
    def xt_ops(nrows, row0, vt, vt2):
        r = Rec()
        r(f"v_bfe_u32 v{vt}, v1, 3, {nrows.bit_length()-1}")
        r(f"v_mul_u32_u24 v{vt}, 3584, v{vt}")
        r(f"v_and_b32 v{vt2}, 7, v1")
        if OPT["r1"] == 1:
            r(f"s_mul_i32 s73, s{S_XCD}, 28")
            r("s_add_u32 s72, s73, 27")
            r("s_lshr_b32 s72, s72, 4")
            r("s_lshr_b32 s73, s73, 4")
            r("s_sub_u32 s72, s72, s73")
            r("s_lshl1_add_u32 s72, s72, 1")
            r(f"v_min_u32 v{vt2}, s72, v{vt2}")
            r("s_lshl_b32 s73, s73, 8")
            r(f"v_add_u32 v{vt}, s73, v{vt}")
        r(f"v_lshl_add_u32 v{vt}, v{vt2}, 7, v{vt}")
        r("s_and_b32 s73, s3, 1")
        r(f"s_lshl1_add_u32 s72, s{S_IDX}, s73")
        r(f"s_mul_i32 s72, s72, {nrows*3584}")
        if OPT["r1"] != 1:
            r(f"s_and_b32 s73, s{S_XCD}, 3")
            r("s_mul_i32 s73, s73, 28")
            r("s_lshr_b32 s73, s73, 3")
            r("s_lshl_b32 s73, s73, 8")
            r("s_add_u32 s72, s72, s73")
        if row0: r(f"s_add_u32 s72, s72, {row0*3584}")
        r(f"buffer_load_dword v159, v{vt}, s[48:51], s72 offen")
        return r.l
    def xt(nrows, row0):
        for o in xt_ops(nrows, row0, 158, 147): a(o)
    def mod_blk(i):
        a(f"s_add_u32 s72, s{S_IDX}, {i}")
        a("s_and_b32 s72, s72, 3")
        a("s_lshl2_add_u32 s72, s3, s72")
        a("s_lshl_b32 s73, s72, 6")
        a(f"buffer_load_ushort v{160+i}, v{A_C}, s[12:15], s73 offen")
        a(f"s_mul_i32 s72, s72, {32*6144}")
        T["mod"] = a(f"buffer_load_dwordx4 {Q4(164+4*i)}, v{A_WM}, s[8:11], s72 offen")
    def ld_mod():
        srd(a, 8, P_WM, 512 * 6144)
        srd(a, 12, P_C, 1024)
        a(f"v_lshrrev_b32 v{A_C}, 1, v1")
        a(f"v_mul_u32_u24 v{A_WM}, 6144, v{A_C}")
        a(f"v_lshl_add_u32 v{A_WM}, v{A_L1}, 4, v{A_WM}")
        a("s_lshl_b32 s73, s67, 5")
        a("s_add_u32 s73, s73, s74")
        a(f"v_add_u32 v{A_WM}, s73, v{A_WM}")
        a(f"v_lshlrev_b32 v{A_C}, 1, v{A_C}")
        mod_blk(0)
    def ld_mod2():
        for i in range(1, 4): mod_blk(i)
    def ld_touch():
        a("s_and_b32 s73, s3, 1")
        a("s_lshl1_add_u32 s72, s2, s73")
        a("s_mul_i32 s72, s72, 3584")
        a("v_min_u32 v237, 27, v1")
        a("v_lshlrev_b32 v237, 7, v237")
        a("buffer_load_dword v237, v237, s[48:51], s72 offen")
    def ld_touchd():
        srd(a, 52, P_WD, 1792 * 1024)
        a(f"s_lshl2_add_u32 s72, s{S_XCD}, s{S_IDX}")
        a("s_sub_u32 s72, s72, 28")
        a("s_and_b32 s72, s72, 31")
        a("s_lshl2_add_u32 s72, s72, s3")
        a("s_mul_i32 s72, s72, 14336")
        a(f"s_xor_b32 s73, s{S_SPARE}, {OOB}")
        a("s_add_u32 s72, s72, s73")
        a("v_lshlrev_b32 v158, 7, v1")
        a("buffer_load_dword v159, v158, s[52:55], s72 offen")
        a("s_add_u32 s72, s72, 6144")
        a("buffer_load_dword v159, v158, s[52:55], s72 offen")
    def ld_q():
        srd(a, 52, P_Q, 0x200000)
        a("s_add_u32 s73, s68, 0x100000")
        a("buffer_load_dwordx4 v[180:183], v2, s[52:55], s68 offen")
        T["q"] = a("buffer_load_dwordx4 v[184:187], v2, s[52:55], s73 offen")
    def clr_ops(which):
        l = []
        if "a" in which: l += [("CLR", f"buffer_store_dwordx4 v[244:247], v9, s[4:7], s{S_YO} offen sc1")]
        if "b" in which: l += [f"s_add_u32 s72, s{S_YO}, {64*16384}", ("CLR", "buffer_store_dwordx4 v[244:247], v9, s[4:7], s72 offen sc1")]
        if "h" in which: l += [f"s_add_u32 s72, s68, {WS_H2}", ("CLR", "buffer_store_dwordx4 v[244:247], v2, s[4:7], s72 offen sc1")]
        if "i" in which: l += [f"s_add_u32 s72, s68, {WS_H2 + 0x100000}", ("CLR", "buffer_store_dwordx4 v[244:247], v2, s[4:7], s72 offen sc1")]
        return l
    def clr():
        for o in clr_ops("bhi"): a(o)
    LD = dict(w=w4, x=lambda: xt(8, 0), y=lambda: xt(4, 0), z=lambda: xt(4, 256), m=ld_mod, n=ld_mod2, q=ld_q, t=ld_touch, d=ld_touchd, c=clr)
    PRE, MID, POST, AFT, LATE = OPT["ord"].split("/")
    assert sorted(set(PRE + MID + POST + AFT + LATE + OPT["cord"]) - set("tdDwxyzW-")) == sorted("mnqc")
    for c in PRE: LD[c]()
    a("v_lshrrev_b32 v4, 3, v1")
    a("v_and_b32 v41, 7, v1")
    a("s_mul_i32 s72, s60, 4608")
    a("s_lshl_b32 s73, s61, 3")
    a("s_add_u32 s72, s72, s73")
    a(f"s_add_u32 s72, s72, {L_UU}")
    a(f"v_sub_u32 v{A_SW}, 3, v6")
    a(f"v_xor_b32 v{A_SW}, v{A_SW}, v41")
    a("v_lshlrev_b32 v38, 7, v5")
    a(f"v_lshl_add_u32 v{A_SW}, v{A_SW}, 4, v38")
    a(f"v_add_u32 v{A_SW}, s72, v{A_SW}")
    a(f"v_xor_b32 v{A_SW2}, 64, v{A_SW}")
    a(f"v_xor_b32 v{A_SR}, v1, v4")
    a(f"v_lshlrev_b32 v{A_SR}, 4, v{A_SR}")
    a(f"v_add_u32 v{A_SR}, s72, v{A_SR}")
    a(f"v_xor_b32 v{A_A}, 1, v{A_L1}")
    a(f"v_mul_u32_u24 v{A_A}, 4156, v{A_A}")
    a(f"v_lshl_add_u32 v{A_A}, v37, 2, v{A_A}")
    a(f"v_lshl_add_u32 v{A_A}, v6, 4, v{A_A}")
    a("s_add_u32 s72, s65, s61")
    a(f"s_add_u32 s72, s72, {L_KC + 4}")
    a(f"v_add_u32 v{A_A}, s72, v{A_A}")
    for i in range(1, 4): a(f"v_add_u32 v{A_A+i}, {1024*i}, v{A_A}")
    a(f"v_lshlrev_b32 v{A_KP}, 15, v4")
    a(f"v_lshl_add_u32 v{A_KP}, v41, 4, v{A_KP}")
    a(f"s_lshl_b32 s{S_KP}, s3, 19")
    a("s_lshl_b32 s72, s2, 7")
    a(f"s_add_u32 s{S_KP}, s{S_KP}, s72")
    a(f"s_add_u32 s{S_KP+1}, s{S_KP}, {8*32768}")
    a(f"v_bfe_u32 v{A_KW}, v1, 2, 1")
    a(f"v_mul_u32_u24 v{A_KW}, 4608, v{A_KW}")
    a(f"v_lshl_add_u32 v{A_KW}, v40, 4, v{A_KW}")
    a("v_lshlrev_b32 v38, 6, v4")
    a(f"v_sub_u32 v{A_KW}, v{A_KW}, v38")
    a("s_lshl_b32 s72, s3, 10")
    a(f"s_sub_u32 s73, {L_UU + 55*64}, s72")
    a(f"v_add_u32 v{A_KW}, s73, v{A_KW}")
    a(f"v_add_u32 v{A_RR}, s72, v2")
    a(f"s_add_u32 s72, s72, {L_EX}")
    a(f"v_xor_b32 v{A_XR}, v1, v4")
    a(f"v_lshlrev_b32 v{A_XR}, 4, v{A_XR}")
    a(f"v_add_u32 v{A_XR}, s72, v{A_XR}")
    a(f"v_lshlrev_b32 v{A_B}, 5, v5")
    a("v_lshlrev_b32 v38, 4, v6")
    a(f"v_sub_u32 v{A_B}, v38, v{A_B}")
    a("s_mul_i32 s72, s60, 4608")
    a("s_add_u32 s72, s72, s61")
    a(f"s_add_u32 s72, s72, {L_UU + 480}")
    a(f"v_add_u32 v{A_B}, s72, v{A_B}")
    a(f"v_lshl_add_u32 v{A_XW}, v5, 2, v6")
    a(f"v_lshrrev_b32 v38, 3, v{A_XW}")
    a(f"v_xor_b32 v{A_XW}, v{A_XW}, v38")
    a(f"v_lshlrev_b32 v{A_XW}, 4, v{A_XW}")
    a("s_lshl_b32 s72, s3, 12")
    a(f"s_add_u32 s72, s72, {L_EX}")
    a(f"v_add_u32 v{A_XW}, s72, v{A_XW}")
    a("s_lshl_b32 s72, s3, 9")
    a(f"s_sub_u32 s72, {L_UU + 4088 - 2048}, s72")
    a(f"v_lshlrev_b32 v{A_KE}, 3, v1")
    a(f"v_sub_u32 v{A_KE}, s72, v{A_KE}")
    w1_tr_setup(a, A_TR)
    a(f"v_lshlrev_b32 v{A_MW}, 3, v6")
    a(f"v_lshl_add_u32 v{A_MW}, v{A_L1}, 5, v{A_MW}")
    a("s_lshl_b32 s72, s3, 6")
    a(f"s_add_u32 s72, s72, {L_MP}")
    a(f"v_add_u32 v{A_MW}, s72, v{A_MW}")
    a(f"v_lshlrev_b32 v{A_MS}, 2, v5")
    a(f"v_lshlrev_b32 v{A_MR}, 3, v41")
    a(f"v_add_u32 v{A_MR}, {L_MP}, v{A_MR}")
    a("v_min_u32 v38, 1, v6")
    a(f"v_lshl_add_u32 v{A_MS}, v38, 26, v{A_MS}")
    a(f"v_lshlrev_b32 v{A_FL}, {OPT['fs']}, v0")
    a(f"v_lshrrev_b32 v{A_ML}, 1, v1")
    a(f"v_lshlrev_b32 v{A_ML}, 6, v{A_ML}")
    a(f"v_lshl_add_u32 v{A_ML}, v{A_L1}, 4, v{A_ML}")
    a(f"v_lshlrev_b32 v{A_YL}, 6, v0")
    a(f"v_lshlrev_b32 v{A_RW}, 2, v0")
    a(f"s_lshr_b32 s{S_YL}, s{S_ROW}, 2")
    a(f"s_lshl_b32 s{S_YL}, s{S_YL}, 14")
    a(f"s_and_b32 s72, s{S_ROW}, 3")
    a("s_lshl_b32 s72, s72, 4")
    a(f"s_add_u32 s{S_YL}, s{S_YL}, s72")
    a(f"s_add_u32 s{S_YL}, s{S_YL}, {WS_Y}")
    for i in range(4): a(f"v_mov_b32 v{44+i}, 0")
    a("v_lshrrev_b32 v38, 5, v1")
    a("v_and_b32 v39, 31, v1")
    a("v_mul_u32_u24 v38, 4608, v38")
    a("v_lshl_add_u32 v38, v39, 4, v38")
    a(f"v_add_u32 v38, {L_UU + 4096}, v38")
    a("ds_write_b128 v38, v[44:47]")
    a("v_bfe_u32 v38, v1, 1, 1")
    a("v_mul_u32_u24 v38, 4160, v38")
    a(f"v_lshl_add_u32 v38, v{A_L1}, 4, v38")
    a(f"s_add_u32 s72, s65, {L_KC}")
    a("v_add_u32 v38, s72, v38")
    a("v_cmp_eq_u32 vcc, 3, v40")
    a("s_waitcnt lgkmcnt(0)")
    a("s_lshl_b32 s44, s44, 16")
    a("v_mov_b32 v39, s44")
    a("v_cndmask_b32 v47, v47, v39, vcc")
    a("s_mov_b64 exec, 0xf")
    a("ds_write_b128 v38, v[44:47]")
    a("s_mov_b64 exec, -1")
    a(f"s_mul_i32 s{S_TAG}, s{S_TAG}, 0x9e3779b1")
    a(f"s_add_u32 s{S_TAG}, s{S_TAG}, 0x7f4a7c15")
    a(f"v_mov_b32 v{A_TG}, s{S_TAG}")
    a(f"s_lshl_b32 s44, s{S_D}, 16")
    a(f"s_and_b32 s45, s{S_D}, s{S_HI}")
    stamp(a, 2)
    a.wait(tclr)
    a("s_barrier")
    stamp(a, 3)
    a(f"buffer_store_dword v{A_TG}, v{A_FS}, s[4:7], s70 offen sc1")
    for c in MID: LD[c]()
    a.wait(tkv0)
    stamp(a, "kd")
    ld_f0 = flag_load(WS_F0, 239)
    if OPT["f0at"] == -2:
        for o in ld_f0: tf = a(o)
    for i in range(11):
        a(f"v_lshlrev_b32 v{50+2*i}, 16, v{10+i}")
        a(f"v_and_b32 v{51+2*i}, s{S_HI}, v{10+i}")
    for j in range(4):
        for c in range(2):
            src = 32 + 2 * c + (j >> 1)
            if j & 1: a(f"v_and_b32 v{88+2*j+c}, s{S_HI}, v{src}")
            else: a(f"v_lshlrev_b32 v{88+2*j+c}, 16, v{src}")
    for j in (3, 2, 1, 0):
        for i in range(8):
            if j == 3: a(f"v_pk_mul_f32 {P2(96+2*i)}, {P2(50+2*(i+3-j))}, {P2(88+2*j)}")
            else: a(f"v_pk_fma_f32 {P2(96+2*i)}, {P2(50+2*(i+3-j))}, {P2(88+2*j)}, {P2(96+2*i)}")
    for i in range(8):
        a(f"v_lshlrev_b32 v{72+2*i}, 16, v{21+i}")
        a(f"v_and_b32 v{73+2*i}, s{S_HI}, v{21+i}")
    for i in range(8):
        a(f"v_pk_mul_f32 {P2(96+2*i)}, {P2(96+2*i)}, {P2(72+2*i)}")
    for c in range(2):
        for d in range(4):
            a(f"v_cvt_pk_bf16_f32 v{112+4*c+d}, v{96+2*(7-2*d)+c}, v{96+2*(6-2*d)+c}")
        san(a, range(112 + 4 * c, 116 + 4 * c))
        a(f"ds_write_b128 v{A_SW2 if c else A_SW}, {Q4(112+4*c)}")
    r0 = a(f"ds_read_b128 v[112:115], v{A_SR}")
    r1 = a(f"ds_read_b128 v[116:119], v{A_SR} offset:1024")
    a.wait(r0)
    a("buffer_store_dwordx4 v[112:115], v2, s[4:7], s69 offen sc1")
    a.wait(r1)
    a("buffer_store_dwordx4 v[116:119], v2, s[4:7], s69 offen offset:1024 sc1")
    stamp(a, 4)
    if OPT["f0at"] == -1:
        for o in ld_f0: tf = a(o)
    for c in POST: LD[c]()
    a.wait(tkern)
    a("s_barrier")
    stamp(a, "k0")
    A = lambda rr, q: 128 + (rr * 8 + q) * 4
    n0 = OPT["n0"]
    for rr in range(4):
        for q in range(8):
            if rr * 8 + q == OPT["f0at"]:
                for o in ld_f0: tf = a(o)
            if rr * 8 + q == OPT["aftat"]:
                for c in AFT: LD[c]()
            o = (64 * rr + 512 * (q & 1)) // 4
            a(f"ds_read2_b32 a[{A(rr,q)}:{A(rr,q)+1}], v{A_A + (q >> 1)} offset0:{o} offset1:{o+1}")
            a(f"ds_read2_b32 a[{A(rr,q)+2}:{A(rr,q)+3}], v{A_A + (q >> 1)} offset0:{o+2} offset1:{o+3}")
            if (q & 1) and n0 > 0:
                for o in w1q.pop(0): a(o)
                n0 -= 1
    stamp(a, "af")
    ld_kv = [f"buffer_load_dwordx4 v[16:19], v{A_KP}, s[4:7], s{S_KP} offen sc1", f"buffer_load_dwordx4 v[20:23], v{A_KP}, s[4:7], s{S_KP+1} offen sc1"]
    def poll():
        stamp(a, 5)
        a.wait(tf)
        for o in flag_chk(239): a(o)
        k.retry(ld_f0, flag_chk(239))
        for o in ld_kv: T["KV"] = a(o)
        stamp(a, 6)
        for c in LATE: LD[c]()
        for _ in range(OPT["n1"]):
            for o in w1q.pop(0): a(o)
        if OPT["bg1"]: a.bg = w1q; a.bg_every = OPT["bg1"]
    PR = (212, 248)
    def ln1():
        a.wait(T["q"])
        a("s_mov_b32 s67, 0x3f803f80")
        for i in range(4): a(f"v_mov_b32 v{188+i}, 0")
        for i in range(4):
            for h in range(2):
                a(f"v_dot2c_f32_bf16 v{188+2*h}, s67, v{180+4*h+i}")
                a(f"v_dot2c_f32_bf16 v{189+2*h}, v{180+4*h+i}, v{180+4*h+i}")
        for h in range(2):
            for i in range(4):
                a(f"v_lshlrev_b32 v{220+8*h+2*i}, 16, v{180+4*h+i}")
                a(f"v_and_b32 v{221+8*h+2*i}, s{S_HI}, v{180+4*h+i}")
        for dpp in WAVE_RED:
            for i in range(4): a(f"v_add_f32_dpp v{188+i}, v{188+i}, v{188+i} {dpp} bank_mask:0xf")
        ln_finish(a, [(188, 189, 192), (190, 191, 193)])
        for h in range(2):
            a(f"v_readlane_b32 s{36+2*h}, v{189+2*h}, 63")
            a(f"v_readlane_b32 s{37+2*h}, v{188+2*h}, 63")
        for h in range(2): a(f"v_mov_b32 v{192+2*h}, s{37+2*h}")
        for h in range(2):
            for i in range(0, 8, 2): a(f"v_pk_fma_f32 {P2(PR[h]+i)}, {P2(220+8*h+i)}, s[{36+2*h}:{37+2*h}], {P2(192+2*h)} op_sel_hi:[1,0,0]")
    if OPT["ln1at"] == 0: ln1()
    if OPT["pollat"] == -1: poll()

    def modblock():
        a.wait(T["mod"])
        stamp(a, "m0")
        E, SV, UP, AC = 236, 212, 220, 228
        for i in range(4):
            a(f"v_lshlrev_b32 v{160+i}, 16, v{160+i}")
            a(f"v_mul_f32 v{E+i}, 0xbfb8aa3b, v{160+i}")
        for i in range(4): a(f"v_exp_f32 v{E+i}, v{E+i}")
        for i in range(4): a(f"v_add_f32 v{E+i}, 1.0, v{E+i}")
        for i in range(4): a(f"v_rcp_f32 v{E+i}, v{E+i}")
        for i in range(4): a(f"v_mul_f32 v{160+i}, v{160+i}, v{E+i}")
        for i in range(4): a(f"v_cvt_pk_bf16_f32 v{E+i}, v{160+i}, v{160+i}")
        for i in range(4): a(f"v_lshlrev_b32 v{SV+2*i}, 16, v{E+i}")
        for i in range(4):
            for d in range(4):
                a(f"v_lshlrev_b32 v{UP+2*d}, 16, v{164+4*i+d}")
                a(f"v_and_b32 v{UP+1+2*d}, s{S_HI}, v{164+4*i+d}")
            for d in range(4):
                if i == 0: a(f"v_pk_mul_f32 {P2(AC+2*d)}, {P2(UP+2*d)}, {P2(SV+2*i)} op_sel_hi:[1,0]")
                else: a(f"v_pk_fma_f32 {P2(AC+2*d)}, {P2(UP+2*d)}, {P2(SV+2*i)}, {P2(AC+2*d)} op_sel_hi:[1,0,1]")
        for p in range(4): a(f"v_permlane32_swap_b32 v{AC+p}, v{AC+4+p}")
        for p in range(4): a(f"v_add_f32 v{AC+p}, v{AC+p}, v{AC+4+p}")
        for p in range(2): a(f"v_permlane16_swap_b32 v{AC+p}, v{AC+2+p}")
        for p in range(2): a(f"v_add_f32 v{AC+p}, v{AC+p}, v{AC+2+p}")
        for rr in (8, 4, 2):
            for p in range(2):
                a(f"v_add_f32_dpp v{AC+p}, v{AC+p}, v{AC+p} row_ror:{rr} row_mask:0xf bank_mask:0xf")
        T["MW"] = a(f"ds_write_b64 v{A_MW}, {P2(AC)}")
        stamp(a, "m1")
    if OPT["modat"] < 0: modblock()
    if OPT["ln1at"] == 2: ln1()
    a.bg = []
    print("W1a left at conv start", len(w1q), file=sys.stderr)
    stamp(a, "tr")
    a.wait(T["KV"])
    stamp(a, "kv")
    ck = check_ops(range(16, 24), 29)
    for o in ck: a(o)
    k.retry(ld_kv, ck)
    a(f"ds_write_b128 v{A_KW}, v[16:19] offset:512")
    a(f"ds_write_b128 v{A_KW}, v[20:23]")
    a("s_waitcnt lgkmcnt(0)")
    a("s_barrier")
    stamp(a, 7)
    B = lambda rr, d: 64 + (rr & 1) * 32 + d * 4
    tb = {}
    def loadB(key, rr, d):
        tb[key, rr, d] = a.emit(f"ds_read_b128 {Q4(B(rr,d))}, v{A_B} offset:{3584 - 512*d + 64*rr}")
    for d in range(4): loadB(0, 0, d)
    G = Gaps(a, 4)
    G.pace[1] = OPT["p1"]
    if OPT.get("cpri"): G.order = [1, 0, 2, 3]
    KD = (24, 168)
    def kd_ops(h):
        ops = []
        for c in range(2):
            for i in range(4):
                e = 3 - i
                kr = 10 + 4 * h + 2 * c + (e >> 1)
                ops.append(f"v_and_b32 v{KD[h]+4*c+i}, s{S_HI}, v{kr}" if e & 1 else f"v_lshlrev_b32 v{KD[h]+4*c+i}, 16, v{kr}")
        return ops
    rec = Rec()
    rec(f"ds_read2_b64 v[192:195], v{A_MR} offset0:0 offset1:8")
    rec(("MP", f"ds_read2_b64 v[196:199], v{A_MR} offset0:16 offset1:24"))
    rec(Delay(4))
    rec(lambda: a.wait(T["MP"]))
    for c in range(2): rec(f"v_add_f32 v{192+c}, v{192+c}, v{194+c}")
    for c in range(2): rec(f"v_add_f32 v{196+c}, v{196+c}, v{198+c}")
    for c in range(2): rec(f"v_add_f32 v{192+c}, v{192+c}, v{196+c}")
    rec("v_cvt_pk_bf16_f32 v20, v192, v193")
    rec("v_lshlrev_b32 v192, 16, v20")
    rec(f"v_and_b32 v193, s{S_HI}, v20")
    for c in range(2): rec(f"v_add_f32 v{192+c}, s43, v{192+c}")
    rec("v_cvt_pk_bf16_f32 v20, v192, v193")
    rec(f"v_min_u32 v20, s{S_SENT}, v20")
    rec(f"buffer_store_dword v20, v{A_MS}, s[4:7], s{S_MO} offen sc1")
    rec(lambda: stamp(a, "m2"))
    modfin = rec.l + kd_ops(1)
    rec = Rec()
    for h in range(2):
        for c in range(2):
            rec(("KVE", f"ds_read_b64 {P2(10+4*h+2*c)}, v{A_KE} offset:{c*4608 + (1-h)*2048}"))
    rec(f"s_min_u32 s60, s{S_FO}, 1")
    rec("s_lshl_b32 s60, s60, 30")
    rec(f"s_add_u32 s60, s60, {WS_EP}")
    rec(f"buffer_store_dword v{A_TG}, v{A_FS}, s[4:7], s60 offen sc1")
    rec(lambda: a.wait(T["KVE"]))
    for o in kd_ops(0): rec(o)
    assert OPT["modat"] < 0 and OPT["ln1at"] in (2, 3) and (OPT["ln1at"] == 3 or "q" not in OPT["cord"])
    rec.l = modfin[:-8] + rec.l + modfin[-8:]
    G.add(0, rec.l)
    class Cap:
        pass
    def cap(f):
        r = []
        save = a.item
        def fake(o):
            r.append(o); return None
        a.item = fake
        f()
        a.item = save
        return r
    st1 = []
    for c in OPT["cord"]:
        if c == "W": st1 += sum(w1q, []) + [lambda: T.__setitem__("W1done", 1)]; w1q.clear()
        elif c == "w":
            for _ in range(4): st1 += w1q.pop(0)
        elif c == "c": st1 += clr_ops("bhi")
        elif c == "n": st1 += named("mod", cap(ld_mod2))
        elif c == "q": st1 += named("q", cap(ld_q))
        elif c == "z": st1 += xt_ops(4, 256, 18, 19)
        elif c == "d": st1 += cap(ld_touchd)
        elif c == "D":
            r = Rec()
            srd(r, 52, P_WD, 1792 * 1024)
            r("s_lshl2_add_u32 s72, s2, s3")
            r("s_mul_i32 s72, s72, 1792")
            r("v_min_u32 v158, 13, v1")
            r("v_lshlrev_b32 v158, 7, v158")
            r("buffer_load_dword v159, v158, s[52:55], s72 offen")
            st1 += r.l
        elif c == "-": st1 += [Delay(8)]
    G.add(1, st1)
    ACC = lambda nt: 32 + nt * 4
    ml = []
    for key in range(2):
        nd = 4 if key == 0 else 8
        lo = 4 * key
        for rr in range(4):
            if rr < 3: ml += [(key, rr, d, nt) for d in range(nd) for nt in range(max(lo, d), lo + 4)]
            else: ml += [(key, rr, d, nt) for nt in range(lo, lo + 4) for d in range(nt + 1)]
    pend = []
    seen = set()
    waited = set([(0, 0, 0)])
    hooks = {}
    def run_m(i):
        key, rr, d, nt = ml[i]
        for f in hooks.get(i, []): f()
        if (key, rr, d) not in seen:
            seen.add((key, rr, d))
            if key == 0: pend.extend([(0, rr + 1, d)] if rr < 3 else [(1, 0, d), (1, 0, d + 4)])
            elif rr < 3: pend.append((1, rr + 1, d))
        c = "0" if (rr == 0 and d == 0) else Q4(ACC(nt))
        a.emit(f"v_mfma_f32_16x16x32_bf16 {Q4(ACC(nt))}, {Q4(A(rr,nt-d),'a')}, {Q4(B(rr,d))}, {c}")
        fs = None
        if i + 1 < len(ml):
            nk = ml[i + 1][:3]
            if nk not in waited:
                waited.add(nk)
                while nk not in tb: loadB(*pend.pop(0))
                fs = lambda: a.wait(tb[nk])
        fm = (lambda: loadB(*pend.pop(0))) if pend else None
        G.gap(fs, fm)
    xw = lambda nt: ("XW", f"ds_write_b128 v{A_XW}, {Q4(ACC(nt))} offset:{(nt & 3)*1024}")
    last = {nt: max(i for i, m in enumerate(ml) if m[3] == nt) for nt in range(8)}
    def yfinal(h, pk):
        ops = []
        for c in range(2):
            y = 192 + c * 8; kd = KD[h] + 4 * c
            if pk:
                for i in (0, 2): ops.append(f"v_pk_add_f32 {P2(y+i)}, {P2(y+i)}, {P2(y+4+i)}")
                for i in (0, 2): ops.append(f"v_pk_fma_f32 {P2(y+i)}, {P2(kd+i)}, s[44:45], {P2(y+i)} op_sel:[0,{c},0] op_sel_hi:[1,{c},1]")
            else:
                for i in range(4): ops.append(f"v_add_f32 v{y+i}, v{y+i}, v{y+4+i}")
                for i in range(4): ops.append(f"v_fmac_f32 v{y+i}, s{44+c}, v{kd+i}")
        if h: ops.append(f"s_add_u32 s{S_YO}, s{S_YO}, {64*16384}")
        for i in range(4): ops.append(f"v_cvt_pk_bf16_f32 v{208+i}, v{192+i}, v{200+i}")
        for i in range(4): ops.append(f"v_min_u32 v{208+i}, s{S_SENT}, v{208+i}")
        ops.append(f"buffer_store_dwordx4 v[208:211], v9, s[4:7], s{S_YO} offen sc1")
        return ops
    yreads = [("Y", f"ds_read_b128 {Q4(192 + 4*w)}, v{A_XR} offset:{w*4096}") for w in range(4)]
    MR = dict(sa=(0, 176), ca=(1, 160), ga=(2, 164), sb=(3, 24), cb=(4, 28))
    ld_m = []
    for nm, (vec, r) in MR.items():
        if vec % 2 == 0: ld_m.append(f"s_mov_b32 s62, {WS_MOD + vec*2048}")
        ld_m.append(f"buffer_load_dwordx4 {Q4(r)}, v{A_ML}, s[4:7], s62 offen offset:{(vec % 2)*2048} sc1")
    mregs = sum((list(range(r, r + 4)) for _, r in MR.values()), [])
    def ld_y(h, sr=62):
        return [f"s_add_u32 s{sr}, s{S_YL}, {h*64*16384}", f"buffer_load_dwordx4 v[20:23], v{A_YL}, s[4:7], s{sr} offen sc1"]
    cky = check_ops(range(20, 24), 18)
    rec = Rec()
    rec(Delay(4))
    rec(lambda: a.wait(T["XW"], T["CLR"]) if OPT["f1at"] == 3 else a.wait(T["XW"]))
    rec(lambda: stamp(a, "xb0"))
    rec("s_barrier")
    rec(lambda: stamp(a, "xb1"))
    for o in yreads: rec(o)
    if OPT["f1at"] == 3:
        for o in flag_store2(WS_F1): rec(o)
    rec(Delay(3))
    rec(lambda: a.wait(T["Y"]))
    for o in yfinal(0, False): rec(o)
    rec(lambda: stamp(a, "za"))
    if OPT["xb"]: rec("s_barrier")
    rec(lambda: T.__setitem__("ZAdone", 1))
    xa_rest = rec.l
    def hook(i, f): hooks.setdefault(i, []).append(f)
    for nt in range(4): hook(last[nt] + 3, lambda nt=nt: G.st[0].insert(0, xw(nt)) if nt < 3 else G.add(0, [xw(nt)] + xa_rest))
    b4ops = [lambda: a.wait(T["W1"], T["CLR"]), lambda: stamp(a, "zb"), "s_barrier", lambda: T.__setitem__("B4done", 1)] + \
            (flag_store2(WS_F1, "s63") if OPT["f1at"] == 4 else []) + w1_tr(0, A_TR)
    b4 = [None]
    xdone = set()
    i3 = min(i for i, m in enumerate(ml) if m[:2] == (1, 3))
    if OPT["mat"] >= 0: hook(i3 + OPT["mat"], lambda: G.add(0, named("M", plain(ld_m))))
    ld_f1 = flag_load(WS_F1, 236)
    def yhook():
        assert not G.st[2], "mod final still pending"
        G.add(0, named("YL", ld_y(0)))
    hook(i3 + OPT["yat"], yhook)
    a.wait(tb[0, 0, 0])
    for i in range(len(ml)):
        if i == 40: stamp(a, 8)
        if i == OPT["modat"]:
            while T.get("mod") is None: a.item(G.st[1].pop(0))
            modblock()
            G.add(2, [Delay(2), lambda: a.wait(T["MW"]), "s_barrier"] + modfin)
        if b4[0] is None and "W1done" in T and "ZAdone" in T: b4[0] = i + OPT["b4lag"]
        if i == b4[0]: G.add(3, b4ops); print("b4 at mfma", i, file=sys.stderr)
        for nt in range(4, 7):
            if ("ZAdone" if OPT["xb"] else "B4done") in T and nt not in xdone and i >= last[nt] + 3:
                xdone.add(nt); G.st[0].insert(0, xw(nt))
        run_m(i)
    print("conv leftovers", [len(x) for x in G.st], file=sys.stderr)
    stamp(a, "cm")
    G.drain([0, 1, 2])
    if b4[0] is None or b4[0] >= len(ml): G.add(3, b4ops)
    while "B4done" not in T: a(G.st[3].pop(0))
    stamp(a, "c1")
    for nt in range(4, 8):
        if nt not in xdone: a(xw(nt))
    G.drain([3])
    a(f"v_add_u32 v18, {L_RSA}, v{A_RW}")
    a(f"v_add_u32 v19, {L_RSA}, v{A_RR}")
    for j in range(4): a(f"v_add_u32 v{VW+j}, {256*3584}, v{VW+j}")
    if OPT["mat"] < 0:
        for o in named("M", plain(ld_m)): a(o)
    if OPT["ln1at"] == 3: ln1()
    stamp(a, "c2")
    ckm = check_ops(mregs, 96)
    cky = check_ops(range(20, 24), 96)
    a.wait(T["M"])
    for o in ckm: a(o)
    k.retry(ld_m, ckm)
    for nm, dst in (("sa", 64), ("ca", 72), ("ga", 104), ("cb", 80), ("sb", 88)):
        for i in range(4):
            a(f"v_lshlrev_b32 v{dst+2*i}, 16, v{MR[nm][1]+i}")
            a(f"v_and_b32 v{dst+1+2*i}, s{S_HI}, v{MR[nm][1]+i}")
    for i in range(0, 8, 2): a(f"v_pk_mul_f32 {P2(64+i)}, {P2(64+i)}, {P2(104+i)}")
    for i in range(0, 8, 2): a(f"v_pk_mul_f32 {P2(72+i)}, {P2(72+i)}, {P2(104+i)}")
    a.wait(T["YL"])
    stamp(a, "y0")
    for o in cky: a(o)
    k.retry(ld_y(0), cky)
    a("ds_write2st64_b32 v18, v20, v21 offset0:0 offset1:4")
    a("ds_write2st64_b32 v18, v22, v23 offset0:8 offset1:12")
    for h in range(2):
        for i in range(0, 8, 2): a(f"v_pk_fma_f32 {P2(PR[h]+i)}, {P2(PR[h]+i)}, {P2(72+i)}, {P2(64+i)}")
    a("s_waitcnt lgkmcnt(0)")
    a("s_barrier")
    stamp(a, "c3")
    XR = (176, 188)
    def row_ops(h, b, pk):
        r = Rec()
        x, hh_, st = b + 4, b + 12, b + 16
        r(f"v_mov_b32 v{st}, 0")
        r(f"v_mov_b32 v{st+1}, 0")
        for i in range(4):
            r(f"v_lshlrev_b32 v{x+2*i}, 16, v{b+i}")
            r(f"v_and_b32 v{x+1+2*i}, s{S_HI}, v{b+i}")
        if pk:
            for i in range(4): r(f"v_pk_fma_f32 {P2(x+2*i)}, {P2(x+2*i)}, {P2(PR[h]+2*i)}, {P2(220+8*h+2*i)}")
        else:
            for i in range(8): r(f"v_fma_f32 v{x+i}, v{x+i}, v{PR[h]+i}, v{220+8*h+i}")
        for i in range(4): r(f"v_cvt_pk_bf16_f32 v{XR[h]+i}, v{x+2*i}, v{x+1+2*i}")
        for i in range(4):
            r(f"v_dot2c_f32_bf16 v{st}, s67, v{XR[h]+i}")
            r(f"v_dot2c_f32_bf16 v{st+1}, v{XR[h]+i}, v{XR[h]+i}")
        r(f"s_add_u32 s66, s68, {WS_H2 + h*0x100000}")
        for dpp in WAVE_RED:
            for i in range(2): r(f"v_add_f32_dpp v{st+i}, v{st+i}, v{st+i} {dpp} bank_mask:0xf")
        ln_finish(r, [(st, st + 1, st + 2)])
        r(f"v_readlane_b32 s72, v{st+1}, 63")
        r(f"v_readlane_b32 s73, v{st}, 63")
        r(f"v_mov_b32 v{st}, s73")
        if pk:
            for i in range(4): r(f"v_pk_fma_f32 {P2(x+2*i)}, {P2(x+2*i)}, s[72:73], {P2(st)} op_sel_hi:[1,0,0]")
            for i in range(4): r(f"v_pk_fma_f32 {P2(x+2*i)}, {P2(x+2*i)}, {P2(80+2*i)}, {P2(88+2*i)}")
        else:
            for i in range(8): r(f"v_fma_f32 v{x+i}, v{x+i}, s72, v{st}")
            for i in range(8): r(f"v_fma_f32 v{x+i}, v{x+i}, v{80+i}, v{88+i}")
        for i in range(4): r(f"v_cvt_pk_bf16_f32 v{hh_+i}, v{x+2*i}, v{x+1+2*i}")
        san(r, range(hh_, hh_ + 4))
        r(f"buffer_store_dwordx4 {Q4(hh_)}, v2, s[4:7], s66 offen sc1")
        return r.l
    t = a("ds_read_b128 v[32:35], v19")
    for o in ld_f1: tf1 = a(o)
    for o in yreads: ty = a(o)
    a.bg = w1_groups(); a.bg_every = OPT["p2"]; a.flush_bg(OPT["n2"])
    a.wait(t)
    for o in row_ops(0, 32, True): a(o)
    stamp(a, "h0")
    a.wait(ty)
    for o in yfinal(1, True): a(o)
    stamp(a, 9)
    if OPT["dpost"] == 1: ld_touchd()
    a.bg_every = OPT["p2b"]
    S_ZS, S_ZM, S_PF = 70, 69, 61
    VZ = 108
    SL = lambda t: ((t + 2) % 4) * 16384
    def ld_z(t, sr=63):
        return [f"s_add_u32 m0, s{S_ZM}, {SL(t)}", f"s_add_u32 s{sr}, s{S_ZS}, {t*16*16384}"] + \
               [(f"Z{t}", f"buffer_load_dwordx4 v{VZ+i}, s[4:7], s{sr} offen offset:{i*1024} sc1 lds") for i in range(4)]
    a(f"s_lshl_b32 s{S_ZS}, s{S_RB}, 14")
    a(f"s_lshl_b32 s{S_ZM}, s3, 12")
    a(f"s_add_u32 s{S_ZS}, s{S_ZS}, s{S_ZM}")
    a(f"s_add_u32 s{S_ZS}, s{S_ZS}, {WS_H2}")
    a(f"s_add_u32 s{S_ZS}, s{S_ZS}, s{S_SPARE}")
    a(f"s_add_u32 s{S_ZM}, s{S_ZM}, {L_Z}")
    a("s_lshl_b32 s63, s3, 6")
    a(f"v_xor_b32 v{VZ}, s63, v2")
    for i in range(1, 4): a(f"v_xor_b32 v{VZ+i}, {16*i}, v{VZ}")
    S_DB, S_T2, S_HS, S_F2 = 16, 17, 24, 25
    a(f"s_and_b32 s{S_DB}, s{S_IDX}, 7")
    a(f"s_lshr_b32 s60, s{S_IDX}, 3")
    a(f"s_lshl_b32 s63, s{S_XCD}, 1")
    a("s_lshr_b32 s62, s60, 1")
    a("s_add_u32 s63, s63, s62")
    a(f"s_lshl_b32 s{S_F2}, s63, 13")
    a(f"s_mul_i32 s62, s3, {14*128}")
    a(f"s_add_u32 s{S_F2}, s{S_F2}, s62")
    a("s_and_b32 s60, s60, 1")
    a("s_lshl_b32 s60, s60, 4")
    a(f"s_add_u32 s{S_T2}, s60, s63")
    a(f"s_mul_i32 s{S_HS}, s{S_T2}, 56")
    a("s_mul_i32 s60, s3, 14")
    a(f"s_add_u32 s{S_HS}, s{S_HS}, s60")
    a(f"s_lshl_b32 s{S_HS}, s{S_HS}, 10")
    a(f"s_add_u32 s{S_HS}, s{S_HS}, {WS_HH}")
    a(f"s_mul_i32 s60, s{S_RB}, 56")
    a(f"s_add_u32 s60, s60, s{S_CT}")
    a("s_lshl_b32 s60, s60, 10")
    a(f"s_add_u32 s60, s60, s{S_SPARE}")
    a(f"s_add_u32 s{S_HO}, s60, {WS_HH}")
    a(f"s_lshl_b32 s{S_PF}, s{S_RB}, 13")
    a(f"s_lshl_b32 s60, s{S_CT}, 7")
    a(f"s_add_u32 s{S_PF}, s{S_PF}, s60")
    a(f"s_and_b32 s60, s{S_FO}, {OOB}")
    a(f"s_lshl_b32 s62, s{S_ROW}, 7")
    a(f"s_add_u32 s{S_FO}, s62, s60")
    ZA = 104
    a("v_xor_b32 v3, v6, v5")
    a("v_lshlrev_b32 v3, 4, v3")
    a("v_lshl_add_u32 v3, v5, 10, v3")
    a(f"v_add_u32 v{ZA}, {L_Z}, v3")
    for i in range(1, 4): a(f"v_xor_b32 v{ZA+i}, {64*i}, v{ZA}")
    a(f"v_add_u32 v3, s{S_ZM}, v2")
    a.wait(tf1)
    for o in flag_chk(236): a(o)
    k.retry(ld_f1, flag_chk(236))
    a("s_barrier")
    print("W1b left:", len(a.bg), file=sys.stderr)
    a.flush_bg()
    stamp(a, "w2")
    ld_yb = [f"s_add_u32 s62, s{S_YL}, {64*16384}", f"buffer_load_dwordx4 v[156:159], v{A_YL}, s[4:7], s62 offen sc1"]
    for o in ld_z(0) + named("YB", ld_yb) + ld_z(1): a(o)
    if OPT["ddef"]:
        srd(a, 52, P_WD, 1792 * 1024)
        a("s_lshl2_add_u32 s72, s2, s3")
        a("s_mul_i32 s72, s72, 1792")
        a("v_min_u32 v18, 13, v1")
        a("v_lshlrev_b32 v18, 7, v18")
        a("buffer_load_dword v237, v18, s[52:55], s72 offen")
    srd(a, 48, P_WD, 1792 * 1024)
    a(f"s_mul_i32 s{S_WS}, s3, {448*1024}")
    a(f"s_lshl_b32 s60, s{S_DB}, 7")
    a(f"s_add_u32 s{S_WS}, s{S_WS}, s60")
    if OPT.get("x_lin"):
        a(f"s_lshl2_add_u32 s{S_WS}, s{S_DB}, s3")
        a(f"s_mul_i32 s{S_WS}, s{S_WS}, 57344")
    a(f"s_mul_i32 s{S_WM}, s3, 24576")
    VD, VT = 116, 124
    setup2 = Rec()
    setup2("v_bfe_u32 v120, v1, 1, 2")
    setup2("v_xor_b32 v120, v120, v6")
    setup2("v_and_b32 v121, 1, v1")
    setup2("v_lshl_add_u32 v120, v120, 1, v121")
    setup2("v_lshlrev_b32 v121, 10, v4")
    setup2(f"v_lshl_add_u32 v{VD}, v120, 4, v121")
    for j in range(1, 4): setup2(f"v_add_u32 v{VD+j}, {j*(8192-1024)}, v{VD}")
    setup2("v_lshrrev_b32 v120, 2, v1")
    setup2("v_lshlrev_b32 v120, 7, v120")
    setup2("v_and_b32 v121, 3, v1")
    setup2("v_lshl_add_u32 v120, v121, 3, v120")
    setup2(f"v_add_u32 v120, s{S_WM}, v120")
    setup2("v_bfe_u32 v121, v1, 3, 2")
    for dt in range(4):
        setup2(f"v_xor_b32 v122, {dt}, v121")
        setup2(f"v_lshl_add_u32 v{VT+dt}, v122, 5, v120")
    def wd_dma(u):
        l = [f"s_add_u32 m0, s{S_WM}, {(u % 6)*4096}"]
        for j in range(4): l.append((f"WD{u}", f"buffer_load_dwordx4 v{2 if OPT.get('x_lin') else VD+j}, s[48:51], s{S_WS} offen offset:{j*1024} lds"))
        l.append(f"s_add_u32 s{S_WS}, s{S_WS}, {4096 if OPT.get('x_lin') else 32768}")
        return l
    WR = lambda u, dt: ("v", 128 + (u * 4 + dt) * 4) if u < 8 else ("a", 112 + ((u - 8) * 4 + dt) * 4)
    def wd_tr(u):
        l = []
        for dt in range(4):
            kk, r = WR(u, dt)
            for h in range(2):
                l.append((f"WT{u}", f"ds_read_b64_tr_b16 {kk}[{r+2*h}:{r+2*h+1}], v{VT+dt} offset:{(u % 6)*4096 + h*2048}"))
        return l
    H3R = [64, 68, 72, 76, 96, 100, 104, 108, 4, 12, 116, 120, 112, 124]
    HB = lambda p, s: ("v", H3R[s]) if p == 3 else ("a", (208 + 4 * s) % 256) if p == 2 else ("a", p * 56 + 4 * s)
    def ld_h(p, s, sr=63):
        o = []
        if s % 4 == 0: o.append(f"s_add_u32 s{sr}, s{S_HS}, {p*32*56*1024 + s*1024}")
        kk, r = HB(p, s)
        o.append((f"H{p}_{s}", f"buffer_load_dwordx4 {Q4(r, kk)}, v2, s[4:7], s{sr} offen offset:{(s%4)*1024} sc1"))
        return o
    def ld_f2(base, vd, va):
        return [f"v_min_u32 v{va}, 13, v1", f"v_lshlrev_b32 v{va}, 7, v{va}", f"s_add_u32 s62, s{S_F2}, {base}",
                f"buffer_load_dword v{vd}, v{va}, s[4:7], s62 offen sc1"]
    def ht_ops(p0, np_, va, vb):
        r = Rec()
        r(f"v_min_u32 v{va}, 13, v5")
        r(f"v_lshlrev_b32 v{va}, 7, v{va}")
        if np_ > 1:
            r(f"v_and_b32 v{vb}, {np_-1}, v6")
            r(f"v_mul_u32_u24 v{vb}, {32*56*1024}, v{vb}")
            r(f"v_add_u32 v{va}, v{va}, v{vb}")
        r(f"s_mul_i32 s62, s{S_DB}, {14*128}")
        r(f"s_add_u32 s62, s62, s{S_HS}")
        if p0: r(f"s_add_u32 s62, s62, {p0*32*56*1024}")
        r(f"buffer_load_dword v{vb}, v{va}, s[4:7], s62 offen sc1")
        return r.l
    chk1 = lambda vd: [f"v_cmp_ne_u32 vcc, s{S_TAG}, v{vd}"]
    def ld_fb(vd, va, sr=62):
        return [f"v_bfe_u32 v{va}, v1, 2, 1", f"v_lshlrev_b32 v{va}, 7, v{va}", f"v_and_b32 v{vd}, 3, v1", f"v_add_lshl_u32 v{va}, v{va}, v{vd}, 7",
                f"s_lshl_b32 s{sr}, s{S_T2}, 9", f"s_add_u32 s{sr}, s{sr}, {WS_FB}", f"buffer_load_dword v{vd}, v{va}, s[4:7], s{sr} offen sc1"]
    RB0 = 131072
    XV, GV, WV = 80, 88, 92
    rec = Rec()
    srd(rec, 8, P_OUT, 0x200000)
    rec("v_lshrrev_b32 v96, 4, v0")
    rec("v_lshlrev_b32 v11, 10, v96")
    rec("v_lshl_add_u32 v11, v5, 3, v11")
    rec("v_lshrrev_b32 v97, 2, v5")
    rec("v_lshlrev_b32 v97, 3, v97")
    rec("v_and_b32 v98, 3, v5")
    rec("v_add_lshl_u32 v97, v97, v98, 3")
    rec(f"s_lshl_b32 s72, s{S_T2}, 14")
    rec(f"s_lshl_b32 s73, s{S_DB}, 7")
    rec("s_add_u32 s71, s72, s73")
    rec(f"s_lshl_b32 s73, s{S_DB}, 8")
    rec(f"s_add_u32 s66, s73, {WS_MOD + 5*2048}")
    rec("v_xor_b32 v98, v6, v5")
    rec("v_lshlrev_b32 v98, 4, v98")
    rec("v_lshl_add_u32 v98, v5, 8, v98")
    rec("s_lshl_b32 s72, s3, 12")
    rec(f"s_add_u32 s72, s72, {RB0}")
    rec(f"v_add_u32 v{WV}, s72, v98")
    for dt in range(1, 4): rec(f"v_xor_b32 v{WV+dt}, {64*dt}, v{WV}")
    rec("v_xor_b32 v10, v5, v96")
    rec("v_lshlrev_b32 v10, 4, v10")
    rec("v_lshl_add_u32 v10, v96, 8, v10")
    rec(f"v_add_u32 v10, {RB0}, v10")
    setup3 = rec.l
    ld_g = [f"buffer_load_dwordx2 {P2(GV+2)}, v97, s[4:7], s66 offen sc1"]
    ld_r = []
    for p in range(4):
        ld_r.append(f"s_add_u32 s62, s71, {WS_X1 + p*32*16384}")
        ld_r.append(f"buffer_load_dwordx2 {P2(XV+2*p)}, v11, s[4:7], s62 offen sc1")
    ckg = check_ops(range(GV + 2, GV + 4), 14)
    res1 = setup3 + ld_fb(99, 98, 72) + named("GB", ld_g)
    res2 = [lambda: a.wait(T["GB"])] + chk1(99) + [lambda: k.retry(ld_fb(99, 98), chk1(99))] + ld_r + ckg + [lambda: k.retry(ld_g, ckg)] + \
           [f"v_lshlrev_b32 v{GV}, 16, v{GV+2}", f"v_and_b32 v{GV+1}, s{S_HI}, v{GV+2}", f"v_lshlrev_b32 v{GV+2}, 16, v{GV+3}", f"v_and_b32 v{GV+3}, s{S_HI}, v{GV+3}"]
    xs_ops = [f"s_add_u32 s60, s68, {WS_X1}", f"buffer_store_dwordx4 {Q4(XR[0])}, v2, s[4:7], s60 offen sc1",
              "s_add_u32 s60, s60, 0x100000", ("XS", f"buffer_store_dwordx4 {Q4(XR[1])}, v2, s[4:7], s60 offen sc1")]
    for o in setup2.l: a(o)
    L_RS2 = L_Z - 4096
    a(f"v_add_u32 v{A_RW}, {L_RS2}, v{A_RW}")
    a(f"v_add_u32 v{A_RR}, {L_RS2}, v{A_RR}")
    ckyb = check_ops(range(156, 160), 14)
    yb1 = [lambda: a.wait(T["YB"])] + ckyb + [lambda: k.retry(ld_yb, ckyb),
           f"ds_write2st64_b32 v{A_RW}, v156, v157 offset0:0 offset1:4", ("YW", f"ds_write2st64_b32 v{A_RW}, v158, v159 offset0:8 offset1:12"),
           Delay(3), lambda: a.wait(T["YW"])]
    yb2 = [("YR", f"ds_read_b128 v[156:159], v{A_RR}"), Delay(5), lambda: a.wait(T["YR"])]
    a.wait(T["W1"])
    stamp(a, "y1")
    a("s_barrier")
    a(f"s_cmp_lg_u32 s{S_SPARE}, 0")
    a("s_cbranch_scc1 L_spare")
    for o in w1_tr(1, A_TR): a(o)
    def verify_ops(t):
        rd = [("ZV", f"ds_read_b128 {Q4(64+4*i)}, v3 offset:{SL(t) + i*1024}") for i in range(4)]
        ck = check_ops(range(64, 80), 14)
        return [lambda: a.wait(T[f"Z{t}"])] + rd + [Delay(5), lambda: a.wait(T["ZV"])] + ck + [lambda: k.retry(ld_z(t, 62), ck, mid=rd)]
    stamp(a, 10)
    for o in verify_ops(0): a(o)
    a("s_barrier")
    for o in yb1: a(o)
    a("s_barrier")
    a(yb2[0])
    stamp(a, 11)
    NB = 4
    BF = lambda n: 16 + (n % NB) * 4
    tok = {}
    def loadZ(n):
        t, s = divmod(n, 16)
        tok[n] = a.emit(f"ds_read_b128 {Q4(BF(n))}, v{ZA + (s & 3)} offset:{SL(t) + (s >> 2)*256}")
    for n in range(NB - 1): loadZ(n)
    GA = lambda t: 32 + (t & 1) * 16
    def epi_ops(t):
        acc = GA(t)
        ops = [f"v_mul_f32 v{acc+i}, v{acc+i}, v{acc+8+i}" for i in range(8)]
        ops += [f"v_cvt_pk_bf16_f32 v{112+i}, v{acc+2*i}, v{acc+2*i+1}" for i in range(4)]
        if t >= 6: ops += [f"v_min_u32 v{112+i}, s{S_SENT}, v{112+i}" for i in range(4)]
        ops.append((f"HS{t}", f"buffer_store_dwordx4 v[112:115], v2, s[4:7], s{S_HO} offen sc1"))
        ops.append(f"s_add_u32 s{S_HO}, s{S_HO}, {16*56*1024}")
        return ops
    G = Gaps(a, 5)
    G.order = [0, 3, 4, 1, 2]
    G.pace[1] = OPT.get("p3", 4)
    a.wait(tok[0])
    for t in range(8):
        stamp(a, f"t{t}")
        if t >= 1: G.add(0, [Delay(3)] + epi_ops(t - 1))
        if t + 2 < 8 and not (t == 2 and OPT["z4late"]): G.add(1, ld_z(t + 2))
        if t == 0:
            G.add(3, [Delay(OPT["hcd"]), f"s_add_u32 s60, s{S_HO}, {6*16*56*1024}", "buffer_store_dwordx4 v[244:247], v2, s[4:7], s60 offen sc1",
                      f"s_add_u32 s60, s60, {16*56*1024}", "buffer_store_dwordx4 v[244:247], v2, s[4:7], s60 offen sc1"])
        if t == 1: G.add(2, xs_ops)
        if 2 <= t <= 5:
            u = 2 * (t - 2)
            G.add(2, [lambda u=u: a.wait(T[f"WD{u+1}"])] + wd_tr(u) + wd_tr(u + 1))
        if t <= 6:
            u = 2 * t
            if u >= 6: G.add(1, [lambda u=u: a.wait(T[f"WT{u-5}"])])
            G.add(1, wd_dma(u) + wd_dma(u + 1))
            if t == 2 and OPT["z4late"]: G.add(1, ld_z(4))
        for s in range(16):
            n = t * 16 + s
            if s == (8 if t == 3 else 6) and t + 1 < 8: G.add(0, verify_ops(t + 1))
            if n - OPT["fset"] in (48, 80, 112):
                tt = (n - OPT["fset"]) // 16
                G.add(3, [lambda tt=tt: a.wait(T[f"HS{tt-2}"])] + flag_store({3: WS_F20, 5: WS_F2A, 7: WS_F2B}[tt], 8, 7, off=f"s{S_PF}"))
            if (t, s) == OPT["f0ld"]: G.add(0, named("F20", ld_f2(WS_F20, 12, 13)))
            if (t, s) == OPT["f0ck"]:
                G.add(0, [lambda: a.wait(T["F20"])] + chk1(12) + [lambda: k.retry(ld_f2(WS_F20, 12, 13), chk1(12))] + (ht_ops(0, 1, 96, 97) if OPT["ht"] else []))
            if (t, s) == (7, 1):
                G.pace[1] = OPT["hp"]
                G.add(1, sum((ld_h(0, ss) for ss in range(14)), []))
            if (t, s) == (0, 0): G.add(2, row_ops(1, 156, False))
            if (t, s) == (4, 9): G.add(4, res1)
            if (t, s) == (6, 3): G.add(0, res2)
            if t == 7 and s == 8: G.add(2, [lambda: a.wait(T["WD13"])])
            if t == 7 and 8 <= s <= 13: G.add(2, wd_tr(s))
            if (t, s) == OPT["f2ld"]: G.add(0, named("F2", ld_f2(WS_F2A, 15, 9)))
            if (t, s) == OPT["f2ck"]:
                G.add(0, [lambda: a.wait(T["F2"])] + chk1(15) + [lambda: (k.retry(ld_f2(WS_F2A, 15, 9), chk1(15)), T.__setitem__("F2Adone", 1))] + (ht_ops(1, 1, 96, 97) if OPT["ht"] else []))
            if (t, s) == OPT["f2bld"]: G.add(0, named("F2", ld_f2(WS_F2B, 12, 13)))
            if t == 7 and s >= OPT["hstart"] and "F2Adone" in T and "Hgo" not in T:
                T["Hgo"] = 1
                G.pace[1] = OPT["hp"]
                G.add(1, sum((ld_h(1, ss) for ss in range(14)), []))
            if s == 13:
                if G.left([0]): print("tile", t, "pre-barrier drain", G.left([0]), file=sys.stderr)
                G.drain([0])
                if t == 2: a.wait(T["XS"])
                a.emit("s_barrier")
                if t == 2: G.add(3, flag_store(WS_FB, 8, 7))
            for ct in range(4):
                d = Q4(GA(t) + 4 * ct)
                a.emit(f"v_mfma_f32_16x16x32_bf16 {d}, {Q4((s*4+ct)*4,'a')}, {Q4(BF(n))}, {'0' if s == 0 else d}")
                nn = n + NB - 1
                fm = (lambda: loadZ(nn)) if (ct == 0 and nn < 128) else None
                fs = (lambda: a.wait(tok[n + 1])) if (ct == 3 and n + 1 < 128) else None
                G.gap(fs, fm)
        if G.left(): print("tile", t, "leftover", [len(x) for x in G.st], file=sys.stderr)
        if t < 7: G.drain()
    G.drain([0, 3])
    wtleft = G.st[2]
    nwtleft = len(wtleft)
    while f"H0_13" not in T: a.item(G.st[1].pop(0))
    h1left = G.st[1]
    nh1left = len(h1left)
    a.label("L_gemm2")
    stamp(a, 12)
    G = Gaps(a, 3)
    G.pace[1] = OPT["hp"]
    G.add(1, h1left)
    G.add(2, wtleft)
    def ost(p, sr=60):
        return [f"s_add_u32 s{sr}, s71, {p*32*16384}", f"buffer_store_dwordx2 {P2(XV+2*p)}, v11, s[8:11], s{sr} offen {OPT['outf']}"]
    rw = lambda p, dt: ("RW", f"ds_write_b128 v{WV+dt}, {Q4(GA(p)+4*dt)} offset:{(p & 1)*16384}")
    def red_ops(p, pk=False):
        ops = [lambda: a.wait(T["RW"]), "s_barrier"]
        ro = (p & 1) * 16384
        for w in range(4): ops.append(("RR", f"ds_read_b128 {Q4(16+4*w)}, v10 offset:{ro + w*4096}"))
        u = GA(p)
        for e in range(2):
            ops.append(f"v_lshlrev_b32 v{u+2*e}, 16, v{XV+2*p+e}")
            ops.append(f"v_and_b32 v{u+1+2*e}, s{S_HI}, v{XV+2*p+e}")
        ops += [Delay(4), lambda: a.wait(T["RR"])]
        if pk:
            for j in (0, 2): ops += [f"v_pk_add_f32 {P2(16+j)}, {P2(16+j)}, {P2(20+j)}", f"v_pk_add_f32 {P2(24+j)}, {P2(24+j)}, {P2(28+j)}"]
            for j in (0, 2): ops.append(f"v_pk_add_f32 {P2(16+j)}, {P2(16+j)}, {P2(24+j)}")
            for j in (0, 2): ops.append(f"v_pk_fma_f32 {P2(16+j)}, {P2(16+j)}, {P2(GV+j)}, {P2(u+j)}")
        else:
            for j in range(4): ops += [f"v_add_f32 v{16+j}, v{16+j}, v{20+j}", f"v_add_f32 v{24+j}, v{24+j}, v{28+j}"]
            for j in range(4): ops.append(f"v_add_f32 v{16+j}, v{16+j}, v{24+j}")
            for j in range(4): ops.append(f"v_fma_f32 v{16+j}, v{16+j}, v{GV+j}, v{u+j}")
        for j in (0, 2): ops.append(f"v_cvt_pk_bf16_f32 v{XV+2*p+j//2}, v{16+j}, v{17+j}")
        if p >= OPT["defer"]: ops += ost(p)
        return ops
    ck3 = check_ops(sum((list(range(r, r + 4)) for r in H3R), []), 1)
    def flush1(name):
        while name not in T: a.item(G.st[1].pop(0))
    def ld_h1(p, s):
        kk, r = HB(p, s)
        return [f"s_add_u32 s62, s{S_HS}, {p*32*56*1024 + s*1024}", f"buffer_load_dwordx4 {Q4(r, kk)}, v2, s[4:7], s62 offen sc1"]
    a.wait(T["H0_0"])
    for p in range(4):
        stamp(a, f"p{p}")
        if p == 0: G.add(0, [Delay(3)] + epi_ops(7))
        else: G.add(0, [Delay(3)] + [rw(p - 1, dt) for dt in range(4)] + [Delay(6)] + red_ops(p - 1))
        if p == 3: G.add(1, sum((ost(pp, 63) for pp in range(OPT["defer"])), []))
        order = [(s, dt) for s in range(14) for dt in range(4)] if p < 3 else [(s, dt) for dt in range(4) for s in range(14)]
        for ii, (s, dt) in enumerate(order):
            if dt == 0 and p < 3:
                if (p, s) == OPT["f2bck"]:
                    G.add(0, [lambda: a.wait(T["F2"])] + chk1(12) + [lambda: k.retry(ld_f2(WS_F2B, 12, 13), chk1(12))] +
                          (ht_ops(2, 1, 96, 97) if OPT["ht"] else []) + [lambda: G.add(1, sum((ld_h(2, ss) for ss in range(14)), []))])
                if (p, s) == OPT["h3t"]: G.add(1, ht_ops(3, 1, 8, 9))
                if (p, s) == OPT["h3at"]: G.add(1, sum((ld_h(3, ss) for ss in range(14)), []))
                if (p, s) == OPT["h3ck"]:
                    cks = []
                    for lo, hi in ((0, 5), (5, 10), (10, 14)):
                        ck = check_ops(sum((list(range(r, r + 4)) for r in H3R[lo:hi]), []), 1)
                        cks += [Delay(OPT["h3d"], lambda hi=hi: f"H3_{hi-1}" in T), lambda hi=hi: (flush1(f"H3_{hi-1}"), a.wait(T[f"H3_{hi-1}"]))] + ck + \
                               [lambda ck=ck, lo=lo, hi=hi: k.retry(sum((ld_h1(3, ss) for ss in range(lo, hi)), []), ck)]
                    G.add(2, cks)
            if p == 3 and s == 3 and dt > 0: G.add(0, [rw(3, dt - 1)])
            d = Q4(GA(p) + 4 * dt)
            wk, wr = WR(s, dt); hk, hr = HB(p, s)
            a.emit(f"v_mfma_f32_16x16x32_bf16 {d}, {Q4(wr, wk)}, {Q4(hr, hk)}, {'0' if s == 0 else d}")
            fs = None
            if dt == 3 and p < 3:
                np_, ns = (p, s + 1) if s < 13 else (p + 1, 0)
                toks = []
                if np_ < 3:
                    while f"H{np_}_{ns}" not in T: a.item(G.st[1].pop(0))
                    toks.append(f"H{np_}_{ns}")
                if np_ == 0 and ns >= 8:
                    while any(isinstance(o, tuple) and o[0] == f"WT{ns}" for o in G.st[2]): a.item(G.st[2].pop(0))
                    toks.append(f"WT{ns}")
                if toks: fs = lambda toks=toks: a.wait(*[T[x] for x in toks])
            G.gap(fs, None)
        if G.left(): print("gemm2 p", p, "leftover", [len(x) for x in G.st], file=sys.stderr)
        G.drain([0, 2] if p < 3 else None)
    stamp(a, "p4")
    a(rw(3, 3))
    for o in red_ops(3, True): a(o)
    if STAMP and DIAG is None:
        a("s_waitcnt vmcnt(0)")
        a("s_memrealtime s[72:73]")
        a("s_waitcnt lgkmcnt(0)")
        a("s_lshl_b32 s60, s2, 2")
        a("s_add_u32 s60, s60, s3")
        a("s_lshl_b32 s60, s60, 6")
        a(f"s_add_u32 s60, s60, {WS_STAMP}")
        a("s_mov_b64 exec, 1")
        for i in range(16):
            a(f"v_mov_b32 v2, s{76+2*i if i < 13 else (72, 20, 21)[i-13]}")
            a(f"buffer_store_dword v2, off, s[4:7], s60 offset:{4*i}")
    if DIAG is not None:
        a("s_waitcnt vmcnt(0)")
        a("s_memrealtime s[72:73]")
        a("s_waitcnt lgkmcnt(0)")
        a("s_cmp_lg_u32 s2, 100")
        a("s_cbranch_scc1 L_end")
        src = 72 if DIAG == 13 else 76 + 2 * DIAG
        a(f"s_sub_u32 s60, s{src}, s76")
        a("s_add_u32 s60, s60, 6000")
        a("s_min_u32 s60, s60, 20000")
        a.label("L_diag")
        a("s_memrealtime s[72:73]")
        a("s_waitcnt lgkmcnt(0)")
        a("s_sub_u32 s61, s72, s76")
        a("s_cmp_lt_u32 s61, s60")
        a("s_cbranch_scc1 L_diag")
    a.label("L_end")
    a("s_endpgm")
    a.label("L_spare")
    a("s_waitcnt vmcnt(0)")
    for o in yb1[1:]: a(o)
    a("s_barrier")
    for o in yb2: a(o)
    for o in row_ops(1, 156, True): a(o)
    for o in xs_ops: a(o)
    if OPT["dpost"] == 2: ld_touchd()
    a("s_waitcnt vmcnt(0)")
    a("s_barrier")
    for o in flag_store(WS_FB, 9, 7): a(o)
    for grp in ((range(0, 6), range(0, 6)), (range(6, 12), range(6, 8)), (range(12, 14), ())):
        for u in grp[0]:
            for o in wd_dma(u): a(txt(o))
        a("s_waitcnt vmcnt(0)")
        for u in grp[1]:
            for o in wd_tr(u): a(txt(o))
        a("s_waitcnt lgkmcnt(0)")
    allw = sum((wd_tr(u) for u in range(8, 14)), [])
    for o in allw[:len(allw) - nwtleft]: a(txt(o))
    a(f"s_sleep {OPT['spsl']}")
    for o in res1: a(txt(o))
    a("s_waitcnt vmcnt(0)")
    for o in res2[1:]: a(o)
    def spf(p, base):
        ld = [f"s_add_u32 s62, s30, {base}", "buffer_load_dword v15, v9, s[4:7], s62 offen sc1"]
        for o in ld: a(o)
        a("s_waitcnt vmcnt(0)")
        for o in chk1(15): a(o)
        k.retry(ld, chk1(15), sleep=6)
        a(f"s_add_u32 s62, s31, {p*32*56*1024}")
        a("buffer_load_dword v100, v101, s[4:7], s62 offen sc1")
        a("s_add_u32 s62, s62, 6144")
        a("buffer_load_dword v100, v101, s[4:7], s62 offen sc1")
    if OPT["spf"]:
        a(f"s_and_b32 s60, s{S_IDX}, 3")
        a("s_lshr_b32 s62, s60, 1")
        a(f"s_lshl1_add_u32 s62, s{S_XCD}, s62")
        a("s_lshl_b32 s30, s62, 13")
        a(f"s_mul_i32 s63, s3, {14*128}")
        a("s_add_u32 s30, s30, s63")
        a("s_and_b32 s60, s60, 1")
        a("s_lshl4_add_u32 s62, s60, s62")
        a("s_mul_i32 s31, s62, 56")
        a("s_mul_i32 s63, s3, 14")
        a("s_add_u32 s31, s31, s63")
        a("s_lshl_b32 s31, s31, 10")
        a(f"s_add_u32 s31, s31, {WS_HH}")
        a("v_min_u32 v9, 13, v1")
        a("v_lshlrev_b32 v9, 7, v9")
        a("v_lshlrev_b32 v101, 7, v1")
        spf(0, WS_F20)
        spf(1, WS_F2A)
    for o in ld_f2(WS_F2A, 15, 9): a(o)
    a("s_waitcnt vmcnt(0)")
    for o in chk1(15): a(o)
    k.retry(ld_f2(WS_F2A, 15, 9), chk1(15), sleep=8)
    allh = sum((ld_h(p, s) for p in range(2) for s in range(14)), [])
    for o in allh[:len(allh) - nh1left]: a(txt(o))
    if OPT["spf"]: spf(2, WS_F2B)
    for o in ld_f2(WS_F2B, 12, 13): a(o)
    a("s_waitcnt vmcnt(0) lgkmcnt(0)")
    a("s_nop 4")
    a("s_branch L_gemm2")
    k.emit_slow()
    a.label("L_codeend")
    print("instrs", a.ninstr, "nops", a.nnop, file=sys.stderr)
    return a.text()

def main(path):
    t = f"; @launch grid=(256,1,1) block=(256,1,1) lds={LDS_BYTES}\n"
    t += '.amdgcn_target "amdgcn-amd-amdhsa--gfx950"\n.text\n'
    t += build()
    t += f""".section .rodata,"a"
.p2align 6
.amdhsa_kernel {NAME}_kernel
  .amdhsa_next_free_vgpr 512
  .amdhsa_next_free_sgpr 102
  .amdhsa_accum_offset 256
  .amdhsa_group_segment_fixed_size 0
  .amdhsa_kernarg_size 120
  .amdhsa_user_sgpr_count 2
  .amdhsa_user_sgpr_kernarg_segment_ptr 1
  .amdhsa_system_sgpr_workgroup_id_x 1
  .amdhsa_float_denorm_mode_32 3
.end_amdhsa_kernel
"""
    open(path, "w").write(t)

if __name__ == "__main__":
    for x in sys.argv[2:]:
        kk, _, vv = x.partition("=")
        if kk == "stamp":
            STAMP = True
            if vv: SLIST = [int(y) if y.isdigit() else y for y in vv.split(",")]
        elif kk == "diag":
            STAMP = True; DIAG = int(vv)
        elif vv == "none": OPT[kk] = ""
        elif ":" in vv: OPT[kk] = tuple(int(y) for y in vv.split(":"))
        else: OPT[kk] = int(vv) if vv.lstrip("-").isdigit() else vv
    main(sys.argv[1])
```

```python
import re

TRANS = ("v_exp_f32", "v_log_f32", "v_rcp_f32", "v_rsq_f32", "v_sqrt_f32", "v_sin_f32", "v_cos_f32", "v_rcp_iflag_f32")
REG_RE = re.compile(r"^(-|abs\()?([vas])(\d+|\[\d+:\d+\])\)?$")

def regs_of(op):
    op = op.strip()
    if op in ("vcc",): return [("s", "vcc")]
    if op in ("exec",): return [("s", "exec")]
    if op == "m0": return [("s", "m0")]
    m = REG_RE.match(op)
    if not m: return []
    k = m.group(2); r = m.group(3)
    if r.startswith("["):
        lo, hi = map(int, r[1:-1].split(":"))
        return [(k, i) for i in range(lo, hi + 1)]
    return [(k, int(r))]

def split_ops(text):
    text = text.split(";")[0].strip()
    parts = text.split(None, 1)
    mn = parts[0]
    if len(parts) == 1: return mn, [], ""
    rest = parts[1]
    ops = [x.strip() for x in re.split(r",(?![^\[]*\])", rest)]
    last = ops[-1].split()
    mods = " ".join(last[1:]) if len(last) > 1 else ""
    ops[-1] = last[0] if last else ""
    return mn, ops, mods

class Ins:
    def __init__(self, text):
        self.text = text
        mn, ops, mods = split_ops(text)
        self.mn, self.ops, self.mods = mn, ops, mods
        self.dst, self.src = [], []
        self.kind = "other"
        R = regs_of
        if mn.startswith("v_mfma"):
            self.kind = "mfma"
            self.passes = 8 if "32x32x16" in mn else 4 if "16x16x32" in mn else None
            assert self.passes
            self.dst = R(ops[0]); self.a = R(ops[1]) + R(ops[2]); self.c = R(ops[3]); self.src = self.a + self.c
        elif mn.startswith("v_"):
            self.kind = "valu"
            if mn.startswith("v_cmp"):
                self.dst = R(ops[0]); self.src = sum((R(o) for o in ops[1:]), [])
            elif mn.startswith("v_permlane") and "swap" in mn:
                self.dst = R(ops[0]) + R(ops[1]); self.src = list(self.dst)
            elif mn.startswith(("v_add_co", "v_sub_co", "v_addc_co", "v_subb_co")):
                self.dst = R(ops[0]) + R(ops[1]); self.src = sum((R(o) for o in ops[2:]), [])
            elif mn.startswith("v_nop"):
                pass
            else:
                self.dst = R(ops[0]); self.src = sum((R(o) for o in ops[1:]), [])
                if mn.startswith(("v_fmac", "v_dot2c", "v_writelane")) or "dpp" in mn or "sdwa" in mn:
                    self.src += self.dst
        elif mn.startswith(("buffer_load", "global_load")):
            self.kind = "vmem"
            if "lds" in mn or " lds" in (" " + mods):
                self.dma = True
                self.src = sum((R(o) for o in ops), []) + [("s", "m0")]
            else:
                self.dst = R(ops[0]); self.src = sum((R(o) for o in ops[1:]), [])
        elif mn.startswith(("buffer_store", "global_store", "buffer_atomic", "global_atomic")):
            self.kind = "vmem"
            self.src = sum((R(o) for o in ops), [])
            self.wide = mn.endswith(("x3", "x4"))
            self.data = R(ops[0]) if mn.startswith("buffer") else R(ops[1])
        elif mn.startswith(("buffer_wbl2", "buffer_inv")):
            self.kind = "vmem"
        elif mn.startswith("ds_"):
            self.kind = "ds"
            if mn.startswith(("ds_read", "ds_bpermute", "ds_permute", "ds_swizzle")):
                self.dst = R(ops[0]); self.src = sum((R(o) for o in ops[1:]), [])
            else:
                self.src = sum((R(o) for o in ops), [])
        elif mn.startswith("s_"):
            self.kind = "salu"
            if mn.startswith(("s_load", "s_buffer_load", "s_memtime", "s_memrealtime")):
                self.kind = "smem"
            if mn.startswith(("s_cmp", "s_cbranch", "s_branch", "s_waitcnt", "s_barrier", "s_nop", "s_endpgm", "s_sleep", "s_setprio", "s_bitcmp")):
                self.src = sum((R(o) for o in ops), [])
            else:
                self.dst = R(ops[0]) if ops else []
                self.src = sum((R(o) for o in ops[1:]), [])

class Asm:
    def __init__(self):
        self.out = []
        self.clock = 0
        self.ev = {}
        self.snap = {}
        self.vm = 0
        self.lg = 0
        self.nnop = 0
        self.ninstr = 0
        self.bg = []
        self.bg_every = 16
        self.bg_cnt = 0
        self.bg_off = 0
        self.bg2 = []
        self.bg2_every = 3
        self.bg2_cnt = 0
        self.T = {}

    def raw(self, s): self.out.append(s)
    def c(self, s): self.out.append("    ; " + s)

    def age(self, reg, kind):
        e = self.ev.get((reg, kind))
        if e is None: return None
        return self.clock - e[0] - 1, e[1]

    def need(self, ins):
        n = 0
        def req(reg, kind, ws):
            nonlocal n
            a = self.age(reg, kind)
            if a is not None and a[0] < ws: n = max(n, ws - a[0])
        k = ins.kind
        mn = ins.mn
        isv = lambda r: r[0] in "va"
        if k == "mfma":
            for r in ins.src:
                req(r, "valu_w", 2)
                req(r, "dot_w", 3)
            for r in ins.a:
                a = self.age(r, "mfma_w")
                if a: req(r, "mfma_w", a[1][0] + 4)
            for r in ins.c + ins.dst:
                a = self.age(r, "mfma_w")
                if a:
                    p, d = a[1]
                    if not (d == tuple(ins.c) and p == ins.passes): req(r, "mfma_w", p + 2)
        else:
            if k in ("valu", "vmem", "ds"):
                for r in ins.src + ins.dst:
                    if not isv(r): continue
                    a = self.age(r, "mfma_w")
                    if a: req(r, "mfma_w", a[1][0] + 4)
                    a = self.age(r, "dot_w")
                    if a and not (mn == a[1] and r in ins.dst and r not in regs_of(ins.ops[1]) + regs_of(ins.ops[2])):
                        req(r, "dot_w", 3)
            if k == "valu":
                for r in ins.dst:
                    if isv(r):
                        a = self.age(r, "mfma_c")
                        if a: req(r, "mfma_c", a[1] - 1)
                        req(r, "wstore", 2)
                for r in ins.src:
                    if isv(r):
                        if "dpp" in mn or mn.startswith("v_permlane"): req(r, "valu_w", 2); req(r, "ld_w", 0)
                        if mn.startswith(("v_readlane", "v_readfirstlane")): req(r, "valu_w", 1)
                        if not mn.startswith(TRANS): req(r, "trans_w", 1)
                        req(r, "sdwa_w", 1)
                    else:
                        req(r, "valu_sw", 4 if mn.startswith(("v_readlane", "v_writelane")) else 2)
                if mn.startswith(("v_cndmask", "v_addc", "v_subb")) : req(("s", "vcc"), "valu_sw", 2)
            if k in ("vmem", "ds"):
                for r in ins.dst:
                    req(r, "wstore", 1)
                for r in ins.src:
                    if isv(r): req(r, "trans_w", 1)
            if k == "vmem":
                for r in ins.src:
                    if not isv(r): req(r, "valu_sw", 5)
                if getattr(ins, "dma", False): req(("s", "m0"), "salu_w", 1)
            if k in ("salu", "smem"):
                for r in ins.src:
                    req(r, "valu_sw", 1)
                if mn.startswith("s_cbranch_vcc"): req(("s", "vcc"), "valu_sw", 1)
        return n

    def record(self, ins):
        t = self.clock
        k = ins.kind
        if k == "mfma":
            for r in ins.dst: self.ev[(r, "mfma_w")] = (t, (ins.passes, tuple(ins.dst)))
            for r in ins.c: self.ev[(r, "mfma_c")] = (t, ins.passes)
        elif k == "valu":
            for r in ins.dst:
                if r[0] in "va":
                    self.ev[(r, "valu_w")] = (t, None)
                    if ins.mn.startswith(TRANS): self.ev[(r, "trans_w")] = (t, None)
                    if ins.mn.startswith("v_dot"): self.ev[(r, "dot_w")] = (t, ins.mn)
                    if "sdwa" in ins.mn or ("op_sel" in ins.mods and not ins.mn.startswith("v_pk_")): self.ev[(r, "sdwa_w")] = (t, None)
                else:
                    self.ev[(r, "valu_sw")] = (t, None)
        elif k == "salu":
            for r in ins.dst: self.ev[(r, "salu_w")] = (t, None)
        elif k == "vmem" and getattr(ins, "wide", False):
            for r in ins.data: self.ev[(r, "wstore")] = (t, None)

    def item(self, o):
        if callable(o): return o()
        if isinstance(o, tuple):
            self.T[o[0]] = self.emit(o[1]); return self.T[o[0]]
        return self.emit(o)

    def flush_bg(self, n=10**9):
        while self.bg and n > 0:
            for o in self.bg.pop(0): self.item(o)
            n -= 1
        self.bg_cnt = 0

    def __call__(self, text):
        tok = self.item(text)
        if self.bg and not self.bg_off:
            self.bg_cnt += 1
            if self.bg_cnt >= self.bg_every: self.flush_bg(1)
        if self.bg2 and not self.bg_off:
            self.bg2_cnt += 1
            if self.bg2_cnt >= self.bg2_every:
                self.bg2_cnt = 0
                self.item(self.bg2.pop(0))
        return tok

    def emit(self, text):
        ins = Ins(text)
        n = self.need(ins)
        while n > 0:
            m = min(n, 16)
            self.out.append(f"    s_nop {m-1}")
            self.clock += m; n -= m; self.nnop += 1
        self.out.append("    " + text)
        self.ninstr += 1
        self.record(ins)
        if ins.mn == "s_nop": self.clock += int(ins.ops[0]) + 1
        else: self.clock += 1
        if ins.mn.startswith(("s_cbranch", "s_branch")):
            self.snap.setdefault(ins.ops[0], []).append({k: (self.clock - v[0], v[1]) for k, v in self.ev.items() if self.clock - v[0] < 32})
        tok = None
        if ins.kind == "vmem":
            self.vm += 1; tok = ("vm", self.vm)
        elif ins.kind == "ds":
            self.lg += 1; tok = ("lg", self.lg)
        return tok

    def label(self, name):
        self.out.append(name + ":")
        for s in self.snap.get(name, []):
            for k, (age, ex) in s.items():
                cur = self.ev.get(k)
                if cur is None or self.clock - cur[0] > age:
                    self.ev[k] = (self.clock - age, ex)

    def wait(self, *toks):
        vm = [t[1] for t in toks if t and t[0] == "vm"]
        lg = [t[1] for t in toks if t and t[0] == "lg"]
        s = []
        if vm: s.append(f"vmcnt({min(63, self.vm - max(vm))})")
        if lg: s.append(f"lgkmcnt({min(15, self.lg - max(lg))})")
        if s: self.emit("s_waitcnt " + " ".join(s))

    def text(self): return "\n".join(self.out) + "\n"


class Delay:
    def __init__(self, n, cond=None): self.n = n; self.t0 = None; self.cond = cond
    def __call__(self): pass

def cls_of(o):
    if callable(o): return "S"
    t = o[1] if isinstance(o, tuple) else o
    mn = t.split()[0]
    if mn.startswith("s_"): return "S"
    if mn.startswith("v_"): return "V"
    return "M"

class Gaps:
    def __init__(self, a, nstreams):
        self.a = a
        self.st = [[] for _ in range(nstreams)]
        self.pace = [0] * nstreams
        self.lastm = [-999] * nstreams
        self.n = 0
        self.order = list(range(nstreams))
    def add(self, i, ops): self.st[i] += list(ops)
    def left(self, which=None):
        return sum(len(x) for i, x in enumerate(self.st) if which is None or i in which)
    def take(self, cls, skip=()):
        for i in self.order:
            q = self.st[i]
            if i in skip or not q: continue
            while q and isinstance(q[0], Delay):
                if q[0].cond is not None and not q[0].cond(): break
                if q[0].t0 is None: q[0].t0 = self.n
                if self.n - q[0].t0 >= q[0].n: q.pop(0)
                else: break
            if not q or isinstance(q[0], Delay): continue
            if cls_of(q[0]) == cls:
                if cls == "M":
                    if self.n - self.lastm[i] < self.pace[i]: continue
                    self.lastm[i] = self.n
                o = q.pop(0); self.a.item(o); return i, o
        return None
    def gap(self, fixedS=None, fixedM=None, extraM=None):
        skip = set()
        self.n += 1
        def takeS():
            r = self.take("S")
            if r:
                t = r[1][1] if isinstance(r[1], tuple) else r[1]
                if isinstance(t, str) and " m0," in t: skip.add(r[0])
            return r
        if fixedS: fixedS()
        else: takeS()
        usedM = True
        if fixedM: fixedM()
        elif not self.take("M", skip):
            if extraM: extraM(); extraM = None
            else:
                usedM = False
                if not self.take("V"): takeS()
        if extraM: extraM(); return
        if usedM and getattr(self, "dbl", None):
            hasV = any(q and not isinstance(q[0], Delay) and cls_of(q[0]) == "V" for i, q in enumerate(self.st) if i in self.vpri)
            if not hasV and self.take("M", set(range(len(self.st))) - set(self.dbl)): return
        if not self.take("V"): takeS()
    def drain(self, which=None):
        for i, q in enumerate(self.st):
            if which is not None and i not in which: continue
            while q: self.a.item(q.pop(0))
```

```python
import sys
from dsl import Asm, Gaps, Delay, cls_of
NAME = "adaLN_cond__ssm_conv_h3__glu_gated_bilinear__prompt"

WS_KV, WS_Y, WS_H2, WS_X1, WS_HH = 0x0, 0x200000, 0x400000, 0x600000, 0x800000
WS_MOD = 0x1000000
WS_F0, WS_F1, WS_FB, WS_F2A, WS_F2B, WS_EP = 0x1030000, 0x1040000, 0x1050000, 0x1060000, 0x1080000, 0x10a0000
WS_F20 = 0x10c0000
WS_STAMP = 0x1800000
WS_SIZE = 0x2000000
OOB = 0x40000000
SPIN = 20000

L_KC, L_UU, L_RSA, L_MP = 131072, 147712, 156928, 161024
L_EX, L_RSB = L_KC, L_UU
L_Z = 98304
LDS_BYTES = 163840

P_Q, P_K, P_V, P_SH, P_SK, P_SD, P_WG, P_WU, P_WD, P_C, P_WM, P_OUT, P_DBG, P_WS = 16, 18, 20, 22, 24, 26, 30, 32, 34, 36, 38, 40, 42, 44
S_XCD, S_IDX, S_TAG, S_HI, S_SENT, S_RB, S_CT, S_D, S_SPARE = 46, 47, 56, 57, 58, 59, 28, 29, 75
S_WS, S_WM = 18, 19
S_FO, S_HO, S_YO, S_ROW, S_MO = 64, 65, 71, 22, 42
STAMP = False
DIAG = None
OPT = dict(ord="//m/n/cq", f0ld=(5, 4), f0ck=(6, 3), spf=1, z4late=1, hcd=30, dpost=1, mat=1, f1at=4, modat=60, cord="ncWzd", fset=2, cf=1, bg1=0, qconv=0, spsl=1, zsleep=0, ln1at=3, cconv=0, yat=12, defer=2, fs=6, ht=1, hp=3, hstart=1, f2ld=(6, 1), f2ck=(6, 9), f2bld=(7, 14), h3t=(9, 9), f2bck=(0, 5), h3at=(1, 9), dbmap=0, dbl=0, wbe=0, wbp=16, xpri=0, v0=0, vp=4, h0v=0, h0s=1, hop=0, ybat=0, epd=3, rsl=4, r1=2, h3d=8, xb=1, ddef=0, h3ck=(2, 2), rot=1, early2=1, f0at=12, aftat=20, t2=1, dt=0, n0=0, n1=0, pollat=-1, b4lag=10, p1=3, p2=12, n2=8, p2b=4, touch=1, outf="sc1", zearly=1)
Q4 = lambda r, k="v": f"{k}[{r}:{r+3}]"
P2 = lambda r: f"v[{r}:{r+1}]"
SLIST = [0, 1, 2, 3, 4, 5, 6, 7, 8, 9, 10, 11, 12]

def stamp(a, name):
    if STAMP and name in SLIST:
        i = SLIST.index(name)
        a.emit(f"s_memrealtime s[{76+2*i}:{77+2*i}]")

def srd(a, d, p, nbytes):
    a(f"s_mov_b32 s{d}, s{p}")
    a(f"s_mov_b32 s{d+1}, s{p+1}")
    a(f"s_mov_b32 s{d+2}, {hex(nbytes)}")
    a(f"s_mov_b32 s{d+3}, 0x20000")

def ln_finish(a, pairs):
    def each(f):
        for p in pairs: a(f(*p))
    each(lambda s, q, t: f"v_mul_f32 v{s}, 0x3b000000, v{s}")
    each(lambda s, q, t: f"v_mul_f32 v{q}, 0x3b000000, v{q}")
    each(lambda s, q, t: f"v_fma_f32 v{q}, -v{s}, v{s}, v{q}")
    each(lambda s, q, t: f"v_max_f32 v{q}, 0, v{q}")
    each(lambda s, q, t: f"v_cvt_pk_bf16_f32 v{t}, v{q}, v{s}")
    each(lambda s, q, t: f"v_lshlrev_b32 v{q}, 16, v{t}")
    each(lambda s, q, t: f"v_and_b32 v{s}, s{S_HI}, v{t}")
    each(lambda s, q, t: f"v_add_f32 v{q}, 0x3727c5ac, v{q}")
    each(lambda s, q, t: f"v_cvt_pk_bf16_f32 v{t}, v{q}, v{q}")
    each(lambda s, q, t: f"v_lshlrev_b32 v{q}, 16, v{t}")
    each(lambda s, q, t: f"v_sqrt_f32 v{q}, v{q}")
    each(lambda s, q, t: f"v_cvt_pk_bf16_f32 v{t}, v{q}, v{q}")
    each(lambda s, q, t: f"v_lshlrev_b32 v{q}, 16, v{t}")
    each(lambda s, q, t: f"v_rcp_f32 v{q}, v{q}")
    each(lambda s, q, t: f"v_mul_f32 v{s}, -v{s}, v{q}")

WAVE_RED = ("quad_perm:[1,0,3,2] row_mask:0xf", "quad_perm:[2,3,0,1] row_mask:0xf", "row_half_mirror row_mask:0xf",
            "row_mirror row_mask:0xf", "row_bcast:15 row_mask:0xa", "row_bcast:31 row_mask:0xc")

def san(a, regs):
    for r in regs: a(f"v_min_u32 v{r}, s{S_SENT}, v{r}")

def check_ops(regs, t):
    ops = []
    regs = list(regs)
    if len(regs) == 2:
        ops.append(f"v_max_u32 v{t}, v{regs[0]}, v{regs[1]}"); rest = []
    else:
        ops.append(f"v_max3_u32 v{t}, v{regs[0]}, v{regs[1]}, v{regs[2]}"); rest = regs[3:]
    while rest:
        if len(rest) >= 2:
            ops.append(f"v_max3_u32 v{t}, v{t}, v{rest[0]}, v{rest[1]}"); rest = rest[2:]
        else:
            ops.append(f"v_max_u32 v{t}, v{t}, v{rest[0]}"); rest = rest[1:]
    ops.append(f"v_cmp_eq_u32 vcc, -1, v{t}")
    return ops

def txt(o): return o[1] if isinstance(o, tuple) else o
def named(name, l): return list(l[:-1]) + [(name, txt(l[-1]))]

class Rec:
    def __init__(s): s.l = []
    def __call__(s, t): s.l.append(t)

class K:
    def __init__(self):
        self.a = Asm(); self.slow = []; self.nl = 0
    def retry(self, loads, chk, mid=(), sleep=None):
        if sleep is None: sleep = OPT["rsl"]
        a = self.a
        self.nl += 1; n = self.nl
        a.emit(f"s_cbranch_vccnz L_slow{n}")
        a.label(f"L_back{n}")
        self.slow.append((n, [txt(o) for o in loads], list(chk), [txt(o) for o in mid], sleep))
        if STAMP: print("retry site", n, txt(loads[-1])[:70], file=sys.stderr)
    def emit_slow(self):
        a = self.a
        for n, loads, chk, mid, sleep in self.slow:
            a.label(f"L_slow{n}")
            a("s_nop 7"); a("s_nop 7")
            a("s_mov_b32 s33, 0")
            a("s_mov_b32 s23, m0")
            if STAMP: a(f"s_bitset1_b32 s20, {n}")
            a.label(f"L_sl{n}")
            if STAMP: a("s_add_u32 s21, s21, 1")
            if sleep: a(f"s_sleep {sleep}")
            for o in loads: a(o)
            a("s_waitcnt vmcnt(0)")
            if mid:
                for o in mid: a(o)
                a("s_waitcnt lgkmcnt(0)")
            for o in chk: a(o)
            a("s_add_u32 s33, s33, 1")
            a(f"s_cmp_ge_u32 s33, {SPIN}")
            a(f"s_cbranch_scc1 L_sx{n}")
            a(f"s_cbranch_vccnz L_sl{n}")
            a.label(f"L_sx{n}")
            a("s_mov_b32 m0, s23")
            a("s_nop 4")
            a(f"s_branch L_back{n}")

A_SW, A_SR, A_A, A_KP, A_KW, A_B, A_XW, A_XR, A_KE, A_TR = 128, 129, 130, 134, 135, 136, 137, 138, 139, 140
A_MW, A_MR, A_MS, A_FS, A_FL, A_TG, A_ML, A_YL, A_RW, A_RR, A_WM, A_C, A_L1 = 144, 145, 146, 146, 148, 149, 150, 151, 152, 153, 154, 155, 156
A_SW2 = 157
S_KP, S_YL = 30, 32
def flag_store(base, vt, va, so="s60", off=f"s{S_FO}"):
    return [f"s_add_u32 {so}, {off}, {base}", f"v_lshlrev_b32 v{va}, 26, v6", f"v_lshl_add_u32 v{va}, v5, 2, v{va}",
            f"v_mov_b32 v{vt}, s{S_TAG}", f"buffer_store_dword v{vt}, v{va}, s[4:7], {so} offen sc1"]
def flag_store2(base, so="s60"):
    return [f"s_add_u32 {so}, s{S_FO}, {base}", f"buffer_store_dword v{A_TG}, v{A_FS}, s[4:7], {so} offen sc1"]
def flag_load(base, vd, so="s62"):
    return [f"s_mov_b32 {so}, {base}", f"buffer_load_dword v{vd}, v{A_FL}, s[4:7], {so} offen sc1"]
def plain(l): return [(o[0], o[1].replace(" sc1", "")) if isinstance(o, tuple) else o.replace(" sc1", "") for o in l]
def flag_chk(vd): return [f"v_cmp_ne_u32 vcc, s{S_TAG}, v{vd}"]

VW = 240
def w1_groups():
    g = []
    for j in range(32):
        l = []
        if j % 4 == 0:
            if OPT["rot"]:
                l.append("s_add_u32 s26, s26, 4096")
                l.append("s_and_b32 s26, s26, 0x7fff")
                l.append(f"s_add_u32 m0, s{S_WM}, s26")
                l.append("s_mul_i32 s27, s26, 14")
            else:
                l.append(f"s_add_u32 m0, s{S_WM}, {j*1024}")
                l.append(f"s_mov_b32 s27, {j*14336}")
        l.append(("W1", f"buffer_load_dwordx4 v{VW + j % 4}, s[48:51], s27 offen offset:{(j % 4)*1024} lds"))
        g.append(l)
    return g

def w1_tr_setup(a, b):
    a(f"v_bfe_u32 v{b+1}, v1, 2, 3")
    a("s_lshl_b32 s63, s3, 1")
    a(f"v_xor_b32 v{b+1}, s63, v{b+1}")
    a(f"v_bfe_u32 v{b}, v1, 2, 2")
    a(f"v_lshl_add_u32 v{b}, v6, 3, v{b}")
    a(f"v_lshlrev_b32 v{b}, 8, v{b}")
    a(f"v_and_b32 v{b+2}, 3, v1")
    a(f"v_lshl_add_u32 v{b}, v{b+2}, 3, v{b}")
    a(f"v_lshl_add_u32 v{b}, v{b+1}, 5, v{b}")
    a(f"v_xor_b32 v{b+1}, 32, v{b}")
    a(f"v_add_u32 v{b+2}, 0x10000, v{b}")
    a(f"v_add_u32 v{b+3}, 0x10000, v{b+1}")
def w1_tr(half, b):
    l = []
    for s in range(8):
        for ct in range(4):
            r = ((half * 8 + s) * 4 + ct) * 4
            for h in range(2):
                l.append(("WTR", f"ds_read_b64_tr_b16 a[{r+2*h}:{r+2*h+1}], v{b+ct} offset:{s*8192 + h*1024}"))
    return l

def build():
    k = K(); a = k.a; T = a.T
    a.raw(f".globl {NAME}_kernel\n.p2align 8\n.type {NAME}_kernel,@function\n{NAME}_kernel:")
    a("s_cmp_ge_u32 s2, 256")
    a("s_cbranch_scc1 L_end")
    stamp(a, 0)
    a("s_load_dwordx16 s[16:31], s[0:1], 0")
    a("s_load_dwordx8 s[32:39], s[0:1], 64")
    a("s_load_dwordx2 s[40:41], s[0:1], 96")
    a("s_load_dwordx2 s[44:45], s[0:1], 112")
    a("s_getpc_b64 s[4:5]")
    a.label("L_pc0")
    a("s_lshl_b32 s6, s2, 3")
    a("s_and_b32 s6, s6, 0xc0")
    a("v_lshrrev_b32 v3, 2, v0")
    a("v_add_lshl_u32 v3, v3, s6, 7")
    a("v_min_u32 v3, L_codeend-L_pc0-4, v3")
    a("global_load_dword v236, v3, s[4:5]")
    a("v_lshrrev_b32 v1, 6, v0")
    a("v_readfirstlane_b32 s3, v1")
    a("v_and_b32 v1, 63, v0")
    a("v_lshlrev_b32 v2, 4, v1")
    a(f"s_and_b32 s{S_XCD}, s2, 7")
    a(f"s_lshr_b32 s{S_IDX}, s2, 3")
    if OPT.get("remap"):
        a(f"s_xor_b32 s60, s{S_IDX}, 4")
        a("s_and_b32 s61, s60, 7")
        a("s_lshr_b32 s60, s60, 3")
        a(f"s_lshl2_add_u32 s{S_IDX}, s61, s60")
    a(f"s_mov_b32 s{S_HI}, 0xffff0000")
    a(f"s_mov_b32 s{S_SENT}, 0xfffffffe")
    a(f"s_lshr_b32 s60, s{S_IDX}, 2")
    a(f"s_lshl_b32 s61, s{S_XCD}, 3")
    a("s_add_u32 s66, s60, s61")
    a(f"s_and_b32 s61, s{S_IDX}, 3")
    a("s_lshl_b32 s62, s66, 15")
    a("s_lshl_b32 s63, s61, 8")
    a("s_add_u32 s62, s62, s63")
    a("s_lshl_b32 s63, s3, 6")
    a("s_add_u32 s62, s62, s63")
    a("v_and_b32 v5, 15, v1")
    a("v_lshrrev_b32 v6, 4, v1")
    a("v_lshlrev_b32 v7, 13, v6")
    a("v_lshl_add_u32 v7, v5, 2, v7")
    a("v_add_u32 v7, s62, v7")
    a("v_subrev_u32 v3, 3072, v7")
    a("v_add_u32 v4, 4096, v7")
    a("s_lshl_b32 s63, s61, 2")
    a("s_add_u32 s63, s63, s3")
    a("s_lshl_b32 s63, s63, 4")
    a("s_lshl_b32 s73, s63, 4")
    a("v_lshlrev_b32 v8, 4, v5")
    a("s_lshl2_add_u32 s65, s66, s61")
    a(f"s_lshl_b32 s65, s65, {OPT['fs']}")
    a("s_lshl_b32 s69, s66, 8")
    a("s_add_u32 s69, s69, s63")
    a("s_lshl_b32 s69, s69, 7")
    for i in range(4): a(f"v_mov_b32 v{244+i}, -1")
    a(f"s_mul_i32 s67, s{S_XCD}, 6")
    a("s_add_u32 s67, s67, s60")
    a("s_lshl_b32 s67, s67, 2")
    a("s_add_u32 s67, s67, s61")
    a(f"s_cmp_ge_u32 s{S_IDX}, 24")
    a(f"s_cselect_b32 s74, {OOB}, 0")
    a("s_cmp_eq_u32 s3, 0")
    a(f"s_cselect_b32 s70, 0, {OOB}")
    a(f"s_lshl_b32 s{S_MO}, s67, 6")
    a(f"s_add_u32 s{S_MO}, s{S_MO}, {WS_MOD}")
    a("s_or_b32 s63, s74, s70")
    a(f"s_add_u32 s{S_MO}, s{S_MO}, s63")
    a("s_lshr_b32 s63, s67, 5")
    a("s_lshr_b32 s63, 0x12, s63")
    a("s_and_b32 s63, s63, 1")
    a("s_mul_i32 s43, s63, 0x3f800000")
    a(f"s_lshl_b32 s63, s2, {OPT['fs']}")
    a(f"s_add_u32 s{S_FO}, s63, s70")
    a("s_add_u32 s70, s65, s70")
    a(f"s_add_u32 s70, s70, {WS_F0}")
    a("v_lshrrev_b32 v9, 2, v1")
    a("v_lshlrev_b32 v9, 14, v9")
    a("v_and_b32 v40, 3, v1")
    a("v_lshl_add_u32 v9, v40, 4, v9")
    a(f"s_lshl_b32 s{S_YO}, s3, 18")
    a("s_lshl_b32 s72, s2, 6")
    a(f"s_add_u32 s{S_YO}, s{S_YO}, s72")
    a(f"s_add_u32 s{S_YO}, s{S_YO}, {WS_Y}")
    a(f"v_and_b32 v{A_L1}, 1, v1")
    a("s_waitcnt lgkmcnt(0)")
    stamp(a, 1)
    srd(a, 4, P_WS, WS_SIZE)
    a(f"s_mov_b32 s72, {WS_EP}")
    a(f"buffer_load_dword v{A_TG}, off, s[4:7], s72 sc1")
    def first_clears():
        a("buffer_store_dwordx4 v[244:247], v2, s[4:7], s69 offen sc1")
        a("buffer_store_dwordx4 v[244:247], v2, s[4:7], s69 offen offset:1024 sc1")
        a(f"buffer_store_dwordx4 v[244:247], v9, s[4:7], s{S_YO} offen sc1")
        a("s_mov_b64 exec, 0xf")
        T["clr0"] = a(f"buffer_store_dwordx4 v[244:247], v2, s[4:7], s{S_MO} offen sc1")
        a("s_mov_b64 exec, -1")
    if OPT["cf"]: first_clears()
    srd(a, 8, P_K, 0x200000)
    srd(a, 12, P_V, 0x200000)
    for i in range(11):
        base, off = (3, i) if i < 3 else (7, i - 3) if i < 7 else (4, i - 7)
        a(f"buffer_load_dword v{10+i}, v{base}, s[8:11], 0 offen offset:{off*1024}")
    for i in range(8):
        base, off = (7, i) if i < 4 else (4, i - 4)
        a(f"buffer_load_dword v{21+i}, v{base}, s[12:15], 0 offen offset:{off*1024}")
    if STAMP: a("s_mov_b64 s[20:21], 0")
    srd(a, 52, P_SH, 4096)
    tkv0 = a("buffer_load_dwordx4 v[32:35], v8, s[52:55], s73 offen")
    a("s_lshl_b32 s72, s2, 2")
    a("v_mov_b32 v29, s72")
    a(f"global_load_dword v30, v29, s[{P_SD}:{P_SD+1}]")
    a("s_lshr_b32 s60, s3, 1")
    a("s_and_b32 s61, s3, 1")
    a("s_lshl1_add_u32 s62, s2, s60")
    a("s_lshl_b32 s62, s62, 12")
    a("v_mov_b32 v29, s62")
    a(f"global_load_dword v31, v29, s[{P_SK}:{P_SK+1}]")
    if not OPT["cf"]: first_clears()
    tclr = T["clr0"]
    srd(a, 52, P_SK, 0x200000)
    a("s_mul_i32 s65, s60, 8320")
    a("s_lshl_b32 s63, s61, 11")
    a("s_add_u32 s62, s62, s63")
    a("s_add_u32 s63, s63, s65")
    a(f"s_add_u32 m0, s63, {L_KC + 32}")
    a("v_add_u32 v36, 2, v2")
    a("buffer_load_dwordx4 v2, s[52:55], s62 offen lds")
    a("buffer_load_dwordx4 v2, s[52:55], s62 offen offset:1024 lds")
    a(f"s_add_u32 m0, s63, {L_KC + 32 + 4160}")
    a("s_lshl_b32 s61, s61, 8")
    a("buffer_load_dwordx4 v36, s[52:55], s62 offen lds")
    tkern = a("buffer_load_dwordx4 v36, s[52:55], s62 offen offset:1024 lds")
    a(f"s_lshl_b32 s{S_ROW}, s{S_XCD}, 5")
    a(f"s_add_u32 s{S_ROW}, s{S_ROW}, s{S_IDX}")
    if OPT["r1"] == 1:
        a(f"s_mul_i32 s72, s{S_XCD}, 28")
        a(f"s_add_u32 s72, s72, s{S_IDX}")
        a(f"s_and_b32 s{S_RB}, s72, 15")
        a(f"s_lshl_b32 s26, s{S_RB}, 12")
        a("s_lshr_b32 s66, s72, 4")
    else:
        a(f"s_and_b32 s72, s{S_XCD}, 3")
        a("s_mul_i32 s72, s72, 28")
        a(f"s_add_u32 s72, s72, s{S_IDX}")
        a(f"s_lshr_b32 s73, s{S_XCD}, 2")
        a("s_lshl_b32 s73, s73, 3")
        a(f"s_and_b32 s{S_RB}, s72, 7")
        a(f"s_lshl_b32 s26, s{S_RB}, 12")
        a(f"s_add_u32 s{S_RB}, s{S_RB}, s73")
        a("s_lshr_b32 s66, s72, 3")
    a(f"s_lshl2_add_u32 s{S_CT}, s66, s3")
    a(f"s_cmp_ge_u32 s{S_IDX}, 28")
    a(f"s_cselect_b32 s{S_SPARE}, {OOB}, 0")
    a("s_cmp_ge_u32 s3, 2")
    a(f"s_cselect_b32 s48, s{P_WU}, s{P_WG}")
    a(f"s_cselect_b32 s49, s{P_WU+1}, s{P_WG+1}")
    a(f"s_mov_b32 s50, {0 if OPT.get('x_now1') else 512*3584}")
    a("s_mov_b32 s51, 0x20000")
    a(f"s_lshl2_add_u32 s72, s{S_ROW}, s3")
    a("s_lshl_b32 s68, s72, 10")
    a("s_and_b32 s73, s3, 1")
    a(f"s_mul_i32 s73, s73, {128*3584}")
    a("s_lshl_b32 s72, s66, 8")
    a("s_add_u32 s73, s73, s72")
    a(f"s_add_u32 s73, s73, s{S_SPARE}")
    a(f"s_lshl_b32 s{S_WM}, s3, 15")
    a("v_bfe_u32 v37, v1, 1, 3")
    a("v_xor_b32 v38, v37, v6")
    a(f"v_lshl_add_u32 v38, v38, 1, v{A_L1}")
    a("v_mul_u32_u24 v39, 3584, v6")
    a("v_add_u32 v39, s73, v39")
    a(f"v_lshl_add_u32 v{VW}, v38, 4, v39")
    a(f"v_add_u32 v{VW+1}, {14336-1024}, v{VW}")
    a("v_xor_b32 v38, 8, v38")
    a(f"v_lshl_add_u32 v{VW+2}, v38, 4, v39")
    a(f"v_add_u32 v{VW+2}, {2*(14336-1024)}, v{VW+2}")
    a(f"v_add_u32 v{VW+3}, {14336-1024}, v{VW+2}")
    w1q = w1_groups()
    def w4():
        for _ in range(4):
            for o in w1q.pop(0): a(o)
    def xt_ops(nrows, row0, vt, vt2):
        r = Rec()
        r(f"v_bfe_u32 v{vt}, v1, 3, {nrows.bit_length()-1}")
        r(f"v_mul_u32_u24 v{vt}, 3584, v{vt}")
        r(f"v_and_b32 v{vt2}, 7, v1")
        if OPT["r1"] == 1:
            r(f"s_mul_i32 s73, s{S_XCD}, 28")
            r("s_add_u32 s72, s73, 27")
            r("s_lshr_b32 s72, s72, 4")
            r("s_lshr_b32 s73, s73, 4")
            r("s_sub_u32 s72, s72, s73")
            r("s_lshl1_add_u32 s72, s72, 1")
            r(f"v_min_u32 v{vt2}, s72, v{vt2}")
            r("s_lshl_b32 s73, s73, 8")
            r(f"v_add_u32 v{vt}, s73, v{vt}")
        r(f"v_lshl_add_u32 v{vt}, v{vt2}, 7, v{vt}")
        r("s_and_b32 s73, s3, 1")
        r(f"s_lshl1_add_u32 s72, s{S_IDX}, s73")
        r(f"s_mul_i32 s72, s72, {nrows*3584}")
        if OPT["r1"] != 1:
            r(f"s_and_b32 s73, s{S_XCD}, 3")
            r("s_mul_i32 s73, s73, 28")
            r("s_lshr_b32 s73, s73, 3")
            r("s_lshl_b32 s73, s73, 8")
            r("s_add_u32 s72, s72, s73")
        if row0: r(f"s_add_u32 s72, s72, {row0*3584}")
        r(f"buffer_load_dword v159, v{vt}, s[48:51], s72 offen")
        return r.l
    def xt(nrows, row0):
        for o in xt_ops(nrows, row0, 158, 147): a(o)
    def mod_blk(i):
        a(f"s_add_u32 s72, s{S_IDX}, {i}")
        a("s_and_b32 s72, s72, 3")
        a("s_lshl2_add_u32 s72, s3, s72")
        a("s_lshl_b32 s73, s72, 6")
        a(f"buffer_load_ushort v{160+i}, v{A_C}, s[12:15], s73 offen")
        a(f"s_mul_i32 s72, s72, {32*6144}")
        T["mod"] = a(f"buffer_load_dwordx4 {Q4(164+4*i)}, v{A_WM}, s[8:11], s72 offen")
    def ld_mod():
        srd(a, 8, P_WM, 0 if OPT.get("x_nomod") else 512 * 6144)
        srd(a, 12, P_C, 1024)
        a(f"v_lshrrev_b32 v{A_C}, 1, v1")
        a(f"v_mul_u32_u24 v{A_WM}, 6144, v{A_C}")
        a(f"v_lshl_add_u32 v{A_WM}, v{A_L1}, 4, v{A_WM}")
        a("s_lshl_b32 s73, s67, 5")
        a("s_add_u32 s73, s73, s74")
        a(f"v_add_u32 v{A_WM}, s73, v{A_WM}")
        a(f"v_lshlrev_b32 v{A_C}, 1, v{A_C}")
        mod_blk(0)
    def ld_mod2():
        for i in range(1, 4): mod_blk(i)
    def ld_touch():
        a("s_and_b32 s73, s3, 1")
        a("s_lshl1_add_u32 s72, s2, s73")
        a("s_mul_i32 s72, s72, 3584")
        a("v_min_u32 v237, 27, v1")
        a("v_lshlrev_b32 v237, 7, v237")
        a("buffer_load_dword v237, v237, s[48:51], s72 offen")
    def ld_touchd():
        srd(a, 52, P_WD, 1792 * 1024)
        a(f"s_lshl2_add_u32 s72, s{S_XCD}, s{S_IDX}")
        a("s_sub_u32 s72, s72, 28")
        a("s_and_b32 s72, s72, 31")
        a("s_lshl2_add_u32 s72, s72, s3")
        a("s_mul_i32 s72, s72, 14336")
        a(f"s_xor_b32 s73, s{S_SPARE}, {OOB}")
        a("s_add_u32 s72, s72, s73")
        a("v_lshlrev_b32 v158, 7, v1")
        a("buffer_load_dword v159, v158, s[52:55], s72 offen")
        a("s_add_u32 s72, s72, 6144")
        a("buffer_load_dword v159, v158, s[52:55], s72 offen")
    def ld_q():
        srd(a, 52, P_Q, 0 if OPT.get("x_noq") else 0x200000)
        a("s_add_u32 s73, s68, 0x100000")
        a("buffer_load_dwordx4 v[180:183], v2, s[52:55], s68 offen")
        T["q"] = a("buffer_load_dwordx4 v[184:187], v2, s[52:55], s73 offen")
    def clr_ops(which):
        l = []
        if OPT.get("x_noc"): return [f"s_mov_b32 s72, {OOB}", ("CLR", "buffer_store_dwordx4 v[244:247], v9, s[4:7], s72 offen sc1")]
        if "a" in which: l += [("CLR", f"buffer_store_dwordx4 v[244:247], v9, s[4:7], s{S_YO} offen sc1")]
        if "b" in which: l += [f"s_add_u32 s72, s{S_YO}, {64*16384}", ("CLR", "buffer_store_dwordx4 v[244:247], v9, s[4:7], s72 offen sc1")]
        if "h" in which: l += [f"s_add_u32 s72, s68, {WS_H2}", ("CLR", "buffer_store_dwordx4 v[244:247], v2, s[4:7], s72 offen sc1")]
        if "i" in which: l += [f"s_add_u32 s72, s68, {WS_H2 + 0x100000}", ("CLR", "buffer_store_dwordx4 v[244:247], v2, s[4:7], s72 offen sc1")]
        return l
    def clr():
        for o in clr_ops("bhi"): a(o)
    LD = dict(w=w4, x=lambda: xt(8, 0), y=lambda: xt(4, 0), z=lambda: xt(4, 256), m=ld_mod, n=ld_mod2, q=ld_q, t=ld_touch, d=ld_touchd, c=clr)
    PRE, MID, POST, AFT, LATE = OPT["ord"].split("/")
    assert sorted(set(PRE + MID + POST + AFT + LATE + OPT["cord"]) - set("tdDwxyzWV-")) == sorted("mnqc")
    for c in PRE: LD[c]()
    a("v_lshrrev_b32 v4, 3, v1")
    a("v_and_b32 v41, 7, v1")
    a("s_mul_i32 s72, s60, 4608")
    a("s_lshl_b32 s73, s61, 3")
    a("s_add_u32 s72, s72, s73")
    a(f"s_add_u32 s72, s72, {L_UU}")
    a(f"v_sub_u32 v{A_SW}, 3, v6")
    a(f"v_xor_b32 v{A_SW}, v{A_SW}, v41")
    a("v_lshlrev_b32 v38, 7, v5")
    a(f"v_lshl_add_u32 v{A_SW}, v{A_SW}, 4, v38")
    a(f"v_add_u32 v{A_SW}, s72, v{A_SW}")
    a(f"v_xor_b32 v{A_SW2}, 64, v{A_SW}")
    a(f"v_xor_b32 v{A_SR}, v1, v4")
    a(f"v_lshlrev_b32 v{A_SR}, 4, v{A_SR}")
    a(f"v_add_u32 v{A_SR}, s72, v{A_SR}")
    a(f"v_xor_b32 v{A_A}, 1, v{A_L1}")
    a(f"v_mul_u32_u24 v{A_A}, 4156, v{A_A}")
    a(f"v_lshl_add_u32 v{A_A}, v37, 2, v{A_A}")
    a(f"v_lshl_add_u32 v{A_A}, v6, 4, v{A_A}")
    a("s_add_u32 s72, s65, s61")
    a(f"s_add_u32 s72, s72, {L_KC + 4}")
    a(f"v_add_u32 v{A_A}, s72, v{A_A}")
    for i in range(1, 4): a(f"v_add_u32 v{A_A+i}, {1024*i}, v{A_A}")
    a(f"v_lshlrev_b32 v{A_KP}, 15, v4")
    a(f"v_lshl_add_u32 v{A_KP}, v41, 4, v{A_KP}")
    a(f"s_lshl_b32 s{S_KP}, s3, 19")
    a("s_lshl_b32 s72, s2, 7")
    a(f"s_add_u32 s{S_KP}, s{S_KP}, s72")
    a(f"s_add_u32 s{S_KP+1}, s{S_KP}, {8*32768}")
    a(f"v_bfe_u32 v{A_KW}, v1, 2, 1")
    a(f"v_mul_u32_u24 v{A_KW}, 4608, v{A_KW}")
    a(f"v_lshl_add_u32 v{A_KW}, v40, 4, v{A_KW}")
    a("v_lshlrev_b32 v38, 6, v4")
    a(f"v_sub_u32 v{A_KW}, v{A_KW}, v38")
    a("s_lshl_b32 s72, s3, 10")
    a(f"s_sub_u32 s73, {L_UU + 55*64}, s72")
    a(f"v_add_u32 v{A_KW}, s73, v{A_KW}")
    a(f"v_add_u32 v{A_RR}, s72, v2")
    a(f"s_add_u32 s72, s72, {L_EX}")
    a(f"v_xor_b32 v{A_XR}, v1, v4")
    a(f"v_lshlrev_b32 v{A_XR}, 4, v{A_XR}")
    a(f"v_add_u32 v{A_XR}, s72, v{A_XR}")
    a(f"v_lshlrev_b32 v{A_B}, 5, v5")
    a("v_lshlrev_b32 v38, 4, v6")
    a(f"v_sub_u32 v{A_B}, v38, v{A_B}")
    a("s_mul_i32 s72, s60, 4608")
    a("s_add_u32 s72, s72, s61")
    a(f"s_add_u32 s72, s72, {L_UU + 480}")
    a(f"v_add_u32 v{A_B}, s72, v{A_B}")
    a(f"v_lshl_add_u32 v{A_XW}, v5, 2, v6")
    a(f"v_lshrrev_b32 v38, 3, v{A_XW}")
    a(f"v_xor_b32 v{A_XW}, v{A_XW}, v38")
    a(f"v_lshlrev_b32 v{A_XW}, 4, v{A_XW}")
    a("s_lshl_b32 s72, s3, 12")
    a(f"s_add_u32 s72, s72, {L_EX}")
    a(f"v_add_u32 v{A_XW}, s72, v{A_XW}")
    a("s_lshl_b32 s72, s3, 9")
    a(f"s_sub_u32 s72, {L_UU + 4088 - 2048}, s72")
    a(f"v_lshlrev_b32 v{A_KE}, 3, v1")
    a(f"v_sub_u32 v{A_KE}, s72, v{A_KE}")
    w1_tr_setup(a, A_TR)
    a(f"v_lshlrev_b32 v{A_MW}, 3, v6")
    a(f"v_lshl_add_u32 v{A_MW}, v{A_L1}, 5, v{A_MW}")
    a("s_lshl_b32 s72, s3, 6")
    a(f"s_add_u32 s72, s72, {L_MP}")
    a(f"v_add_u32 v{A_MW}, s72, v{A_MW}")
    a(f"v_lshlrev_b32 v{A_MS}, 2, v5")
    a(f"v_lshlrev_b32 v{A_MR}, 3, v41")
    a(f"v_add_u32 v{A_MR}, {L_MP}, v{A_MR}")
    a("v_min_u32 v38, 1, v6")
    a(f"v_lshl_add_u32 v{A_MS}, v38, 26, v{A_MS}")
    a(f"v_lshlrev_b32 v{A_FL}, {OPT['fs']}, v0")
    a(f"v_lshrrev_b32 v{A_ML}, 1, v1")
    a(f"v_lshlrev_b32 v{A_ML}, 6, v{A_ML}")
    a(f"v_lshl_add_u32 v{A_ML}, v{A_L1}, 4, v{A_ML}")
    a(f"v_lshlrev_b32 v{A_YL}, 6, v0")
    a(f"v_lshlrev_b32 v{A_RW}, 2, v0")
    a(f"s_lshr_b32 s{S_YL}, s{S_ROW}, 2")
    a(f"s_lshl_b32 s{S_YL}, s{S_YL}, 14")
    a(f"s_and_b32 s72, s{S_ROW}, 3")
    a("s_lshl_b32 s72, s72, 4")
    a(f"s_add_u32 s{S_YL}, s{S_YL}, s72")
    a(f"s_add_u32 s{S_YL}, s{S_YL}, {WS_Y}")
    for i in range(4): a(f"v_mov_b32 v{44+i}, 0")
    a("v_lshrrev_b32 v38, 5, v1")
    a("v_and_b32 v39, 31, v1")
    a("v_mul_u32_u24 v38, 4608, v38")
    a("v_lshl_add_u32 v38, v39, 4, v38")
    a(f"v_add_u32 v38, {L_UU + 4096}, v38")
    a("ds_write_b128 v38, v[44:47]")
    a("v_bfe_u32 v38, v1, 1, 1")
    a("v_mul_u32_u24 v38, 4160, v38")
    a(f"v_lshl_add_u32 v38, v{A_L1}, 4, v38")
    a(f"s_add_u32 s72, s65, {L_KC}")
    a("v_add_u32 v38, s72, v38")
    stamp(a, 2)
    a.wait(tclr)
    a(f"v_readfirstlane_b32 s{S_TAG}, v{A_TG}")
    a(f"s_mul_i32 s{S_TAG}, s{S_TAG}, 0x9e3779b1")
    a(f"s_add_u32 s{S_TAG}, s{S_TAG}, 0x7f4a7c15")
    a(f"v_mov_b32 v{A_TG}, s{S_TAG}")
    a("s_barrier")
    stamp(a, 3)
    a(f"buffer_store_dword v{A_TG}, v{A_FS}, s[4:7], s70 offen sc1")
    for c in MID: LD[c]()
    a.wait(tkv0)
    stamp(a, "kd")
    ld_f0 = flag_load(WS_F0, 239)
    if OPT["f0at"] == -2:
        for o in ld_f0: tf = a(o)
    for i in range(11):
        a(f"v_lshlrev_b32 v{50+2*i}, 16, v{10+i}")
        a(f"v_and_b32 v{51+2*i}, s{S_HI}, v{10+i}")
    for j in range(4):
        for c in range(2):
            src = 32 + 2 * c + (j >> 1)
            if j & 1: a(f"v_and_b32 v{88+2*j+c}, s{S_HI}, v{src}")
            else: a(f"v_lshlrev_b32 v{88+2*j+c}, 16, v{src}")
    for j in (3, 2, 1, 0):
        for i in range(8):
            if j == 3: a(f"v_pk_mul_f32 {P2(96+2*i)}, {P2(50+2*(i+3-j))}, {P2(88+2*j)}")
            else: a(f"v_pk_fma_f32 {P2(96+2*i)}, {P2(50+2*(i+3-j))}, {P2(88+2*j)}, {P2(96+2*i)}")
    for i in range(8):
        a(f"v_lshlrev_b32 v{72+2*i}, 16, v{21+i}")
        a(f"v_and_b32 v{73+2*i}, s{S_HI}, v{21+i}")
    for i in range(8):
        a(f"v_pk_mul_f32 {P2(96+2*i)}, {P2(96+2*i)}, {P2(72+2*i)}")
    for c in range(2):
        for d in range(4):
            a(f"v_cvt_pk_bf16_f32 v{112+4*c+d}, v{96+2*(7-2*d)+c}, v{96+2*(6-2*d)+c}")
        san(a, range(112 + 4 * c, 116 + 4 * c))
        a(f"ds_write_b128 v{A_SW2 if c else A_SW}, {Q4(112+4*c)}")
    r0 = a(f"ds_read_b128 v[112:115], v{A_SR}")
    r1 = a(f"ds_read_b128 v[116:119], v{A_SR} offset:1024")
    a.wait(r0)
    a("buffer_store_dwordx4 v[112:115], v2, s[4:7], s69 offen sc1")
    a.wait(r1)
    a("buffer_store_dwordx4 v[116:119], v2, s[4:7], s69 offen offset:1024 sc1")
    stamp(a, 4)
    if OPT["f0at"] == -1:
        for o in ld_f0: tf = a(o)
    for c in POST: LD[c]()
    a("v_cmp_eq_u32 vcc, 3, v40")
    a.wait(tkern)
    a("v_lshlrev_b32 v31, 16, v31")
    a(f"v_readfirstlane_b32 s{S_D}, v30")
    a("v_cndmask_b32 v47, v47, v31, vcc")
    a("s_mov_b64 exec, 0xf")
    a("ds_write_b128 v38, v[44:47]")
    a("s_mov_b64 exec, -1")
    a(f"s_lshl_b32 s44, s{S_D}, 16")
    a(f"s_and_b32 s45, s{S_D}, s{S_HI}")
    a("s_barrier")
    stamp(a, "k0")
    A = lambda rr, q: 128 + (rr * 8 + q) * 4
    n0 = OPT["n0"]
    for rr in range(4):
        for q in range(8):
            if rr * 8 + q == OPT["f0at"]:
                for o in ld_f0: tf = a(o)
            if rr * 8 + q == OPT["aftat"]:
                for c in AFT: LD[c]()
            o = (64 * rr + 512 * (q & 1)) // 4
            a(f"ds_read2_b32 a[{A(rr,q)}:{A(rr,q)+1}], v{A_A + (q >> 1)} offset0:{o} offset1:{o+1}")
            a(f"ds_read2_b32 a[{A(rr,q)+2}:{A(rr,q)+3}], v{A_A + (q >> 1)} offset0:{o+2} offset1:{o+3}")
            if (q & 1) and n0 > 0:
                for o in w1q.pop(0): a(o)
                n0 -= 1
    stamp(a, "af")
    ld_kv = [f"buffer_load_dwordx4 v[16:19], v{A_KP}, s[4:7], s{S_KP} offen sc1", f"buffer_load_dwordx4 v[20:23], v{A_KP}, s[4:7], s{S_KP+1} offen sc1"]
    def poll():
        stamp(a, 5)
        a.wait(tf)
        for o in flag_chk(239): a(o)
        k.retry(ld_f0, flag_chk(239))
        for o in ld_kv: T["KV"] = a(o)
        stamp(a, 6)
        for c in LATE: LD[c]()
        for _ in range(OPT["n1"]):
            for o in w1q.pop(0): a(o)
        if OPT["bg1"]: a.bg = w1q; a.bg_every = OPT["bg1"]
    PR = (212, 248)
    def ln1():
        a.wait(T["q"])
        a("s_mov_b32 s67, 0x3f803f80")
        for i in range(4): a(f"v_mov_b32 v{188+i}, 0")
        for i in range(4):
            for h in range(2):
                a(f"v_dot2c_f32_bf16 v{188+2*h}, s67, v{180+4*h+i}")
                a(f"v_dot2c_f32_bf16 v{189+2*h}, v{180+4*h+i}, v{180+4*h+i}")
        for h in range(2):
            for i in range(4):
                a(f"v_lshlrev_b32 v{220+8*h+2*i}, 16, v{180+4*h+i}")
                a(f"v_and_b32 v{221+8*h+2*i}, s{S_HI}, v{180+4*h+i}")
        for dpp in WAVE_RED:
            for i in range(4): a(f"v_add_f32_dpp v{188+i}, v{188+i}, v{188+i} {dpp} bank_mask:0xf")
        ln_finish(a, [(188, 189, 192), (190, 191, 193)])
        for h in range(2):
            a(f"v_readlane_b32 s{36+2*h}, v{189+2*h}, 63")
            a(f"v_readlane_b32 s{37+2*h}, v{188+2*h}, 63")
        for h in range(2): a(f"v_mov_b32 v{192+2*h}, s{37+2*h}")
        for h in range(2):
            for i in range(0, 8, 2): a(f"v_pk_fma_f32 {P2(PR[h]+i)}, {P2(220+8*h+i)}, s[{36+2*h}:{37+2*h}], {P2(192+2*h)} op_sel_hi:[1,0,0]")
    if OPT["ln1at"] == 0: ln1()
    if OPT["pollat"] == -1: poll()

    def modblock():
        a.wait(T["mod"])
        stamp(a, "m0")
        E, SV, UP, AC = 236, 212, 220, 228
        for i in range(4):
            a(f"v_lshlrev_b32 v{160+i}, 16, v{160+i}")
            a(f"v_mul_f32 v{E+i}, 0xbfb8aa3b, v{160+i}")
        for i in range(4): a(f"v_exp_f32 v{E+i}, v{E+i}")
        for i in range(4): a(f"v_add_f32 v{E+i}, 1.0, v{E+i}")
        for i in range(4): a(f"v_rcp_f32 v{E+i}, v{E+i}")
        for i in range(4): a(f"v_mul_f32 v{160+i}, v{160+i}, v{E+i}")
        for i in range(4): a(f"v_cvt_pk_bf16_f32 v{E+i}, v{160+i}, v{160+i}")
        for i in range(4): a(f"v_lshlrev_b32 v{SV+2*i}, 16, v{E+i}")
        for i in range(4):
            for d in range(4):
                a(f"v_lshlrev_b32 v{UP+2*d}, 16, v{164+4*i+d}")
                a(f"v_and_b32 v{UP+1+2*d}, s{S_HI}, v{164+4*i+d}")
            for d in range(4):
                if i == 0: a(f"v_pk_mul_f32 {P2(AC+2*d)}, {P2(UP+2*d)}, {P2(SV+2*i)} op_sel_hi:[1,0]")
                else: a(f"v_pk_fma_f32 {P2(AC+2*d)}, {P2(UP+2*d)}, {P2(SV+2*i)}, {P2(AC+2*d)} op_sel_hi:[1,0,1]")
        for p in range(4): a(f"v_permlane32_swap_b32 v{AC+p}, v{AC+4+p}")
        for p in range(4): a(f"v_add_f32 v{AC+p}, v{AC+p}, v{AC+4+p}")
        for p in range(2): a(f"v_permlane16_swap_b32 v{AC+p}, v{AC+2+p}")
        for p in range(2): a(f"v_add_f32 v{AC+p}, v{AC+p}, v{AC+2+p}")
        for rr in (8, 4, 2):
            for p in range(2):
                a(f"v_add_f32_dpp v{AC+p}, v{AC+p}, v{AC+p} row_ror:{rr} row_mask:0xf bank_mask:0xf")
        T["MW"] = a(f"ds_write_b64 v{A_MW}, {P2(AC)}")
        stamp(a, "m1")
    if OPT["modat"] < 0: modblock()
    if OPT["ln1at"] == 2: ln1()
    a.bg = []
    print("W1a left at conv start", len(w1q), file=sys.stderr)
    stamp(a, "tr")
    a.wait(T["KV"])
    stamp(a, "kv")
    ck = check_ops(range(16, 24), 29)
    for o in ck: a(o)
    k.retry(ld_kv, ck)
    a(f"ds_write_b128 v{A_KW}, v[16:19] offset:512")
    a(f"ds_write_b128 v{A_KW}, v[20:23]")
    a("s_waitcnt lgkmcnt(0)")
    a("s_barrier")
    stamp(a, 7)
    B = lambda rr, d: 64 + (rr & 1) * 32 + d * 4
    tb = {}
    def loadB(key, rr, d):
        tb[key, rr, d] = a.emit(f"ds_read_b128 {Q4(B(rr,d))}, v{A_B} offset:{3584 - 512*d + 64*rr}")
    for d in range(4): loadB(0, 0, d)
    G = Gaps(a, 4)
    G.pace[1] = OPT["p1"]
    if OPT["dbl"]: G.dbl = [0, 3]; G.vpri = [0]
    KD = (24, 168)
    def kd_ops(h):
        ops = []
        for c in range(2):
            for i in range(4):
                e = 3 - i
                kr = 10 + 4 * h + 2 * c + (e >> 1)
                ops.append(f"v_and_b32 v{KD[h]+4*c+i}, s{S_HI}, v{kr}" if e & 1 else f"v_lshlrev_b32 v{KD[h]+4*c+i}, 16, v{kr}")
        return ops
    rec = Rec()
    rec(f"ds_read2_b64 v[192:195], v{A_MR} offset0:0 offset1:8")
    rec(("MP", f"ds_read2_b64 v[196:199], v{A_MR} offset0:16 offset1:24"))
    rec(Delay(4))
    rec(lambda: a.wait(T["MP"]))
    for c in range(2): rec(f"v_add_f32 v{192+c}, v{192+c}, v{194+c}")
    for c in range(2): rec(f"v_add_f32 v{196+c}, v{196+c}, v{198+c}")
    for c in range(2): rec(f"v_add_f32 v{192+c}, v{192+c}, v{196+c}")
    rec("v_cvt_pk_bf16_f32 v20, v192, v193")
    rec("v_lshlrev_b32 v192, 16, v20")
    rec(f"v_and_b32 v193, s{S_HI}, v20")
    for c in range(2): rec(f"v_add_f32 v{192+c}, s43, v{192+c}")
    rec("v_cvt_pk_bf16_f32 v20, v192, v193")
    rec(f"v_min_u32 v20, s{S_SENT}, v20")
    rec(f"buffer_store_dword v20, v{A_MS}, s[4:7], s{S_MO} offen sc1")
    rec(lambda: stamp(a, "m2"))
    modfin = rec.l + kd_ops(1)
    rec = Rec()
    for h in range(2):
        for c in range(2):
            rec(("KVE", f"ds_read_b64 {P2(10+4*h+2*c)}, v{A_KE} offset:{c*4608 + (1-h)*2048}"))
    rec(f"s_min_u32 s60, s{S_FO}, 1")
    rec("s_lshl_b32 s60, s60, 30")
    rec(f"s_add_u32 s60, s60, {WS_EP}")
    rec(f"buffer_store_dword v{A_TG}, v{A_FS}, s[4:7], s60 offen sc1")
    rec(lambda: a.wait(T["KVE"]))
    for o in kd_ops(0): rec(o)
    assert OPT["modat"] < 0 and OPT["ln1at"] in (2, 3, 4) and (OPT["ln1at"] >= 3 or "q" not in OPT["cord"])
    rec.l = modfin[:-8] + rec.l + modfin[-8:]
    G.add(0, rec.l)
    class Cap:
        pass
    def cap(f):
        r = []
        save = a.item
        def fake(o):
            r.append(o); return None
        a.item = fake
        f()
        a.item = save
        return r
    st1 = []
    strict = []
    for c in OPT["cord"]:
        if c == "W": st1 += sum(w1q, []) + [lambda: T.__setitem__("W1done", 1)]; w1q.clear()
        elif c == "V":
            strict += sum(w1q, []); w1q.clear()
            st1 += [Delay(0, lambda: not strict), lambda: T.__setitem__("W1done", 1)]
        elif c == "w":
            for _ in range(4): st1 += w1q.pop(0)
        elif c == "c": st1 += clr_ops("bhi")
        elif c == "n": st1 += named("mod", cap(ld_mod2))
        elif c == "q": st1 += named("q", cap(ld_q))
        elif c == "z": st1 += xt_ops(4, 256, 18, 19)
        elif c == "d": st1 += cap(ld_touchd)
        elif c == "D":
            r = Rec()
            srd(r, 52, P_WD, 1792 * 1024)
            r("s_lshl2_add_u32 s72, s2, s3")
            r("s_mul_i32 s72, s72, 1792")
            r("v_min_u32 v158, 13, v1")
            r("v_lshlrev_b32 v158, 7, v158")
            r("buffer_load_dword v159, v158, s[52:55], s72 offen")
            st1 += r.l
        elif c == "-": st1 += [Delay(8)]
    G.add(1, st1)
    ACC = lambda nt: 32 + nt * 4
    ml = []
    for key in range(2):
        nd = 4 if key == 0 else 8
        lo = 4 * key
        for rr in range(4):
            if rr < 3: ml += [(key, rr, d, nt) for d in range(nd) for nt in range(max(lo, d), lo + 4)]
            else: ml += [(key, rr, d, nt) for nt in range(lo, lo + 4) for d in range(nt + 1)]
    pend = []
    seen = set()
    waited = set([(0, 0, 0)])
    hooks = {}
    lastv = [-99]
    def run_m(i):
        key, rr, d, nt = ml[i]
        for f in hooks.get(i, []): f()
        if (key, rr, d) not in seen:
            seen.add((key, rr, d))
            if key == 0: pend.extend([(0, rr + 1, d)] if rr < 3 else [(1, 0, d), (1, 0, d + 4)])
            elif rr < 3: pend.append((1, rr + 1, d))
        c = "0" if (rr == 0 and d == 0) else Q4(ACC(nt))
        a.emit(f"v_mfma_f32_16x16x32_bf16 {Q4(ACC(nt))}, {Q4(A(rr,nt-d),'a')}, {Q4(B(rr,d))}, {c}")
        fs = None
        if i + 1 < len(ml):
            nk = ml[i + 1][:3]
            if nk not in waited:
                waited.add(nk)
                while nk not in tb: loadB(*pend.pop(0))
                fs = lambda: a.wait(tb[nk])
        fm = (lambda: loadB(*pend.pop(0))) if pend else None
        if OPT["xpri"] and 30 <= i < 80 and "ZAdone" not in T and G.st[0] and cls_of(G.st[0][0]) == "M" and len(pend) < 4: fm = None
        xm = None
        if strict and i >= OPT["v0"]:
            if txt(strict[0]).startswith("s_"):
                if fs is None: fs = lambda: a.item(strict.pop(0))
                elif (i - OPT["v0"]) % OPT["vp"] == OPT["vp"] - 1:
                    f0 = fs
                    fs = lambda: (f0(), [a.item(strict.pop(0)) for _ in range(2) if txt(strict[0]).startswith("s_")])
            elif i - lastv[0] >= OPT["vp"]:
                lastv[0] = i
                xm = lambda: a.item(strict.pop(0))
        G.gap(fs, fm, xm)
    xw = lambda nt: ("XW", f"ds_write_b128 v{A_XW}, {Q4(ACC(nt))} offset:{(nt & 3)*1024}")
    last = {nt: max(i for i, m in enumerate(ml) if m[3] == nt) for nt in range(8)}
    def yfinal(h, pk):
        ops = []
        for c in range(2):
            y = 192 + c * 8; kd = KD[h] + 4 * c
            if pk:
                for i in (0, 2): ops.append(f"v_pk_add_f32 {P2(y+i)}, {P2(y+i)}, {P2(y+4+i)}")
                for i in (0, 2): ops.append(f"v_pk_fma_f32 {P2(y+i)}, {P2(kd+i)}, s[44:45], {P2(y+i)} op_sel:[0,{c},0] op_sel_hi:[1,{c},1]")
            else:
                for i in range(4): ops.append(f"v_add_f32 v{y+i}, v{y+i}, v{y+4+i}")
                for i in range(4): ops.append(f"v_fmac_f32 v{y+i}, s{44+c}, v{kd+i}")
        if h: ops.append(f"s_add_u32 s{S_YO}, s{S_YO}, {64*16384}")
        for i in range(4): ops.append(f"v_cvt_pk_bf16_f32 v{208+i}, v{192+i}, v{200+i}")
        for i in range(4): ops.append(f"v_min_u32 v{208+i}, s{S_SENT}, v{208+i}")
        ops.append(f"buffer_store_dwordx4 v[208:211], v9, s[4:7], s{S_YO} offen sc1")
        return ops
    yreads = [("Y", f"ds_read_b128 {Q4(192 + 4*w)}, v{A_XR} offset:{w*4096}") for w in range(4)]
    MR = dict(sa=(0, 176), ca=(1, 160), ga=(2, 164), sb=(3, 24), cb=(4, 28))
    ld_m = []
    for nm, (vec, r) in MR.items():
        if vec % 2 == 0: ld_m.append(f"s_mov_b32 s62, {WS_MOD + vec*2048}")
        ld_m.append(f"buffer_load_dwordx4 {Q4(r)}, v{A_ML}, s[4:7], s62 offen offset:{(vec % 2)*2048} sc1")
    mregs = sum((list(range(r, r + 4)) for _, r in MR.values()), [])
    def ld_y(h, sr=62):
        return [f"s_add_u32 s{sr}, s{S_YL}, {h*64*16384}", f"buffer_load_dwordx4 v[20:23], v{A_YL}, s[4:7], s{sr} offen sc1"]
    cky = check_ops(range(20, 24), 18)
    rec = Rec()
    rec(Delay(4))
    rec(lambda: a.wait(T["XW"], T["CLR"]) if OPT["f1at"] == 3 else a.wait(T["XW"]))
    rec(lambda: stamp(a, "xb0"))
    rec("s_barrier")
    rec(lambda: stamp(a, "xb1"))
    for o in yreads: rec(o)
    if OPT["f1at"] == 3:
        for o in flag_store2(WS_F1): rec(o)
    rec(Delay(3))
    rec(lambda: a.wait(T["Y"]))
    for o in yfinal(0, False): rec(o)
    rec(lambda: stamp(a, "za"))
    if OPT["xb"]: rec("s_barrier")
    rec(lambda: T.__setitem__("ZAdone", 1))
    xa_rest = rec.l
    def hook(i, f): hooks.setdefault(i, []).append(f)
    for nt in range(4): hook(last[nt] + 3, lambda nt=nt: G.st[0].insert(0, xw(nt)) if nt < 3 else G.add(0, [xw(nt)] + xa_rest))
    b4ops = [lambda: a.wait(T["W1"], T["CLR"]), lambda: stamp(a, "zb"), "s_barrier", lambda: T.__setitem__("B4done", 1)] + \
            (flag_store2(WS_F1, "s63") if OPT["f1at"] == 4 else []) + w1_tr(0, A_TR)
    b4 = [None]
    xdone = set()
    i3 = min(i for i, m in enumerate(ml) if m[:2] == (1, 3))
    if OPT["mat"] >= 0: hook(i3 + OPT["mat"], lambda: G.add(0, named("M", ld_m)))
    ld_f1 = flag_load(WS_F1, 236)
    def yhook():
        assert not G.st[2], "mod final still pending"
        G.add(0, named("YL", ld_y(0)))
    hook(i3 + OPT["yat"], yhook)
    a.wait(tb[0, 0, 0])
    for i in range(len(ml)):
        if i == 40: stamp(a, 8)
        stamp(a, f"i{i}")
        if i == OPT["modat"]:
            while T.get("mod") is None: a.item(G.st[1].pop(0))
            modblock()
            G.add(2, [Delay(2), lambda: a.wait(T["MW"]), "s_barrier"] + modfin)
        if b4[0] is None and "W1done" in T and "ZAdone" in T: b4[0] = i + OPT["b4lag"]
        if i == b4[0]: G.add(3, b4ops); print("b4 at mfma", i, file=sys.stderr)
        for nt in range(4, 7):
            if ("ZAdone" if OPT["xb"] else "B4done") in T and nt not in xdone and i >= last[nt] + 3:
                xdone.add(nt); G.st[0].insert(0, xw(nt))
        run_m(i)
    print("conv leftovers", [len(x) for x in G.st], file=sys.stderr)
    stamp(a, "cm")
    if strict: print("strict left", len(strict), file=sys.stderr)
    while strict: a(strict.pop(0))
    G.drain([0, 1, 2])
    if OPT["ln1at"] == 4:
        if "ZAdone" in T and OPT["xb"]:
            for nt in range(4, 8):
                if nt not in xdone: xdone.add(nt); a(xw(nt))
        ln1()
    if b4[0] is None or b4[0] >= len(ml): G.add(3, b4ops)
    while "B4done" not in T: a(G.st[3].pop(0))
    stamp(a, "c1")
    for nt in range(4, 8):
        if nt not in xdone: a(xw(nt))
    G.drain([3])
    w1b = w1_groups()
    a(f"v_add_u32 v18, {L_RSA}, v{A_RW}")
    a(f"v_add_u32 v19, {L_RSA}, v{A_RR}")
    for j in range(4): a(f"v_add_u32 v{VW+j}, {256*3584}, v{VW+j}")
    if OPT["mat"] < 0:
        for o in named("M", ld_m): a(o)
    if OPT["wbe"]:
        a.wait(T["WTR"])
        a("s_barrier")
        a.bg = w1b; a.bg_every = OPT["wbp"]; a.flush_bg(OPT["wbe"])
    if OPT["ln1at"] == 3: ln1()
    stamp(a, "c2")
    ckm = check_ops(mregs, 96)
    cky = check_ops(range(20, 24), 96)
    a.wait(T["M"])
    for o in ckm: a(o)
    k.retry(ld_m, ckm)
    for nm, dst in (("sa", 64), ("ca", 72), ("ga", 104), ("cb", 80), ("sb", 88)):
        for i in range(4):
            a(f"v_lshlrev_b32 v{dst+2*i}, 16, v{MR[nm][1]+i}")
            a(f"v_and_b32 v{dst+1+2*i}, s{S_HI}, v{MR[nm][1]+i}")
    for i in range(0, 8, 2): a(f"v_pk_mul_f32 {P2(64+i)}, {P2(64+i)}, {P2(104+i)}")
    for i in range(0, 8, 2): a(f"v_pk_mul_f32 {P2(72+i)}, {P2(72+i)}, {P2(104+i)}")
    a.wait(T["YL"])
    stamp(a, "y0")
    for o in cky: a(o)
    k.retry(ld_y(0), cky)
    a("ds_write2st64_b32 v18, v20, v21 offset0:0 offset1:4")
    a("ds_write2st64_b32 v18, v22, v23 offset0:8 offset1:12")
    for h in range(2):
        for i in range(0, 8, 2): a(f"v_pk_fma_f32 {P2(PR[h]+i)}, {P2(PR[h]+i)}, {P2(72+i)}, {P2(64+i)}")
    a("s_waitcnt lgkmcnt(0)")
    a("s_barrier")
    stamp(a, "c3")
    XR = (176, 188)
    def row_ops(h, b, pk):
        r = Rec()
        x, hh_, st = b + 4, b + 12, b + 16
        r(f"v_mov_b32 v{st}, 0")
        r(f"v_mov_b32 v{st+1}, 0")
        for i in range(4):
            r(f"v_lshlrev_b32 v{x+2*i}, 16, v{b+i}")
            r(f"v_and_b32 v{x+1+2*i}, s{S_HI}, v{b+i}")
        if pk:
            for i in range(4): r(f"v_pk_fma_f32 {P2(x+2*i)}, {P2(x+2*i)}, {P2(PR[h]+2*i)}, {P2(220+8*h+2*i)}")
        else:
            for i in range(8): r(f"v_fma_f32 v{x+i}, v{x+i}, v{PR[h]+i}, v{220+8*h+i}")
        for i in range(4): r(f"v_cvt_pk_bf16_f32 v{XR[h]+i}, v{x+2*i}, v{x+1+2*i}")
        for i in range(4):
            r(f"v_dot2c_f32_bf16 v{st}, s67, v{XR[h]+i}")
            r(f"v_dot2c_f32_bf16 v{st+1}, v{XR[h]+i}, v{XR[h]+i}")
        r(f"s_add_u32 s66, s68, {WS_H2 + h*0x100000}")
        for dpp in WAVE_RED:
            for i in range(2): r(f"v_add_f32_dpp v{st+i}, v{st+i}, v{st+i} {dpp} bank_mask:0xf")
        ln_finish(r, [(st, st + 1, st + 2)])
        r(f"v_readlane_b32 s72, v{st+1}, 63")
        r(f"v_readlane_b32 s73, v{st}, 63")
        r(f"v_mov_b32 v{st}, s73")
        if pk:
            for i in range(4): r(f"v_pk_fma_f32 {P2(x+2*i)}, {P2(x+2*i)}, s[72:73], {P2(st)} op_sel_hi:[1,0,0]")
            for i in range(4): r(f"v_pk_fma_f32 {P2(x+2*i)}, {P2(x+2*i)}, {P2(80+2*i)}, {P2(88+2*i)}")
        else:
            for i in range(8): r(f"v_fma_f32 v{x+i}, v{x+i}, s72, v{st}")
            for i in range(8): r(f"v_fma_f32 v{x+i}, v{x+i}, v{80+i}, v{88+i}")
        for i in range(4): r(f"v_cvt_pk_bf16_f32 v{hh_+i}, v{x+2*i}, v{x+1+2*i}")
        san(r, range(hh_, hh_ + 4))
        r(f"buffer_store_dwordx4 {Q4(hh_)}, v2, s[4:7], s66 offen sc1")
        return r.l
    t = a("ds_read_b128 v[32:35], v19")
    for o in ld_f1: tf1 = a(o)
    for o in yreads: ty = a(o)
    a.bg = w1b; a.bg_every = OPT["p2"]; a.flush_bg(OPT["n2"])
    a.wait(t)
    for o in row_ops(0, 32, True): a(o)
    stamp(a, "h0")
    a.wait(ty)
    for o in yfinal(1, True): a(o)
    stamp(a, 9)
    if OPT["dpost"] == 1: ld_touchd()
    a.bg_every = OPT["p2b"]
    S_ZS, S_ZM, S_PF = 70, 69, 61
    VZ = 108
    SL = lambda t: ((t + 2) % 4) * 16384
    def ld_z(t, sr=63):
        return [f"s_add_u32 m0, s{S_ZM}, {SL(t)}", f"s_add_u32 s{sr}, s{S_ZS}, {t*16*16384}"] + \
               [(f"Z{t}", f"buffer_load_dwordx4 v{VZ+i}, s[4:7], s{sr} offen offset:{i*1024} sc1 lds") for i in range(4)]
    a(f"s_lshl_b32 s{S_ZS}, s{S_RB}, 14")
    a(f"s_lshl_b32 s{S_ZM}, s3, 12")
    a(f"s_add_u32 s{S_ZS}, s{S_ZS}, s{S_ZM}")
    a(f"s_add_u32 s{S_ZS}, s{S_ZS}, {WS_H2}")
    a(f"s_add_u32 s{S_ZS}, s{S_ZS}, s{S_SPARE}")
    a(f"s_add_u32 s{S_ZM}, s{S_ZM}, {L_Z}")
    a("s_lshl_b32 s63, s3, 6")
    a(f"v_xor_b32 v{VZ}, s63, v2")
    for i in range(1, 4): a(f"v_xor_b32 v{VZ+i}, {16*i}, v{VZ}")
    S_DB, S_T2, S_HS, S_F2 = 16, 17, 24, 25
    if OPT["dbmap"] == 1:
        a(f"s_and_b32 s{S_DB}, s{S_IDX}, 3")
        a(f"s_bfe_u32 s60, s{S_IDX}, 0x10002")
        a(f"s_lshl1_add_u32 s{S_DB}, s{S_DB}, s60")
    elif OPT["dbmap"] == 2:
        a(f"s_xor_b32 s{S_DB}, s{S_IDX}, 4")
        a(f"s_and_b32 s{S_DB}, s{S_DB}, 7")
    elif OPT["dbmap"] == 3:
        a(f"s_lshr_b32 s{S_DB}, s{S_IDX}, 2")
        a(f"s_xor_b32 s{S_DB}, s{S_DB}, 4")
    else: a(f"s_and_b32 s{S_DB}, s{S_IDX}, 7")
    if OPT["dbmap"] == 3: a(f"s_and_b32 s60, s{S_IDX}, 3")
    else: a(f"s_lshr_b32 s60, s{S_IDX}, 3")
    a(f"s_lshl_b32 s63, s{S_XCD}, 1")
    a("s_lshr_b32 s62, s60, 1")
    a("s_add_u32 s63, s63, s62")
    a(f"s_lshl_b32 s{S_F2}, s63, 13")
    a(f"s_mul_i32 s62, s3, {14*128}")
    a(f"s_add_u32 s{S_F2}, s{S_F2}, s62")
    a("s_and_b32 s60, s60, 1")
    a("s_lshl_b32 s60, s60, 4")
    a(f"s_add_u32 s{S_T2}, s60, s63")
    a(f"s_mul_i32 s{S_HS}, s{S_T2}, 56")
    a("s_mul_i32 s60, s3, 14")
    a(f"s_add_u32 s{S_HS}, s{S_HS}, s60")
    a(f"s_lshl_b32 s{S_HS}, s{S_HS}, 10")
    a(f"s_add_u32 s{S_HS}, s{S_HS}, {WS_HH}")
    a(f"s_mul_i32 s60, s{S_RB}, 56")
    a(f"s_add_u32 s60, s60, s{S_CT}")
    a("s_lshl_b32 s60, s60, 10")
    a(f"s_add_u32 s60, s60, s{S_SPARE}")
    a(f"s_add_u32 s{S_HO}, s60, {WS_HH}")
    a(f"s_lshl_b32 s{S_PF}, s{S_RB}, 13")
    a(f"s_lshl_b32 s60, s{S_CT}, 7")
    a(f"s_add_u32 s{S_PF}, s{S_PF}, s60")
    a(f"s_and_b32 s60, s{S_FO}, {OOB}")
    a(f"s_lshl_b32 s62, s{S_ROW}, 7")
    a(f"s_add_u32 s{S_FO}, s62, s60")
    ZA = 104
    a("v_xor_b32 v3, v6, v5")
    a("v_lshlrev_b32 v3, 4, v3")
    a("v_lshl_add_u32 v3, v5, 10, v3")
    a(f"v_add_u32 v{ZA}, {L_Z}, v3")
    for i in range(1, 4): a(f"v_xor_b32 v{ZA+i}, {64*i}, v{ZA}")
    a(f"v_add_u32 v3, s{S_ZM}, v2")
    a.wait(tf1)
    for o in flag_chk(236): a(o)
    k.retry(ld_f1, flag_chk(236))
    a("s_barrier")
    print("W1b left:", len(a.bg), file=sys.stderr)
    a.flush_bg()
    stamp(a, "w2")
    ld_yb = [f"s_add_u32 s62, s{S_YL}, {64*16384}", f"buffer_load_dwordx4 v[156:159], v{A_YL}, s[4:7], s62 offen sc1"]
    for o in ld_z(0) + (named("YB", ld_yb) if OPT["ybat"] == 0 else []) + ld_z(1) + (named("YB", ld_yb) if OPT["ybat"] == 1 else []): a(o)
    if OPT["ddef"]:
        srd(a, 52, P_WD, 1792 * 1024)
        a("s_lshl2_add_u32 s72, s2, s3")
        a("s_mul_i32 s72, s72, 1792")
        a("v_min_u32 v18, 13, v1")
        a("v_lshlrev_b32 v18, 7, v18")
        a("buffer_load_dword v237, v18, s[52:55], s72 offen")
    srd(a, 48, P_WD, 1792 * 1024)
    a(f"s_mul_i32 s{S_WS}, s3, {448*1024}")
    a(f"s_lshl_b32 s60, s{S_DB}, 7")
    a(f"s_add_u32 s{S_WS}, s{S_WS}, s60")
    if OPT.get("x_lin"):
        a(f"s_lshl2_add_u32 s{S_WS}, s{S_DB}, s3")
        a(f"s_mul_i32 s{S_WS}, s{S_WS}, 57344")
    a(f"s_mul_i32 s{S_WM}, s3, 24576")
    VD, VT = 116, 124
    setup2 = Rec()
    setup2("v_bfe_u32 v120, v1, 1, 2")
    setup2("v_xor_b32 v120, v120, v6")
    setup2("v_and_b32 v121, 1, v1")
    setup2("v_lshl_add_u32 v120, v120, 1, v121")
    setup2("v_lshlrev_b32 v121, 10, v4")
    setup2(f"v_lshl_add_u32 v{VD}, v120, 4, v121")
    for j in range(1, 4): setup2(f"v_add_u32 v{VD+j}, {j*(8192-1024)}, v{VD}")
    setup2("v_lshrrev_b32 v120, 2, v1")
    setup2("v_lshlrev_b32 v120, 7, v120")
    setup2("v_and_b32 v121, 3, v1")
    setup2("v_lshl_add_u32 v120, v121, 3, v120")
    setup2(f"v_add_u32 v120, s{S_WM}, v120")
    setup2("v_bfe_u32 v121, v1, 3, 2")
    for dt in range(4):
        setup2(f"v_xor_b32 v122, {dt}, v121")
        setup2(f"v_lshl_add_u32 v{VT+dt}, v122, 5, v120")
    def wd_dma(u):
        l = [f"s_add_u32 m0, s{S_WM}, {(u % 6)*4096}"]
        for j in range(4): l.append((f"WD{u}", f"buffer_load_dwordx4 v{2 if OPT.get('x_lin') else VD+j}, s[48:51], s{S_WS} offen offset:{j*1024} lds"))
        l.append(f"s_add_u32 s{S_WS}, s{S_WS}, {4096 if OPT.get('x_lin') else 32768}")
        return l
    WR = lambda u, dt: ("v", 128 + (u * 4 + dt) * 4) if u < 8 else ("a", 112 + ((u - 8) * 4 + dt) * 4)
    def wd_tr(u):
        l = []
        for dt in range(4):
            kk, r = WR(u, dt)
            for h in range(2):
                l.append((f"WT{u}", f"ds_read_b64_tr_b16 {kk}[{r+2*h}:{r+2*h+1}], v{VT+dt} offset:{(u % 6)*4096 + h*2048}"))
        return l
    H3R = [64, 68, 72, 76, 96, 100, 104, 108, 4, 12, 116, 120, 112, 124]
    H0V = [100, 64, 68, 72, 76, 96][:OPT["h0v"]]
    HB = lambda p, s: ("v", H3R[s]) if p == 3 else ("v", H0V[s]) if (p == 0 and s < len(H0V)) else ("a", (208 + 4 * s) % 256) if p == 2 else ("a", p * 56 + 4 * s)
    def ld_h(p, s, sr=63):
        o = []
        if s % 4 == 0: o.append(f"s_add_u32 s{sr}, s{S_HS}, {(0 if OPT.get('x_h') else p)*32*56*1024 + s*1024 + (OOB if OPT.get('x_h') == 2 else 0)}")
        kk, r = HB(p, s)
        o.append((f"H{p}_{s}", f"buffer_load_dwordx4 {Q4(r, kk)}, v2, s[4:7], s{sr} offen offset:{(s%4)*1024} sc1"))
        return o
    def ld_f2(base, vd, va):
        return [f"v_min_u32 v{va}, 13, v1", f"v_lshlrev_b32 v{va}, 7, v{va}", f"s_add_u32 s62, s{S_F2}, {base}",
                f"buffer_load_dword v{vd}, v{va}, s[4:7], s62 offen sc1"]
    def ht_ops(p0, np_, va, vb):
        r = Rec()
        r(f"v_min_u32 v{va}, 13, v5")
        r(f"v_lshlrev_b32 v{va}, 7, v{va}")
        if np_ > 1:
            r(f"v_and_b32 v{vb}, {np_-1}, v6")
            r(f"v_mul_u32_u24 v{vb}, {32*56*1024}, v{vb}")
            r(f"v_add_u32 v{va}, v{va}, v{vb}")
        r(f"s_mul_i32 s62, s{S_DB}, {14*128}")
        r(f"s_add_u32 s62, s62, s{S_HS}")
        if p0: r(f"s_add_u32 s62, s62, {p0*32*56*1024}")
        r(f"buffer_load_dword v{vb}, v{va}, s[4:7], s62 offen sc1")
        return r.l
    chk1 = lambda vd: [f"v_cmp_ne_u32 vcc, v{vd}, v{vd}" if OPT.get("x_nof") else f"v_cmp_ne_u32 vcc, s{S_TAG}, v{vd}"]
    def ld_fb(vd, va, sr=62):
        return [f"v_bfe_u32 v{va}, v1, 2, 1", f"v_lshlrev_b32 v{va}, 7, v{va}", f"v_and_b32 v{vd}, 3, v1", f"v_add_lshl_u32 v{va}, v{va}, v{vd}, 7",
                f"s_lshl_b32 s{sr}, s{S_T2}, 9", f"s_add_u32 s{sr}, s{sr}, {WS_FB}", f"buffer_load_dword v{vd}, v{va}, s[4:7], s{sr} offen sc1"]
    RB0 = 131072
    XV, GV, WV = 80, 88, 92
    rec = Rec()
    srd(rec, 8, P_OUT, 0x200000)
    rec("v_lshrrev_b32 v96, 4, v0")
    rec("v_lshlrev_b32 v11, 10, v96")
    rec("v_lshl_add_u32 v11, v5, 3, v11")
    rec("v_lshrrev_b32 v97, 2, v5")
    rec("v_lshlrev_b32 v97, 3, v97")
    rec("v_and_b32 v98, 3, v5")
    rec("v_add_lshl_u32 v97, v97, v98, 3")
    rec(f"s_lshl_b32 s72, s{S_T2}, 14")
    rec(f"s_lshl_b32 s73, s{S_DB}, 7")
    rec("s_add_u32 s71, s72, s73")
    rec(f"s_lshl_b32 s73, s{S_DB}, 8")
    rec(f"s_add_u32 s66, s73, {WS_MOD + 5*2048}")
    rec("v_xor_b32 v98, v6, v5")
    rec("v_lshlrev_b32 v98, 4, v98")
    rec("v_lshl_add_u32 v98, v5, 8, v98")
    rec("s_lshl_b32 s72, s3, 12")
    rec(f"s_add_u32 s72, s72, {RB0}")
    rec(f"v_add_u32 v{WV}, s72, v98")
    for dt in range(1, 4): rec(f"v_xor_b32 v{WV+dt}, {64*dt}, v{WV}")
    rec("v_xor_b32 v10, v5, v96")
    rec("v_lshlrev_b32 v10, 4, v10")
    rec("v_lshl_add_u32 v10, v96, 8, v10")
    rec(f"v_add_u32 v10, {RB0}, v10")
    setup3 = rec.l
    ld_g = [f"buffer_load_dwordx2 {P2(GV+2)}, v97, s[4:7], s66 offen sc1"]
    ld_r = []
    for p in range(4):
        ld_r.append(f"s_add_u32 s62, s71, {WS_X1 + p*32*16384}")
        ld_r.append(f"buffer_load_dwordx2 {P2(XV+2*p)}, v11, s[4:7], s62 offen sc1")
    ckg = check_ops(range(GV + 2, GV + 4), 14)
    res1 = setup3 + ld_fb(99, 98, 72) + named("GB", ld_g)
    res2 = [lambda: a.wait(T["GB"])] + chk1(99) + [lambda: k.retry(ld_fb(99, 98), chk1(99))] + ld_r + ckg + [lambda: k.retry(ld_g, ckg)] + \
           [f"v_lshlrev_b32 v{GV}, 16, v{GV+2}", f"v_and_b32 v{GV+1}, s{S_HI}, v{GV+2}", f"v_lshlrev_b32 v{GV+2}, 16, v{GV+3}", f"v_and_b32 v{GV+3}, s{S_HI}, v{GV+3}"]
    xs_ops = [f"s_add_u32 s60, s68, {WS_X1}", f"buffer_store_dwordx4 {Q4(XR[0])}, v2, s[4:7], s60 offen sc1",
              "s_add_u32 s60, s60, 0x100000", ("XS", f"buffer_store_dwordx4 {Q4(XR[1])}, v2, s[4:7], s60 offen sc1")]
    for o in setup2.l: a(o)
    L_RS2 = L_Z - 4096
    a(f"v_add_u32 v{A_RW}, {L_RS2}, v{A_RW}")
    a(f"v_add_u32 v{A_RR}, {L_RS2}, v{A_RR}")
    ckyb = check_ops(range(156, 160), 14)
    yb1 = [lambda: a.wait(T["YB"])] + ckyb + [lambda: k.retry(ld_yb, ckyb),
           f"ds_write2st64_b32 v{A_RW}, v156, v157 offset0:0 offset1:4", ("YW", f"ds_write2st64_b32 v{A_RW}, v158, v159 offset0:8 offset1:12"),
           Delay(3), lambda: a.wait(T["YW"])]
    yb2 = [("YR", f"ds_read_b128 v[156:159], v{A_RR}"), Delay(5), lambda: a.wait(T["YR"])]
    if OPT["hop"]:
        a("s_branch L_hop0")
        a.label("L_hopback")
    a.wait(T["W1"])
    if OPT["ybat"] == 2:
        for o in named("YB", ld_yb): a(o)
    stamp(a, "y1")
    a("s_barrier")
    a(f"s_cmp_lg_u32 s{S_SPARE}, 0")
    a("s_cbranch_scc1 L_spare")
    for o in w1_tr(1, A_TR): a(o)
    def verify_ops(t):
        rd = [("ZV", f"ds_read_b128 {Q4(64+4*i)}, v3 offset:{SL(t) + i*1024}") for i in range(4)]
        ck = check_ops(range(64, 80), 14)
        return [lambda: a.wait(T[f"Z{t}"])] + rd + [Delay(5), lambda: a.wait(T["ZV"])] + ck + [lambda: k.retry(ld_z(t, 62), ck, mid=rd)]
    stamp(a, 10)
    for o in verify_ops(0): a(o)
    a("s_barrier")
    for o in yb1: a(o)
    a("s_barrier")
    a(yb2[0])
    stamp(a, 11)
    npad = [0]
    def pad(last=False):
        i = npad[0]; npad[0] += 1
        a.emit(f"s_branch L_skip{i}")
        a.label(f"L_hop{i}")
        a.emit("s_branch L_hopback" if last else f"s_branch L_hop{i+1}")
        a.label(f"L_skip{i}")
    NB = 4
    BF = lambda n: 16 + (n % NB) * 4
    tok = {}
    def loadZ(n):
        t, s = divmod(n, 16)
        tok[n] = a.emit(f"ds_read_b128 {Q4(BF(n))}, v{ZA + (s & 3)} offset:{SL(t) + (s >> 2)*256}")
    for n in range(NB - 1): loadZ(n)
    GA = lambda t: 32 + (t & 1) * 16
    def epi_ops(t):
        acc = GA(t)
        ops = [f"v_mul_f32 v{acc+i}, v{acc+i}, v{acc+8+i}" for i in range(8)]
        ops += [f"v_cvt_pk_bf16_f32 v{112+i}, v{acc+2*i}, v{acc+2*i+1}" for i in range(4)]
        if t >= 6: ops += [f"v_min_u32 v{112+i}, s{S_SENT}, v{112+i}" for i in range(4)]
        ops.append((f"HS{t}", f"buffer_store_dwordx4 v[112:115], v2, s[4:7], s{S_HO} offen sc1"))
        ops.append(f"s_add_u32 s{S_HO}, s{S_HO}, {16*56*1024}")
        return ops
    G = Gaps(a, 5)
    G.order = [0, 3, 4, 1, 2]
    G.pace[1] = OPT.get("p3", 4)
    a.wait(tok[0])
    for t in range(8):
        stamp(a, f"t{t}")
        if OPT["hop"] and t in (2, 4, 6): pad()
        if t >= 1: G.add(0, [Delay(OPT["epd"])] + epi_ops(t - 1))
        if t >= 1 and OPT.get("sfirst"): G.add(1, [Delay(0, lambda t=t: f"HS{t-1}" in T)])
        if t + 2 < 8 and not (t == 2 and OPT["z4late"]): G.add(1, ld_z(t + 2))
        if t == 0:
            G.add(3, [Delay(OPT["hcd"]), f"s_add_u32 s60, s{S_HO}, {6*16*56*1024}", "buffer_store_dwordx4 v[244:247], v2, s[4:7], s60 offen sc1",
                      f"s_add_u32 s60, s60, {16*56*1024}", "buffer_store_dwordx4 v[244:247], v2, s[4:7], s60 offen sc1"])
        if t == 1: G.add(2, xs_ops)
        if 2 <= t <= 5:
            u = 2 * (t - 2)
            G.add(2, [lambda u=u: a.wait(T[f"WD{u+1}"])] + wd_tr(u) + wd_tr(u + 1))
        if t <= 6:
            u = 2 * t
            if u >= 6: G.add(1, [lambda u=u: a.wait(T[f"WT{u-5}"])])
            G.add(1, wd_dma(u) + wd_dma(u + 1))
            if t == 2 and OPT["z4late"]: G.add(1, ld_z(4))
        for s in range(16):
            n = t * 16 + s
            if s == (8 if t == 3 else 6) and t + 1 < 8: G.add(0, verify_ops(t + 1))
            if n - OPT["fset"] in (48, 80, 112):
                tt = (n - OPT["fset"]) // 16
                G.add(3, [lambda tt=tt: a.wait(T[f"HS{tt-2}"])] + flag_store({3: WS_F20, 5: WS_F2A, 7: WS_F2B}[tt], 8, 7, off=f"s{S_PF}"))
            if (t, s) == OPT["f0ld"]: G.add(0, named("F20", ld_f2(WS_F20, 12, 13)))
            if (t, s) == OPT["f0ck"]:
                G.add(0, [lambda: a.wait(T["F20"])] + chk1(12) + [lambda: k.retry(ld_f2(WS_F20, 12, 13), chk1(12))] + (ht_ops(0, 1, 96, 97) if OPT["ht"] else []))
            if (t, s) == (6, 13) and H0V: G.add(1, [Delay(0, lambda: not G.st[0])] + sum((ld_h(0, ss) for ss in range(len(H0V))), []))
            if (t, s) == (7, OPT["h0s"]):
                G.pace[1] = OPT["hp"]
                G.add(1, sum((ld_h(0, ss) for ss in range(len(H0V), 14)), []))
            if (t, s) == (0, 0): G.add(2, row_ops(1, 156, False))
            if (t, s) == (4, 9): G.add(4, res1)
            if (t, s) == (6, 3): G.add(0, res2)
            if t == 7 and s == 8: G.add(2, [lambda: a.wait(T["WD13"])])
            if t == 7 and 8 <= s <= 13: G.add(2, wd_tr(s))
            if (t, s) == OPT["f2ld"]: G.add(0, named("F2", ld_f2(WS_F2A, 15, 9)))
            if (t, s) == OPT["f2ck"]:
                G.add(0, [lambda: a.wait(T["F2"])] + chk1(15) + [lambda: (k.retry(ld_f2(WS_F2A, 15, 9), chk1(15)), T.__setitem__("F2Adone", 1))] + (ht_ops(1, 1, 96, 97) if OPT["ht"] else []))
            if (t, s) == OPT["f2bld"]: G.add(0, named("F2", ld_f2(WS_F2B, 12, 13)))
            if t == 7 and s >= OPT["hstart"] and "F2Adone" in T and "Hgo" not in T:
                T["Hgo"] = 1
                G.pace[1] = OPT["hp"]
                G.add(1, sum((ld_h(1, ss) for ss in range(14)), []))
            if s == 13:
                if G.left([0]): print("tile", t, "pre-barrier drain", G.left([0]), file=sys.stderr)
                G.drain([0])
                if t == 2: a.wait(T["XS"])
                a.emit("s_barrier")
                if t == 2: G.add(3, flag_store(WS_FB, 8, 7))
            for ct in range(4):
                d = Q4(GA(t) + 4 * ct)
                a.emit(f"v_mfma_f32_16x16x32_bf16 {d}, {Q4((s*4+ct)*4,'a')}, {Q4(BF(n))}, {'0' if s == 0 else d}")
                nn = n + NB - 1
                fm = (lambda: loadZ(nn)) if (ct == 0 and nn < 128) else None
                fs = (lambda: a.wait(tok[n + 1])) if (ct == 3 and n + 1 < 128) else None
                G.gap(fs, fm)
        if G.left(): print("tile", t, "leftover", [len(x) for x in G.st], file=sys.stderr)
        if t < 7: G.drain([0, 2, 3, 4] if (t == 6 and H0V) else None)
    G.drain([0, 3])
    wtleft = G.st[2]
    nwtleft = len(wtleft)
    while f"H0_13" not in T: a.item(G.st[1].pop(0))
    h1left = G.st[1]
    nh1left = len(h1left)
    a.label("L_gemm2")
    stamp(a, 12)
    G = Gaps(a, 3)
    G.pace[1] = OPT["hp"]
    G.add(1, h1left)
    G.add(2, wtleft)
    def ost(p, sr=60):
        return [f"s_add_u32 s{sr}, s71, {p*32*16384}", f"buffer_store_dwordx2 {P2(XV+2*p)}, v11, s[8:11], s{sr} offen {OPT['outf']}"]
    rw = lambda p, dt: ("RW", f"ds_write_b128 v{WV+dt}, {Q4(GA(p)+4*dt)} offset:{(p & 1)*16384}")
    def red_ops(p, pk=False):
        ops = [lambda: a.wait(T["RW"]), "s_barrier"]
        ro = (p & 1) * 16384
        for w in range(4): ops.append(("RR", f"ds_read_b128 {Q4(16+4*w)}, v10 offset:{ro + w*4096}"))
        u = GA(p)
        for e in range(2):
            ops.append(f"v_lshlrev_b32 v{u+2*e}, 16, v{XV+2*p+e}")
            ops.append(f"v_and_b32 v{u+1+2*e}, s{S_HI}, v{XV+2*p+e}")
        ops += [Delay(4), lambda: a.wait(T["RR"])]
        if pk:
            for j in (0, 2): ops += [f"v_pk_add_f32 {P2(16+j)}, {P2(16+j)}, {P2(20+j)}", f"v_pk_add_f32 {P2(24+j)}, {P2(24+j)}, {P2(28+j)}"]
            for j in (0, 2): ops.append(f"v_pk_add_f32 {P2(16+j)}, {P2(16+j)}, {P2(24+j)}")
            for j in (0, 2): ops.append(f"v_pk_fma_f32 {P2(16+j)}, {P2(16+j)}, {P2(GV+j)}, {P2(u+j)}")
        else:
            for j in range(4): ops += [f"v_add_f32 v{16+j}, v{16+j}, v{20+j}", f"v_add_f32 v{24+j}, v{24+j}, v{28+j}"]
            for j in range(4): ops.append(f"v_add_f32 v{16+j}, v{16+j}, v{24+j}")
            for j in range(4): ops.append(f"v_fma_f32 v{16+j}, v{16+j}, v{GV+j}, v{u+j}")
        for j in (0, 2): ops.append(f"v_cvt_pk_bf16_f32 v{XV+2*p+j//2}, v{16+j}, v{17+j}")
        if p >= OPT["defer"]: ops += ost(p)
        return ops
    ck3 = check_ops(sum((list(range(r, r + 4)) for r in H3R), []), 1)
    def flush1(name):
        while name not in T: a.item(G.st[1].pop(0))
    def ld_h1(p, s):
        kk, r = HB(p, s)
        return [f"s_add_u32 s62, s{S_HS}, {p*32*56*1024 + s*1024}", f"buffer_load_dwordx4 {Q4(r, kk)}, v2, s[4:7], s62 offen sc1"]
    a.wait(T["H0_0"])
    for p in range(4):
        stamp(a, f"p{p}")
        if OPT["hop"] and p in (0, 2): pad(last=(p == 2))
        if p == 0: G.add(0, [Delay(3)] + epi_ops(7))
        else: G.add(0, [Delay(3)] + [rw(p - 1, dt) for dt in range(4)] + [Delay(6)] + red_ops(p - 1))
        if p == 3: G.add(1, sum((ost(pp, 63) for pp in range(OPT["defer"])), []))
        order = [(s, dt) for s in range(14) for dt in range(4)] if p < 3 else [(s, dt) for dt in range(4) for s in range(14)]
        for ii, (s, dt) in enumerate(order):
            if dt == 0 and p < 3:
                if (8 + p, s) == OPT["f2bld"]: G.add(0, named("F2", ld_f2(WS_F2B, 12, 13)))
                if (p, s) == OPT["f2bck"]:
                    G.add(0, [lambda: a.wait(T["F2"])] + chk1(12) + [lambda: k.retry(ld_f2(WS_F2B, 12, 13), chk1(12))] +
                          (ht_ops(2, 1, 96, 97) if OPT["ht"] else []) + [lambda: G.add(1, sum((ld_h(2, ss) for ss in range(14)), []))])
                if (p, s) == OPT["h3t"]: G.add(1, ht_ops(3, 1, 8, 9))
                if (p, s) == OPT["h3at"]: G.add(1, sum((ld_h(3, ss) for ss in range(14)), []))
                if (p, s) == OPT["h3ck"]:
                    cks = []
                    for lo, hi in ((0, 5), (5, 10), (10, 14)):
                        ck = check_ops(sum((list(range(r, r + 4)) for r in H3R[lo:hi]), []), 1)
                        cks += [Delay(OPT["h3d"], lambda hi=hi: f"H3_{hi-1}" in T), lambda hi=hi: (flush1(f"H3_{hi-1}"), a.wait(T[f"H3_{hi-1}"]))] + ck + \
                               [lambda ck=ck, lo=lo, hi=hi: k.retry(sum((ld_h1(3, ss) for ss in range(lo, hi)), []), ck)]
                    G.add(2, cks)
            if p == 3 and s == 3 and dt > 0: G.add(0, [rw(3, dt - 1)])
            d = Q4(GA(p) + 4 * dt)
            wk, wr = WR(s, dt); hk, hr = HB(p, s)
            a.emit(f"v_mfma_f32_16x16x32_bf16 {d}, {Q4(wr, wk)}, {Q4(hr, hk)}, {'0' if s == 0 else d}")
            fs = None
            if dt == 3 and p < 3:
                np_, ns = (p, s + 1) if s < 13 else (p + 1, 0)
                toks = []
                if np_ < 3:
                    while f"H{np_}_{ns}" not in T: a.item(G.st[1].pop(0))
                    toks.append(f"H{np_}_{ns}")
                if np_ == 0 and ns >= 8:
                    while any(isinstance(o, tuple) and o[0] == f"WT{ns}" for o in G.st[2]): a.item(G.st[2].pop(0))
                    toks.append(f"WT{ns}")
                if toks: fs = lambda toks=toks: a.wait(*[T[x] for x in toks])
            G.gap(fs, None)
        if G.left(): print("gemm2 p", p, "leftover", [len(x) for x in G.st], file=sys.stderr)
        G.drain([0, 2] if p < 3 else None)
    stamp(a, "p4")
    a(rw(3, 3))
    for o in red_ops(3, True): a(o)
    if STAMP and DIAG is None:
        a("s_waitcnt vmcnt(0)")
        a("s_memrealtime s[72:73]")
        a("s_waitcnt lgkmcnt(0)")
        a("s_lshl_b32 s60, s2, 2")
        a("s_add_u32 s60, s60, s3")
        a("s_lshl_b32 s60, s60, 6")
        a(f"s_add_u32 s60, s60, {WS_STAMP}")
        a("s_mov_b64 exec, 1")
        for i in range(16):
            a(f"v_mov_b32 v2, s{76+2*i if i < 13 else (72, 20, 21)[i-13]}")
            a(f"buffer_store_dword v2, off, s[4:7], s60 offset:{4*i}")
    if DIAG is not None:
        a("s_waitcnt vmcnt(0)")
        a("s_memrealtime s[72:73]")
        a("s_waitcnt lgkmcnt(0)")
        a("s_cmp_lg_u32 s2, 100")
        a("s_cbranch_scc1 L_end")
        src = 72 if DIAG == 13 else 76 + 2 * DIAG
        a(f"s_sub_u32 s60, s{src}, s76")
        a("s_add_u32 s60, s60, 6000")
        a("s_min_u32 s60, s60, 20000")
        a.label("L_diag")
        a("s_memrealtime s[72:73]")
        a("s_waitcnt lgkmcnt(0)")
        a("s_sub_u32 s61, s72, s76")
        a("s_cmp_lt_u32 s61, s60")
        a("s_cbranch_scc1 L_diag")
    a.label("L_end")
    a("s_endpgm")
    a.label("L_spare")
    a("s_waitcnt vmcnt(0)")
    for o in yb1[1:]: a(o)
    a("s_barrier")
    for o in yb2: a(o)
    for o in row_ops(1, 156, True): a(o)
    for o in xs_ops: a(o)
    if OPT["dpost"] == 2: ld_touchd()
    a("s_waitcnt vmcnt(0)")
    a("s_barrier")
    for o in flag_store(WS_FB, 9, 7): a(o)
    for grp in ((range(0, 6), range(0, 6)), (range(6, 12), range(6, 8)), (range(12, 14), ())):
        for u in grp[0]:
            for o in wd_dma(u): a(txt(o))
        a("s_waitcnt vmcnt(0)")
        for u in grp[1]:
            for o in wd_tr(u): a(txt(o))
        a("s_waitcnt lgkmcnt(0)")
    allw = sum((wd_tr(u) for u in range(8, 14)), [])
    for o in allw[:len(allw) - nwtleft]: a(txt(o))
    a(f"s_sleep {OPT['spsl']}")
    for o in res1: a(txt(o))
    a("s_waitcnt vmcnt(0)")
    for o in res2[1:]: a(o)
    def spf(p, base):
        ld = [f"s_add_u32 s62, s30, {base}", "buffer_load_dword v15, v9, s[4:7], s62 offen sc1"]
        for o in ld: a(o)
        a("s_waitcnt vmcnt(0)")
        for o in chk1(15): a(o)
        k.retry(ld, chk1(15), sleep=6)
        a(f"s_add_u32 s62, s31, {p*32*56*1024}")
        a("buffer_load_dword v100, v101, s[4:7], s62 offen sc1")
        a("s_add_u32 s62, s62, 6144")
        a("buffer_load_dword v100, v101, s[4:7], s62 offen sc1")
    if OPT["spf"]:
        a(f"s_and_b32 s60, s{S_IDX}, 3")
        a("s_lshr_b32 s62, s60, 1")
        a(f"s_lshl1_add_u32 s62, s{S_XCD}, s62")
        a("s_lshl_b32 s30, s62, 13")
        a(f"s_mul_i32 s63, s3, {14*128}")
        a("s_add_u32 s30, s30, s63")
        a("s_and_b32 s60, s60, 1")
        a("s_lshl4_add_u32 s62, s60, s62")
        a("s_mul_i32 s31, s62, 56")
        a("s_mul_i32 s63, s3, 14")
        a("s_add_u32 s31, s31, s63")
        a("s_lshl_b32 s31, s31, 10")
        a(f"s_add_u32 s31, s31, {WS_HH}")
        a("v_min_u32 v9, 13, v1")
        a("v_lshlrev_b32 v9, 7, v9")
        a("v_lshlrev_b32 v101, 7, v1")
        spf(0, WS_F20)
        spf(1, WS_F2A)
    for o in ld_f2(WS_F2A, 15, 9): a(o)
    a("s_waitcnt vmcnt(0)")
    for o in chk1(15): a(o)
    k.retry(ld_f2(WS_F2A, 15, 9), chk1(15), sleep=8)
    allh = sum((ld_h(p, s) for p in range(2) for s in range(14)), [])
    for o in allh[:len(allh) - nh1left]: a(txt(o))
    if OPT["spf"]: spf(2, WS_F2B)
    for o in ld_f2(WS_F2B, 12, 13): a(o)
    a("s_waitcnt vmcnt(0) lgkmcnt(0)")
    a("s_nop 4")
    a("s_branch L_gemm2")
    k.emit_slow()
    a.label("L_codeend")
    print("instrs", a.ninstr, "nops", a.nnop, file=sys.stderr)
    return a.text()

def main(path):
    t = f"; @launch grid=(256,1,1) block=(256,1,1) lds={LDS_BYTES}\n"
    t += '.amdgcn_target "amdgcn-amd-amdhsa--gfx950"\n.text\n'
    t += build()
    t += f""".section .rodata,"a"
.p2align 6
.amdhsa_kernel {NAME}_kernel
  .amdhsa_next_free_vgpr 512
  .amdhsa_next_free_sgpr 102
  .amdhsa_accum_offset 256
  .amdhsa_group_segment_fixed_size 0
  .amdhsa_kernarg_size 120
  .amdhsa_user_sgpr_count 2
  .amdhsa_user_sgpr_kernarg_segment_ptr 1
  .amdhsa_system_sgpr_workgroup_id_x 1
  .amdhsa_float_denorm_mode_32 3
.end_amdhsa_kernel
"""
    open(path, "w").write(t)

if __name__ == "__main__":
    for x in "ht=0 dpost=0 spf=0 modat=-1 rot=0 n0=0 f0at=15 aftat=24 n2=2 p2=24 p2b=7 cf=1 fs=6 h3at=1:8 p1=2 p3=4 fset=-3 hcd=30 h3d=8 h3ck=2:2 z4late=1 defer=2 f2bld=7:14 f2bck=0:10 hp=3 f0ld=5:10 f0ck=6:10 f2ld=6:10 f2ck=7:5 hstart=7 n1=0 f1at=3 ord=/m/y/n/ cord=cqWzD bg1=0 b4lag=20 ln1at=4 yat=12 mat=1".split() + sys.argv[2:]:
        kk, _, vv = x.partition("=")
        if kk == "stamp":
            STAMP = True
            if vv: SLIST = [int(y) if y.isdigit() else y for y in vv.split(",")]
        elif kk == "diag":
            STAMP = True; DIAG = int(vv)
        elif vv == "none": OPT[kk] = ""
        elif ":" in vv: OPT[kk] = tuple(int(y) for y in vv.split(":"))
        else: OPT[kk] = int(vv) if vv.lstrip("-").isdigit() else vv
    main(sys.argv[1])
```

```python
import sys
from dsl import Asm, Gaps, Delay, cls_of
NAME = "adaLN_cond__ssm_conv_h3__glu_gated_bilinear__prompt"

WS_KV, WS_Y, WS_H2, WS_X1, WS_HH = 0x0, 0x200000, 0x400000, 0x600000, 0x800000
WS_MOD = 0x1000000
WS_F0, WS_F1, WS_FB, WS_F2A, WS_F2B, WS_EP = 0x1030000, 0x1040000, 0x1050000, 0x1060000, 0x1080000, 0x10a0000
WS_F20 = 0x10c0000
WS_STAMP = 0x1800000
WS_SIZE = 0x2000000
OOB = 0x40000000
SPIN = 20000

L_KC, L_UU, L_RSA, L_MP = 131072, 147712, 156928, 161024
L_EX, L_RSB = L_KC, L_UU
L_Z = 98304
LDS_BYTES = 163840

P_Q, P_K, P_V, P_SH, P_SK, P_SD, P_WG, P_WU, P_WD, P_C, P_WM, P_OUT, P_DBG, P_WS = 16, 18, 20, 22, 24, 26, 30, 32, 34, 36, 38, 40, 42, 44
S_XCD, S_IDX, S_TAG, S_HI, S_SENT, S_RB, S_CT, S_D, S_SPARE = 46, 47, 56, 57, 58, 59, 28, 29, 75
S_WS, S_WM = 18, 19
S_FO, S_HO, S_YO, S_ROW, S_MO = 64, 65, 71, 22, 42
STAMP = False
DIAG = None
OPT = dict(ord="//m/n/cq", f0ld=(5, 4), f0ck=(6, 3), spf=1, z4late=1, hcd=30, dpost=1, mat=1, f1at=4, modat=60, cord="ncWzd", fset=2, cf=1, bg1=0, qconv=0, spsl=1, zsleep=0, ln1at=3, cconv=0, yat=12, defer=2, fs=6, ht=1, hp=3, hstart=1, f2ld=(6, 1), f2ck=(6, 9), f2bld=(7, 14), h3t=(9, 9), f2bck=(0, 5), h3at=(1, 9), outp=4, msc=0, tagv=0, dv=0, dbmap=3, dbl=0, wbe=0, wbp=16, xpri=0, v0=0, vp=4, h0v=0, h0s=1, hop=0, ybat=0, epd=3, rsl=4, r1=2, h3d=8, xb=1, ddef=0, h3ck=(2, 2), rot=1, early2=1, f0at=12, aftat=20, t2=1, dt=0, n0=0, n1=0, pollat=-1, b4lag=10, p1=3, p2=12, n2=8, p2b=4, touch=1, outf="sc1", zearly=1)
Q4 = lambda r, k="v": f"{k}[{r}:{r+3}]"
P2 = lambda r: f"v[{r}:{r+1}]"
SLIST = [0, 1, 2, 3, 4, 5, 6, 7, 8, 9, 10, 11, 12]

def stamp(a, name):
    if STAMP and name in SLIST:
        i = SLIST.index(name)
        a.emit(f"s_memrealtime s[{76+2*i}:{77+2*i}]")

def srd(a, d, p, nbytes):
    a(f"s_mov_b32 s{d}, s{p}")
    a(f"s_mov_b32 s{d+1}, s{p+1}")
    a(f"s_mov_b32 s{d+2}, {hex(nbytes)}")
    a(f"s_mov_b32 s{d+3}, 0x20000")

def ln_finish(a, pairs):
    def each(f):
        for p in pairs: a(f(*p))
    each(lambda s, q, t: f"v_mul_f32 v{s}, 0x3b000000, v{s}")
    each(lambda s, q, t: f"v_mul_f32 v{q}, 0x3b000000, v{q}")
    each(lambda s, q, t: f"v_fma_f32 v{q}, -v{s}, v{s}, v{q}")
    each(lambda s, q, t: f"v_max_f32 v{q}, 0, v{q}")
    each(lambda s, q, t: f"v_cvt_pk_bf16_f32 v{t}, v{q}, v{s}")
    each(lambda s, q, t: f"v_lshlrev_b32 v{q}, 16, v{t}")
    each(lambda s, q, t: f"v_and_b32 v{s}, s{S_HI}, v{t}")
    each(lambda s, q, t: f"v_add_f32 v{q}, 0x3727c5ac, v{q}")
    each(lambda s, q, t: f"v_cvt_pk_bf16_f32 v{t}, v{q}, v{q}")
    each(lambda s, q, t: f"v_lshlrev_b32 v{q}, 16, v{t}")
    each(lambda s, q, t: f"v_sqrt_f32 v{q}, v{q}")
    each(lambda s, q, t: f"v_cvt_pk_bf16_f32 v{t}, v{q}, v{q}")
    each(lambda s, q, t: f"v_lshlrev_b32 v{q}, 16, v{t}")
    each(lambda s, q, t: f"v_rcp_f32 v{q}, v{q}")
    each(lambda s, q, t: f"v_mul_f32 v{s}, -v{s}, v{q}")

WAVE_RED = ("quad_perm:[1,0,3,2] row_mask:0xf", "quad_perm:[2,3,0,1] row_mask:0xf", "row_half_mirror row_mask:0xf",
            "row_mirror row_mask:0xf", "row_bcast:15 row_mask:0xa", "row_bcast:31 row_mask:0xc")

def san(a, regs):
    for r in regs: a(f"v_min_u32 v{r}, s{S_SENT}, v{r}")

def check_ops(regs, t):
    ops = []
    regs = list(regs)
    if len(regs) == 2:
        ops.append(f"v_max_u32 v{t}, v{regs[0]}, v{regs[1]}"); rest = []
    else:
        ops.append(f"v_max3_u32 v{t}, v{regs[0]}, v{regs[1]}, v{regs[2]}"); rest = regs[3:]
    while rest:
        if len(rest) >= 2:
            ops.append(f"v_max3_u32 v{t}, v{t}, v{rest[0]}, v{rest[1]}"); rest = rest[2:]
        else:
            ops.append(f"v_max_u32 v{t}, v{t}, v{rest[0]}"); rest = rest[1:]
    ops.append(f"v_cmp_eq_u32 vcc, -1, v{t}")
    return ops

def txt(o): return o[1] if isinstance(o, tuple) else o
def named(name, l): return list(l[:-1]) + [(name, txt(l[-1]))]

class Rec:
    def __init__(s): s.l = []
    def __call__(s, t): s.l.append(t)

class K:
    def __init__(self):
        self.a = Asm(); self.slow = []; self.nl = 0
    def retry(self, loads, chk, mid=(), sleep=None):
        if sleep is None: sleep = OPT["rsl"]
        a = self.a
        self.nl += 1; n = self.nl
        a.emit(f"s_cbranch_vccnz L_slow{n}")
        a.label(f"L_back{n}")
        self.slow.append((n, [txt(o) for o in loads], list(chk), [txt(o) for o in mid], sleep))
        if STAMP: print("retry site", n, txt(loads[-1])[:70], file=sys.stderr)
    def emit_slow(self):
        a = self.a
        for n, loads, chk, mid, sleep in self.slow:
            a.label(f"L_slow{n}")
            a("s_nop 7"); a("s_nop 7")
            a("s_mov_b32 s33, 0")
            a("s_mov_b32 s23, m0")
            if STAMP: a(f"s_bitset1_b32 s20, {n}")
            a.label(f"L_sl{n}")
            if STAMP: a("s_add_u32 s21, s21, 1")
            if sleep: a(f"s_sleep {sleep}")
            for o in loads: a(o)
            a("s_waitcnt vmcnt(0)")
            if mid:
                for o in mid: a(o)
                a("s_waitcnt lgkmcnt(0)")
            for o in chk: a(o)
            a("s_add_u32 s33, s33, 1")
            a(f"s_cmp_ge_u32 s33, {SPIN}")
            a(f"s_cbranch_scc1 L_sx{n}")
            a(f"s_cbranch_vccnz L_sl{n}")
            a.label(f"L_sx{n}")
            a("s_mov_b32 m0, s23")
            a("s_nop 4")
            a(f"s_branch L_back{n}")

A_SW, A_SR, A_A, A_KP, A_KW, A_B, A_XW, A_XR, A_KE, A_TR = 128, 129, 130, 134, 135, 136, 137, 138, 139, 140
A_MW, A_MR, A_MS, A_FS, A_FL, A_TG, A_ML, A_YL, A_RW, A_RR, A_WM, A_C, A_L1 = 144, 145, 146, 146, 148, 149, 150, 151, 152, 153, 154, 155, 156
A_SW2 = 157
S_KP, S_YL = 30, 32
def flag_store(base, vt, va, so="s60", off=f"s{S_FO}"):
    return [f"s_add_u32 {so}, {off}, {base}", f"v_lshlrev_b32 v{va}, 26, v6", f"v_lshl_add_u32 v{va}, v5, 2, v{va}",
            f"v_mov_b32 v{vt}, s{S_TAG}", f"buffer_store_dword v{vt}, v{va}, s[4:7], {so} offen sc1"]
def flag_store2(base, so="s60"):
    return [f"s_add_u32 {so}, s{S_FO}, {base}", f"buffer_store_dword v{A_TG}, v{A_FS}, s[4:7], {so} offen sc1"]
def flag_load(base, vd, so="s62"):
    return [f"s_mov_b32 {so}, {base}", f"buffer_load_dword v{vd}, v{A_FL}, s[4:7], {so} offen sc1"]
def plain(l): return [(o[0], o[1].replace(" sc1", "")) if isinstance(o, tuple) else o.replace(" sc1", "") for o in l]
def flag_chk(vd): return [f"v_cmp_ne_u32 vcc, s{S_TAG}, v{vd}"]

VW = 240
def w1_groups():
    g = []
    for j in range(32):
        l = []
        if j % 4 == 0:
            if OPT["rot"]:
                l.append("s_add_u32 s26, s26, 4096")
                l.append("s_and_b32 s26, s26, 0x7fff")
                l.append(f"s_add_u32 m0, s{S_WM}, s26")
                l.append("s_mul_i32 s27, s26, 14")
            else:
                l.append(f"s_add_u32 m0, s{S_WM}, {j*1024}")
                l.append(f"s_mov_b32 s27, {j*14336}")
        l.append(("W1", f"buffer_load_dwordx4 v{VW + j % 4}, s[48:51], s27 offen offset:{(j % 4)*1024} lds"))
        g.append(l)
    return g

def w1_tr_setup(a, b):
    a(f"v_bfe_u32 v{b+1}, v1, 2, 3")
    a("s_lshl_b32 s63, s3, 1")
    a(f"v_xor_b32 v{b+1}, s63, v{b+1}")
    a(f"v_bfe_u32 v{b}, v1, 2, 2")
    a(f"v_lshl_add_u32 v{b}, v6, 3, v{b}")
    a(f"v_lshlrev_b32 v{b}, 8, v{b}")
    a(f"v_and_b32 v{b+2}, 3, v1")
    a(f"v_lshl_add_u32 v{b}, v{b+2}, 3, v{b}")
    a(f"v_lshl_add_u32 v{b}, v{b+1}, 5, v{b}")
    a(f"v_xor_b32 v{b+1}, 32, v{b}")
    a(f"v_add_u32 v{b+2}, 0x10000, v{b}")
    a(f"v_add_u32 v{b+3}, 0x10000, v{b+1}")
def w1_tr(half, b):
    l = []
    for s in range(8):
        for ct in range(4):
            r = ((half * 8 + s) * 4 + ct) * 4
            for h in range(2):
                l.append(("WTR", f"ds_read_b64_tr_b16 a[{r+2*h}:{r+2*h+1}], v{b+ct} offset:{s*8192 + h*1024}"))
    return l

def build():
    k = K(); a = k.a; T = a.T
    a.raw(f".globl {NAME}_kernel\n.p2align 8\n.type {NAME}_kernel,@function\n{NAME}_kernel:")
    a("s_cmp_ge_u32 s2, 256")
    a("s_cbranch_scc1 L_end")
    stamp(a, 0)
    a("s_load_dwordx16 s[16:31], s[0:1], 0")
    a("s_load_dwordx8 s[32:39], s[0:1], 64")
    a("s_load_dwordx2 s[40:41], s[0:1], 96")
    a("s_load_dwordx2 s[44:45], s[0:1], 112")
    a("s_getpc_b64 s[4:5]")
    a.label("L_pc0")
    a("s_lshl_b32 s6, s2, 3")
    a("s_and_b32 s6, s6, 0xc0")
    a("v_lshrrev_b32 v3, 2, v0")
    a("v_add_lshl_u32 v3, v3, s6, 7")
    a("v_min_u32 v3, L_codeend-L_pc0-4, v3")
    a("global_load_dword v236, v3, s[4:5]")
    a("v_lshrrev_b32 v1, 6, v0")
    a("v_readfirstlane_b32 s3, v1")
    a("v_and_b32 v1, 63, v0")
    a("v_lshlrev_b32 v2, 4, v1")
    a(f"s_and_b32 s{S_XCD}, s2, 7")
    a(f"s_lshr_b32 s{S_IDX}, s2, 3")
    if OPT.get("remap"):
        a(f"s_xor_b32 s60, s{S_IDX}, 4")
        a("s_and_b32 s61, s60, 7")
        a("s_lshr_b32 s60, s60, 3")
        a(f"s_lshl2_add_u32 s{S_IDX}, s61, s60")
    a(f"s_mov_b32 s{S_HI}, 0xffff0000")
    a(f"s_mov_b32 s{S_SENT}, 0xfffffffe")
    a(f"s_lshr_b32 s60, s{S_IDX}, 2")
    a(f"s_lshl_b32 s61, s{S_XCD}, 3")
    a("s_add_u32 s66, s60, s61")
    a(f"s_and_b32 s61, s{S_IDX}, 3")
    a("s_lshl_b32 s62, s66, 15")
    a("s_lshl_b32 s63, s61, 8")
    a("s_add_u32 s62, s62, s63")
    a("s_lshl_b32 s63, s3, 6")
    a("s_add_u32 s62, s62, s63")
    a("v_and_b32 v5, 15, v1")
    a("v_lshrrev_b32 v6, 4, v1")
    a("v_lshlrev_b32 v7, 13, v6")
    a("v_lshl_add_u32 v7, v5, 2, v7")
    a("v_add_u32 v7, s62, v7")
    a("v_subrev_u32 v3, 3072, v7")
    a("v_add_u32 v4, 4096, v7")
    a("s_lshl_b32 s63, s61, 2")
    a("s_add_u32 s63, s63, s3")
    a("s_lshl_b32 s63, s63, 4")
    a("s_lshl_b32 s73, s63, 4")
    a("v_lshlrev_b32 v8, 4, v5")
    a("s_lshl2_add_u32 s65, s66, s61")
    a(f"s_lshl_b32 s65, s65, {OPT['fs']}")
    a("s_lshl_b32 s69, s66, 8")
    a("s_add_u32 s69, s69, s63")
    a("s_lshl_b32 s69, s69, 7")
    for i in range(4): a(f"v_mov_b32 v{244+i}, -1")
    a(f"s_mul_i32 s67, s{S_XCD}, 6")
    a("s_add_u32 s67, s67, s60")
    a("s_lshl_b32 s67, s67, 2")
    a("s_add_u32 s67, s67, s61")
    a(f"s_cmp_ge_u32 s{S_IDX}, 24")
    a(f"s_cselect_b32 s74, {OOB}, 0")
    a("s_cmp_eq_u32 s3, 0")
    a(f"s_cselect_b32 s70, 0, {OOB}")
    a(f"s_lshl_b32 s{S_MO}, s67, 6")
    a(f"s_add_u32 s{S_MO}, s{S_MO}, {WS_MOD}")
    a("s_or_b32 s63, s74, s70")
    a(f"s_add_u32 s{S_MO}, s{S_MO}, s63")
    a("s_lshr_b32 s63, s67, 5")
    a("s_lshr_b32 s63, 0x12, s63")
    a("s_and_b32 s63, s63, 1")
    a("s_mul_i32 s43, s63, 0x3f800000")
    a(f"s_lshl_b32 s63, s2, {OPT['fs']}")
    a(f"s_add_u32 s{S_FO}, s63, s70")
    a("s_add_u32 s70, s65, s70")
    a(f"s_add_u32 s70, s70, {WS_F0}")
    a("v_lshrrev_b32 v9, 2, v1")
    a("v_lshlrev_b32 v9, 14, v9")
    a("v_and_b32 v40, 3, v1")
    a("v_lshl_add_u32 v9, v40, 4, v9")
    a(f"s_lshl_b32 s{S_YO}, s3, 18")
    a("s_lshl_b32 s72, s2, 6")
    a(f"s_add_u32 s{S_YO}, s{S_YO}, s72")
    a(f"s_add_u32 s{S_YO}, s{S_YO}, {WS_Y}")
    a(f"v_and_b32 v{A_L1}, 1, v1")
    a("s_waitcnt lgkmcnt(0)")
    stamp(a, 1)
    srd(a, 4, P_WS, WS_SIZE)
    if OPT["tagv"]:
        a(f"s_mov_b32 s72, {WS_EP}")
        a(f"buffer_load_dword v{A_TG}, off, s[4:7], s72 sc1")
    else:
        a(f"s_add_u32 s62, s{P_WS}, {WS_EP}")
        a(f"s_addc_u32 s63, s{P_WS+1}, 0")
        a(f"s_load_dword s{S_TAG}, s[62:63], 0")
    def first_clears():
        a("buffer_store_dwordx4 v[244:247], v2, s[4:7], s69 offen sc1")
        a("buffer_store_dwordx4 v[244:247], v2, s[4:7], s69 offen offset:1024 sc1")
        a(f"buffer_store_dwordx4 v[244:247], v9, s[4:7], s{S_YO} offen sc1")
        a("s_mov_b64 exec, 0xf")
        T["clr0"] = a(f"buffer_store_dwordx4 v[244:247], v2, s[4:7], s{S_MO} offen sc1")
        a("s_mov_b64 exec, -1")
    if OPT["cf"]: first_clears()
    srd(a, 8, P_K, 0x200000)
    srd(a, 12, P_V, 0x200000)
    for i in range(11):
        base, off = (3, i) if i < 3 else (7, i - 3) if i < 7 else (4, i - 7)
        a(f"buffer_load_dword v{10+i}, v{base}, s[8:11], 0 offen offset:{off*1024}")
    for i in range(8):
        base, off = (7, i) if i < 4 else (4, i - 4)
        a(f"buffer_load_dword v{21+i}, v{base}, s[12:15], 0 offen offset:{off*1024}")
    if STAMP: a("s_mov_b64 s[20:21], 0")
    srd(a, 52, P_SH, 4096)
    tkv0 = a("buffer_load_dwordx4 v[32:35], v8, s[52:55], s73 offen")
    a("s_lshl_b32 s72, s2, 2")
    if OPT["dv"]:
        a("v_mov_b32 v29, s72")
        a(f"global_load_dword v30, v29, s[{P_SD}:{P_SD+1}]")
    else: a(f"s_load_dword s{S_D}, s[{P_SD}:{P_SD+1}], s72")
    a("s_lshr_b32 s60, s3, 1")
    a("s_and_b32 s61, s3, 1")
    a("s_lshl1_add_u32 s62, s2, s60")
    a("s_lshl_b32 s62, s62, 12")
    if OPT["dv"]:
        a("v_mov_b32 v29, s62")
        a(f"global_load_dword v31, v29, s[{P_SK}:{P_SK+1}]")
    else:
        assert not OPT["tagv"]
        a(f"s_load_dword s44, s[{P_SK}:{P_SK+1}], s62")
    if not OPT["cf"]: first_clears()
    tclr = T["clr0"]
    srd(a, 52, P_SK, 0x200000)
    a("s_mul_i32 s65, s60, 8320")
    a("s_lshl_b32 s63, s61, 11")
    a("s_add_u32 s62, s62, s63")
    a("s_add_u32 s63, s63, s65")
    a(f"s_add_u32 m0, s63, {L_KC + 32}")
    a("v_add_u32 v36, 2, v2")
    a("buffer_load_dwordx4 v2, s[52:55], s62 offen lds")
    a("buffer_load_dwordx4 v2, s[52:55], s62 offen offset:1024 lds")
    a(f"s_add_u32 m0, s63, {L_KC + 32 + 4160}")
    a("s_lshl_b32 s61, s61, 8")
    a("buffer_load_dwordx4 v36, s[52:55], s62 offen lds")
    tkern = a("buffer_load_dwordx4 v36, s[52:55], s62 offen offset:1024 lds")
    a(f"s_lshl_b32 s{S_ROW}, s{S_XCD}, 5")
    a(f"s_add_u32 s{S_ROW}, s{S_ROW}, s{S_IDX}")
    if OPT["r1"] == 1:
        a(f"s_mul_i32 s72, s{S_XCD}, 28")
        a(f"s_add_u32 s72, s72, s{S_IDX}")
        a(f"s_and_b32 s{S_RB}, s72, 15")
        a(f"s_lshl_b32 s26, s{S_RB}, 12")
        a("s_lshr_b32 s66, s72, 4")
    else:
        a(f"s_and_b32 s72, s{S_XCD}, 3")
        a("s_mul_i32 s72, s72, 28")
        a(f"s_add_u32 s72, s72, s{S_IDX}")
        a(f"s_lshr_b32 s73, s{S_XCD}, 2")
        a("s_lshl_b32 s73, s73, 3")
        a(f"s_and_b32 s{S_RB}, s72, 7")
        a(f"s_lshl_b32 s26, s{S_RB}, 12")
        a(f"s_add_u32 s{S_RB}, s{S_RB}, s73")
        a("s_lshr_b32 s66, s72, 3")
    a(f"s_lshl2_add_u32 s{S_CT}, s66, s3")
    a(f"s_cmp_ge_u32 s{S_IDX}, 28")
    a(f"s_cselect_b32 s{S_SPARE}, {OOB}, 0")
    a("s_cmp_ge_u32 s3, 2")
    a(f"s_cselect_b32 s48, s{P_WU}, s{P_WG}")
    a(f"s_cselect_b32 s49, s{P_WU+1}, s{P_WG+1}")
    a(f"s_mov_b32 s50, {0 if OPT.get('x_now1') else 512*3584}")
    a("s_mov_b32 s51, 0x20000")
    a(f"s_lshl2_add_u32 s72, s{S_ROW}, s3")
    a("s_lshl_b32 s68, s72, 10")
    a("s_and_b32 s73, s3, 1")
    a(f"s_mul_i32 s73, s73, {128*3584}")
    a("s_lshl_b32 s72, s66, 8")
    a("s_add_u32 s73, s73, s72")
    a(f"s_add_u32 s73, s73, s{S_SPARE}")
    a(f"s_lshl_b32 s{S_WM}, s3, 15")
    a("v_bfe_u32 v37, v1, 1, 3")
    a("v_xor_b32 v38, v37, v6")
    a(f"v_lshl_add_u32 v38, v38, 1, v{A_L1}")
    a("v_mul_u32_u24 v39, 3584, v6")
    a("v_add_u32 v39, s73, v39")
    a(f"v_lshl_add_u32 v{VW}, v38, 4, v39")
    a(f"v_add_u32 v{VW+1}, {14336-1024}, v{VW}")
    a("v_xor_b32 v38, 8, v38")
    a(f"v_lshl_add_u32 v{VW+2}, v38, 4, v39")
    a(f"v_add_u32 v{VW+2}, {2*(14336-1024)}, v{VW+2}")
    a(f"v_add_u32 v{VW+3}, {14336-1024}, v{VW+2}")
    w1q = w1_groups()
    def w4():
        for _ in range(4):
            for o in w1q.pop(0): a(o)
    def xt_ops(nrows, row0, vt, vt2):
        r = Rec()
        r(f"v_bfe_u32 v{vt}, v1, 3, {nrows.bit_length()-1}")
        r(f"v_mul_u32_u24 v{vt}, 3584, v{vt}")
        r(f"v_and_b32 v{vt2}, 7, v1")
        if OPT["r1"] == 1:
            r(f"s_mul_i32 s73, s{S_XCD}, 28")
            r("s_add_u32 s72, s73, 27")
            r("s_lshr_b32 s72, s72, 4")
            r("s_lshr_b32 s73, s73, 4")
            r("s_sub_u32 s72, s72, s73")
            r("s_lshl1_add_u32 s72, s72, 1")
            r(f"v_min_u32 v{vt2}, s72, v{vt2}")
            r("s_lshl_b32 s73, s73, 8")
            r(f"v_add_u32 v{vt}, s73, v{vt}")
        r(f"v_lshl_add_u32 v{vt}, v{vt2}, 7, v{vt}")
        r("s_and_b32 s73, s3, 1")
        r(f"s_lshl1_add_u32 s72, s{S_IDX}, s73")
        r(f"s_mul_i32 s72, s72, {nrows*3584}")
        if OPT["r1"] != 1:
            r(f"s_and_b32 s73, s{S_XCD}, 3")
            r("s_mul_i32 s73, s73, 28")
            r("s_lshr_b32 s73, s73, 3")
            r("s_lshl_b32 s73, s73, 8")
            r("s_add_u32 s72, s72, s73")
        if row0: r(f"s_add_u32 s72, s72, {row0*3584}")
        r(f"buffer_load_dword v159, v{vt}, s[48:51], s72 offen")
        return r.l
    def xt(nrows, row0):
        for o in xt_ops(nrows, row0, 158, 147): a(o)
    def mod_blk(i):
        a(f"s_add_u32 s72, s{S_IDX}, {i}")
        a("s_and_b32 s72, s72, 3")
        a("s_lshl2_add_u32 s72, s3, s72")
        a("s_lshl_b32 s73, s72, 6")
        a(f"buffer_load_ushort v{160+i}, v{A_C}, s[12:15], s73 offen")
        a(f"s_mul_i32 s72, s72, {32*6144}")
        T["mod"] = a(f"buffer_load_dwordx4 {Q4(164+4*i)}, v{A_WM}, s[8:11], s72 offen")
    def ld_mod():
        srd(a, 8, P_WM, 0 if OPT.get("x_nomod") else 512 * 6144)
        srd(a, 12, P_C, 1024)
        a(f"v_lshrrev_b32 v{A_C}, 1, v1")
        a(f"v_mul_u32_u24 v{A_WM}, 6144, v{A_C}")
        a(f"v_lshl_add_u32 v{A_WM}, v{A_L1}, 4, v{A_WM}")
        a("s_lshl_b32 s73, s67, 5")
        a("s_add_u32 s73, s73, s74")
        a(f"v_add_u32 v{A_WM}, s73, v{A_WM}")
        a(f"v_lshlrev_b32 v{A_C}, 1, v{A_C}")
        mod_blk(0)
    def ld_mod2():
        for i in range(1, 4): mod_blk(i)
    def ld_touch():
        a("s_and_b32 s73, s3, 1")
        a("s_lshl1_add_u32 s72, s2, s73")
        a("s_mul_i32 s72, s72, 3584")
        a("v_min_u32 v237, 27, v1")
        a("v_lshlrev_b32 v237, 7, v237")
        a("buffer_load_dword v237, v237, s[48:51], s72 offen")
    def ld_touchd():
        srd(a, 52, P_WD, 1792 * 1024)
        a(f"s_lshl2_add_u32 s72, s{S_XCD}, s{S_IDX}")
        a("s_sub_u32 s72, s72, 28")
        a("s_and_b32 s72, s72, 31")
        a("s_lshl2_add_u32 s72, s72, s3")
        a("s_mul_i32 s72, s72, 14336")
        a(f"s_xor_b32 s73, s{S_SPARE}, {OOB}")
        a("s_add_u32 s72, s72, s73")
        a("v_lshlrev_b32 v158, 7, v1")
        a("buffer_load_dword v159, v158, s[52:55], s72 offen")
        a("s_add_u32 s72, s72, 6144")
        a("buffer_load_dword v159, v158, s[52:55], s72 offen")
    def ld_q():
        srd(a, 52, P_Q, 0 if OPT.get("x_noq") else 0x200000)
        a("s_add_u32 s73, s68, 0x100000")
        a("buffer_load_dwordx4 v[180:183], v2, s[52:55], s68 offen")
        T["q"] = a("buffer_load_dwordx4 v[184:187], v2, s[52:55], s73 offen")
    def clr_ops(which):
        l = []
        if OPT.get("x_noc"): return [f"s_mov_b32 s72, {OOB}", ("CLR", "buffer_store_dwordx4 v[244:247], v9, s[4:7], s72 offen sc1")]
        if "a" in which: l += [("CLR", f"buffer_store_dwordx4 v[244:247], v9, s[4:7], s{S_YO} offen sc1")]
        if "b" in which: l += [f"s_add_u32 s72, s{S_YO}, {64*16384}", ("CLR", "buffer_store_dwordx4 v[244:247], v9, s[4:7], s72 offen sc1")]
        if "h" in which: l += [f"s_add_u32 s72, s68, {WS_H2}", ("CLR", "buffer_store_dwordx4 v[244:247], v2, s[4:7], s72 offen sc1")]
        if "i" in which: l += [f"s_add_u32 s72, s68, {WS_H2 + 0x100000}", ("CLR", "buffer_store_dwordx4 v[244:247], v2, s[4:7], s72 offen sc1")]
        return l
    def clr():
        for o in clr_ops("bhi"): a(o)
    LD = dict(w=w4, x=lambda: xt(8, 0), y=lambda: xt(4, 0), z=lambda: xt(4, 256), m=ld_mod, n=ld_mod2, q=ld_q, t=ld_touch, d=ld_touchd, c=clr)
    PRE, MID, POST, AFT, LATE = OPT["ord"].split("/")
    assert sorted(set(PRE + MID + POST + AFT + LATE + OPT["cord"]) - set("tdDwxyzWV-")) == sorted("mnqc")
    for c in PRE: LD[c]()
    a("v_lshrrev_b32 v4, 3, v1")
    a("v_and_b32 v41, 7, v1")
    a("s_mul_i32 s72, s60, 4608")
    a("s_lshl_b32 s73, s61, 3")
    a("s_add_u32 s72, s72, s73")
    a(f"s_add_u32 s72, s72, {L_UU}")
    a(f"v_sub_u32 v{A_SW}, 3, v6")
    a(f"v_xor_b32 v{A_SW}, v{A_SW}, v41")
    a("v_lshlrev_b32 v38, 7, v5")
    a(f"v_lshl_add_u32 v{A_SW}, v{A_SW}, 4, v38")
    a(f"v_add_u32 v{A_SW}, s72, v{A_SW}")
    a(f"v_xor_b32 v{A_SW2}, 64, v{A_SW}")
    a(f"v_xor_b32 v{A_SR}, v1, v4")
    a(f"v_lshlrev_b32 v{A_SR}, 4, v{A_SR}")
    a(f"v_add_u32 v{A_SR}, s72, v{A_SR}")
    a(f"v_xor_b32 v{A_A}, 1, v{A_L1}")
    a(f"v_mul_u32_u24 v{A_A}, 4156, v{A_A}")
    a(f"v_lshl_add_u32 v{A_A}, v37, 2, v{A_A}")
    a(f"v_lshl_add_u32 v{A_A}, v6, 4, v{A_A}")
    a("s_add_u32 s72, s65, s61")
    a(f"s_add_u32 s72, s72, {L_KC + 4}")
    a(f"v_add_u32 v{A_A}, s72, v{A_A}")
    for i in range(1, 4): a(f"v_add_u32 v{A_A+i}, {1024*i}, v{A_A}")
    a(f"v_lshlrev_b32 v{A_KP}, 15, v4")
    a(f"v_lshl_add_u32 v{A_KP}, v41, 4, v{A_KP}")
    a(f"s_lshl_b32 s{S_KP}, s3, 19")
    a("s_lshl_b32 s72, s2, 7")
    a(f"s_add_u32 s{S_KP}, s{S_KP}, s72")
    a(f"s_add_u32 s{S_KP+1}, s{S_KP}, {8*32768}")
    a(f"v_bfe_u32 v{A_KW}, v1, 2, 1")
    a(f"v_mul_u32_u24 v{A_KW}, 4608, v{A_KW}")
    a(f"v_lshl_add_u32 v{A_KW}, v40, 4, v{A_KW}")
    a("v_lshlrev_b32 v38, 6, v4")
    a(f"v_sub_u32 v{A_KW}, v{A_KW}, v38")
    a("s_lshl_b32 s72, s3, 10")
    a(f"s_sub_u32 s73, {L_UU + 55*64}, s72")
    a(f"v_add_u32 v{A_KW}, s73, v{A_KW}")
    a(f"v_add_u32 v{A_RR}, s72, v2")
    a(f"s_add_u32 s72, s72, {L_EX}")
    a(f"v_xor_b32 v{A_XR}, v1, v4")
    a(f"v_lshlrev_b32 v{A_XR}, 4, v{A_XR}")
    a(f"v_add_u32 v{A_XR}, s72, v{A_XR}")
    a(f"v_lshlrev_b32 v{A_B}, 5, v5")
    a("v_lshlrev_b32 v38, 4, v6")
    a(f"v_sub_u32 v{A_B}, v38, v{A_B}")
    a("s_mul_i32 s72, s60, 4608")
    a("s_add_u32 s72, s72, s61")
    a(f"s_add_u32 s72, s72, {L_UU + 480}")
    a(f"v_add_u32 v{A_B}, s72, v{A_B}")
    a(f"v_lshl_add_u32 v{A_XW}, v5, 2, v6")
    a(f"v_lshrrev_b32 v38, 3, v{A_XW}")
    a(f"v_xor_b32 v{A_XW}, v{A_XW}, v38")
    a(f"v_lshlrev_b32 v{A_XW}, 4, v{A_XW}")
    a("s_lshl_b32 s72, s3, 12")
    a(f"s_add_u32 s72, s72, {L_EX}")
    a(f"v_add_u32 v{A_XW}, s72, v{A_XW}")
    a("s_lshl_b32 s72, s3, 9")
    a(f"s_sub_u32 s72, {L_UU + 4088 - 2048}, s72")
    a(f"v_lshlrev_b32 v{A_KE}, 3, v1")
    a(f"v_sub_u32 v{A_KE}, s72, v{A_KE}")
    w1_tr_setup(a, A_TR)
    a(f"v_lshlrev_b32 v{A_MW}, 3, v6")
    a(f"v_lshl_add_u32 v{A_MW}, v{A_L1}, 5, v{A_MW}")
    a("s_lshl_b32 s72, s3, 6")
    a(f"s_add_u32 s72, s72, {L_MP}")
    a(f"v_add_u32 v{A_MW}, s72, v{A_MW}")
    a(f"v_lshlrev_b32 v{A_MS}, 2, v5")
    a(f"v_lshlrev_b32 v{A_MR}, 3, v41")
    a(f"v_add_u32 v{A_MR}, {L_MP}, v{A_MR}")
    a("v_min_u32 v38, 1, v6")
    a(f"v_lshl_add_u32 v{A_MS}, v38, 26, v{A_MS}")
    a(f"v_lshlrev_b32 v{A_FL}, {OPT['fs']}, v0")
    a(f"v_lshrrev_b32 v{A_ML}, 1, v1")
    a(f"v_lshlrev_b32 v{A_ML}, 6, v{A_ML}")
    a(f"v_lshl_add_u32 v{A_ML}, v{A_L1}, 4, v{A_ML}")
    a(f"v_lshlrev_b32 v{A_YL}, 6, v0")
    a(f"v_lshlrev_b32 v{A_RW}, 2, v0")
    a(f"s_lshr_b32 s{S_YL}, s{S_ROW}, 2")
    a(f"s_lshl_b32 s{S_YL}, s{S_YL}, 14")
    a(f"s_and_b32 s72, s{S_ROW}, 3")
    a("s_lshl_b32 s72, s72, 4")
    a(f"s_add_u32 s{S_YL}, s{S_YL}, s72")
    a(f"s_add_u32 s{S_YL}, s{S_YL}, {WS_Y}")
    for i in range(4): a(f"v_mov_b32 v{44+i}, 0")
    a("v_lshrrev_b32 v38, 5, v1")
    a("v_and_b32 v39, 31, v1")
    a("v_mul_u32_u24 v38, 4608, v38")
    a("v_lshl_add_u32 v38, v39, 4, v38")
    a(f"v_add_u32 v38, {L_UU + 4096}, v38")
    a("ds_write_b128 v38, v[44:47]")
    a("v_bfe_u32 v38, v1, 1, 1")
    a("v_mul_u32_u24 v38, 4160, v38")
    a(f"v_lshl_add_u32 v38, v{A_L1}, 4, v38")
    a(f"s_add_u32 s72, s65, {L_KC}")
    a("v_add_u32 v38, s72, v38")
    stamp(a, 2)
    a.wait(tclr)
    if OPT["tagv"]: a(f"v_readfirstlane_b32 s{S_TAG}, v{A_TG}")
    else: a("s_waitcnt lgkmcnt(0)")
    a(f"s_mul_i32 s{S_TAG}, s{S_TAG}, 0x9e3779b1")
    a(f"s_add_u32 s{S_TAG}, s{S_TAG}, 0x7f4a7c15")
    a(f"v_mov_b32 v{A_TG}, s{S_TAG}")
    a("s_barrier")
    stamp(a, 3)
    a(f"buffer_store_dword v{A_TG}, v{A_FS}, s[4:7], s70 offen sc1")
    for c in MID: LD[c]()
    a.wait(tkv0)
    stamp(a, "kd")
    ld_f0 = flag_load(WS_F0, 239)
    if OPT["f0at"] == -2:
        for o in ld_f0: tf = a(o)
    for i in range(11):
        a(f"v_lshlrev_b32 v{50+2*i}, 16, v{10+i}")
        a(f"v_and_b32 v{51+2*i}, s{S_HI}, v{10+i}")
    for j in range(4):
        for c in range(2):
            src = 32 + 2 * c + (j >> 1)
            if j & 1: a(f"v_and_b32 v{88+2*j+c}, s{S_HI}, v{src}")
            else: a(f"v_lshlrev_b32 v{88+2*j+c}, 16, v{src}")
    for j in (3, 2, 1, 0):
        for i in range(8):
            if j == 3: a(f"v_pk_mul_f32 {P2(96+2*i)}, {P2(50+2*(i+3-j))}, {P2(88+2*j)}")
            else: a(f"v_pk_fma_f32 {P2(96+2*i)}, {P2(50+2*(i+3-j))}, {P2(88+2*j)}, {P2(96+2*i)}")
    for i in range(8):
        a(f"v_lshlrev_b32 v{72+2*i}, 16, v{21+i}")
        a(f"v_and_b32 v{73+2*i}, s{S_HI}, v{21+i}")
    for i in range(8):
        a(f"v_pk_mul_f32 {P2(96+2*i)}, {P2(96+2*i)}, {P2(72+2*i)}")
    for c in range(2):
        for d in range(4):
            a(f"v_cvt_pk_bf16_f32 v{112+4*c+d}, v{96+2*(7-2*d)+c}, v{96+2*(6-2*d)+c}")
        san(a, range(112 + 4 * c, 116 + 4 * c))
        a(f"ds_write_b128 v{A_SW2 if c else A_SW}, {Q4(112+4*c)}")
    r0 = a(f"ds_read_b128 v[112:115], v{A_SR}")
    r1 = a(f"ds_read_b128 v[116:119], v{A_SR} offset:1024")
    a.wait(r0)
    a("buffer_store_dwordx4 v[112:115], v2, s[4:7], s69 offen sc1")
    a.wait(r1)
    a("buffer_store_dwordx4 v[116:119], v2, s[4:7], s69 offen offset:1024 sc1")
    stamp(a, 4)
    if OPT["f0at"] == -1:
        for o in ld_f0: tf = a(o)
    for c in POST: LD[c]()
    a("v_cmp_eq_u32 vcc, 3, v40")
    a.wait(tkern)
    if OPT["dv"]:
        a("v_lshlrev_b32 v31, 16, v31")
        a(f"v_readfirstlane_b32 s{S_D}, v30")
    else:
        a("s_lshl_b32 s44, s44, 16")
        a("v_mov_b32 v31, s44")
    a("v_cndmask_b32 v47, v47, v31, vcc")
    a("s_mov_b64 exec, 0xf")
    a("ds_write_b128 v38, v[44:47]")
    a("s_mov_b64 exec, -1")
    a(f"s_lshl_b32 s44, s{S_D}, 16")
    a(f"s_and_b32 s45, s{S_D}, s{S_HI}")
    a("s_barrier")
    stamp(a, "k0")
    A = lambda rr, q: 128 + (rr * 8 + q) * 4
    n0 = OPT["n0"]
    for rr in range(4):
        for q in range(8):
            if rr * 8 + q == OPT["f0at"]:
                for o in ld_f0: tf = a(o)
            if rr * 8 + q == OPT["aftat"]:
                for c in AFT: LD[c]()
            o = (64 * rr + 512 * (q & 1)) // 4
            a(f"ds_read2_b32 a[{A(rr,q)}:{A(rr,q)+1}], v{A_A + (q >> 1)} offset0:{o} offset1:{o+1}")
            a(f"ds_read2_b32 a[{A(rr,q)+2}:{A(rr,q)+3}], v{A_A + (q >> 1)} offset0:{o+2} offset1:{o+3}")
            if (q & 1) and n0 > 0:
                for o in w1q.pop(0): a(o)
                n0 -= 1
    stamp(a, "af")
    ld_kv = [f"buffer_load_dwordx4 v[16:19], v{A_KP}, s[4:7], s{S_KP} offen sc1", f"buffer_load_dwordx4 v[20:23], v{A_KP}, s[4:7], s{S_KP+1} offen sc1"]
    def poll():
        stamp(a, 5)
        a.wait(tf)
        for o in flag_chk(239): a(o)
        k.retry(ld_f0, flag_chk(239))
        for o in ld_kv: T["KV"] = a(o)
        stamp(a, 6)
        for c in LATE: LD[c]()
        for _ in range(OPT["n1"]):
            for o in w1q.pop(0): a(o)
        if OPT["bg1"]: a.bg = w1q; a.bg_every = OPT["bg1"]
    PR = (212, 248)
    def ln1():
        a.wait(T["q"])
        a("s_mov_b32 s67, 0x3f803f80")
        for i in range(4): a(f"v_mov_b32 v{188+i}, 0")
        for i in range(4):
            for h in range(2):
                a(f"v_dot2c_f32_bf16 v{188+2*h}, s67, v{180+4*h+i}")
                a(f"v_dot2c_f32_bf16 v{189+2*h}, v{180+4*h+i}, v{180+4*h+i}")
        for h in range(2):
            for i in range(4):
                a(f"v_lshlrev_b32 v{220+8*h+2*i}, 16, v{180+4*h+i}")
                a(f"v_and_b32 v{221+8*h+2*i}, s{S_HI}, v{180+4*h+i}")
        for dpp in WAVE_RED:
            for i in range(4): a(f"v_add_f32_dpp v{188+i}, v{188+i}, v{188+i} {dpp} bank_mask:0xf")
        ln_finish(a, [(188, 189, 192), (190, 191, 193)])
        for h in range(2):
            a(f"v_readlane_b32 s{36+2*h}, v{189+2*h}, 63")
            a(f"v_readlane_b32 s{37+2*h}, v{188+2*h}, 63")
        for h in range(2): a(f"v_mov_b32 v{192+2*h}, s{37+2*h}")
        for h in range(2):
            for i in range(0, 8, 2): a(f"v_pk_fma_f32 {P2(PR[h]+i)}, {P2(220+8*h+i)}, s[{36+2*h}:{37+2*h}], {P2(192+2*h)} op_sel_hi:[1,0,0]")
    if OPT["ln1at"] == 0: ln1()
    if OPT["pollat"] == -1: poll()

    def modblock():
        a.wait(T["mod"])
        stamp(a, "m0")
        E, SV, UP, AC = 236, 212, 220, 228
        for i in range(4):
            a(f"v_lshlrev_b32 v{160+i}, 16, v{160+i}")
            a(f"v_mul_f32 v{E+i}, 0xbfb8aa3b, v{160+i}")
        for i in range(4): a(f"v_exp_f32 v{E+i}, v{E+i}")
        for i in range(4): a(f"v_add_f32 v{E+i}, 1.0, v{E+i}")
        for i in range(4): a(f"v_rcp_f32 v{E+i}, v{E+i}")
        for i in range(4): a(f"v_mul_f32 v{160+i}, v{160+i}, v{E+i}")
        for i in range(4): a(f"v_cvt_pk_bf16_f32 v{E+i}, v{160+i}, v{160+i}")
        for i in range(4): a(f"v_lshlrev_b32 v{SV+2*i}, 16, v{E+i}")
        for i in range(4):
            for d in range(4):
                a(f"v_lshlrev_b32 v{UP+2*d}, 16, v{164+4*i+d}")
                a(f"v_and_b32 v{UP+1+2*d}, s{S_HI}, v{164+4*i+d}")
            for d in range(4):
                if i == 0: a(f"v_pk_mul_f32 {P2(AC+2*d)}, {P2(UP+2*d)}, {P2(SV+2*i)} op_sel_hi:[1,0]")
                else: a(f"v_pk_fma_f32 {P2(AC+2*d)}, {P2(UP+2*d)}, {P2(SV+2*i)}, {P2(AC+2*d)} op_sel_hi:[1,0,1]")
        for p in range(4): a(f"v_permlane32_swap_b32 v{AC+p}, v{AC+4+p}")
        for p in range(4): a(f"v_add_f32 v{AC+p}, v{AC+p}, v{AC+4+p}")
        for p in range(2): a(f"v_permlane16_swap_b32 v{AC+p}, v{AC+2+p}")
        for p in range(2): a(f"v_add_f32 v{AC+p}, v{AC+p}, v{AC+2+p}")
        for rr in (8, 4, 2):
            for p in range(2):
                a(f"v_add_f32_dpp v{AC+p}, v{AC+p}, v{AC+p} row_ror:{rr} row_mask:0xf bank_mask:0xf")
        T["MW"] = a(f"ds_write_b64 v{A_MW}, {P2(AC)}")
        stamp(a, "m1")
    if OPT["modat"] < 0: modblock()
    if OPT["ln1at"] == 2: ln1()
    a.bg = []
    print("W1a left at conv start", len(w1q), file=sys.stderr)
    stamp(a, "tr")
    a.wait(T["KV"])
    stamp(a, "kv")
    ck = check_ops(range(16, 24), 29)
    for o in ck: a(o)
    k.retry(ld_kv, ck)
    a(f"ds_write_b128 v{A_KW}, v[16:19] offset:512")
    a(f"ds_write_b128 v{A_KW}, v[20:23]")
    a("s_waitcnt lgkmcnt(0)")
    a("s_barrier")
    stamp(a, 7)
    B = lambda rr, d: 64 + (rr & 1) * 32 + d * 4
    tb = {}
    def loadB(key, rr, d):
        tb[key, rr, d] = a.emit(f"ds_read_b128 {Q4(B(rr,d))}, v{A_B} offset:{3584 - 512*d + 64*rr}")
    for d in range(4): loadB(0, 0, d)
    G = Gaps(a, 4)
    G.pace[1] = OPT["p1"]
    if OPT["dbl"]: G.dbl = [0, 3]; G.vpri = [0]
    KD = (24, 168)
    def kd_ops(h):
        ops = []
        for c in range(2):
            for i in range(4):
                e = 3 - i
                kr = 10 + 4 * h + 2 * c + (e >> 1)
                ops.append(f"v_and_b32 v{KD[h]+4*c+i}, s{S_HI}, v{kr}" if e & 1 else f"v_lshlrev_b32 v{KD[h]+4*c+i}, 16, v{kr}")
        return ops
    rec = Rec()
    rec(f"ds_read2_b64 v[192:195], v{A_MR} offset0:0 offset1:8")
    rec(("MP", f"ds_read2_b64 v[196:199], v{A_MR} offset0:16 offset1:24"))
    rec(Delay(4))
    rec(lambda: a.wait(T["MP"]))
    for c in range(2): rec(f"v_add_f32 v{192+c}, v{192+c}, v{194+c}")
    for c in range(2): rec(f"v_add_f32 v{196+c}, v{196+c}, v{198+c}")
    for c in range(2): rec(f"v_add_f32 v{192+c}, v{192+c}, v{196+c}")
    rec("v_cvt_pk_bf16_f32 v20, v192, v193")
    rec("v_lshlrev_b32 v192, 16, v20")
    rec(f"v_and_b32 v193, s{S_HI}, v20")
    for c in range(2): rec(f"v_add_f32 v{192+c}, s43, v{192+c}")
    rec("v_cvt_pk_bf16_f32 v20, v192, v193")
    rec(f"v_min_u32 v20, s{S_SENT}, v20")
    rec(f"buffer_store_dword v20, v{A_MS}, s[4:7], s{S_MO} offen sc1")
    rec(lambda: stamp(a, "m2"))
    modfin = rec.l + kd_ops(1)
    rec = Rec()
    for h in range(2):
        for c in range(2):
            rec(("KVE", f"ds_read_b64 {P2(10+4*h+2*c)}, v{A_KE} offset:{c*4608 + (1-h)*2048}"))
    rec(f"s_min_u32 s60, s{S_FO}, 1")
    rec("s_lshl_b32 s60, s60, 30")
    rec(f"s_add_u32 s60, s60, {WS_EP}")
    rec(f"buffer_store_dword v{A_TG}, v{A_FS}, s[4:7], s60 offen sc1")
    rec(lambda: a.wait(T["KVE"]))
    for o in kd_ops(0): rec(o)
    assert OPT["modat"] < 0 and OPT["ln1at"] in (2, 3, 4) and (OPT["ln1at"] >= 3 or "q" not in OPT["cord"])
    rec.l = modfin[:-8] + rec.l + modfin[-8:]
    G.add(0, rec.l)
    class Cap:
        pass
    def cap(f):
        r = []
        save = a.item
        def fake(o):
            r.append(o); return None
        a.item = fake
        f()
        a.item = save
        return r
    st1 = []
    strict = []
    for c in OPT["cord"]:
        if c == "W": st1 += sum(w1q, []) + [lambda: T.__setitem__("W1done", 1)]; w1q.clear()
        elif c == "V":
            strict += sum(w1q, []); w1q.clear()
            st1 += [Delay(0, lambda: not strict), lambda: T.__setitem__("W1done", 1)]
        elif c == "w":
            for _ in range(4): st1 += w1q.pop(0)
        elif c == "c": st1 += clr_ops("bhi")
        elif c == "n": st1 += named("mod", cap(ld_mod2))
        elif c == "q": st1 += named("q", cap(ld_q))
        elif c == "z": st1 += xt_ops(4, 256, 18, 19)
        elif c == "d": st1 += cap(ld_touchd)
        elif c == "D":
            r = Rec()
            srd(r, 52, P_WD, 1792 * 1024)
            r("s_lshl2_add_u32 s72, s2, s3")
            r("s_mul_i32 s72, s72, 1792")
            r("v_min_u32 v158, 13, v1")
            r("v_lshlrev_b32 v158, 7, v158")
            r("buffer_load_dword v159, v158, s[52:55], s72 offen")
            st1 += r.l
        elif c == "-": st1 += [Delay(8)]
    G.add(1, st1)
    ACC = lambda nt: 32 + nt * 4
    ml = []
    for key in range(2):
        nd = 4 if key == 0 else 8
        lo = 4 * key
        for rr in range(4):
            if rr < 3: ml += [(key, rr, d, nt) for d in range(nd) for nt in range(max(lo, d), lo + 4)]
            else: ml += [(key, rr, d, nt) for nt in range(lo, lo + 4) for d in range(nt + 1)]
    pend = []
    seen = set()
    waited = set([(0, 0, 0)])
    hooks = {}
    lastv = [-99]
    def run_m(i):
        key, rr, d, nt = ml[i]
        for f in hooks.get(i, []): f()
        if (key, rr, d) not in seen:
            seen.add((key, rr, d))
            if key == 0: pend.extend([(0, rr + 1, d)] if rr < 3 else [(1, 0, d), (1, 0, d + 4)])
            elif rr < 3: pend.append((1, rr + 1, d))
        c = "0" if (rr == 0 and d == 0) else Q4(ACC(nt))
        a.emit(f"v_mfma_f32_16x16x32_bf16 {Q4(ACC(nt))}, {Q4(A(rr,nt-d),'a')}, {Q4(B(rr,d))}, {c}")
        fs = None
        if i + 1 < len(ml):
            nk = ml[i + 1][:3]
            if nk not in waited:
                waited.add(nk)
                while nk not in tb: loadB(*pend.pop(0))
                fs = lambda: a.wait(tb[nk])
        fm = (lambda: loadB(*pend.pop(0))) if pend else None
        if OPT["xpri"] and 30 <= i < 80 and "ZAdone" not in T and G.st[0] and cls_of(G.st[0][0]) == "M" and len(pend) < 4: fm = None
        xm = None
        if strict and i >= OPT["v0"]:
            if txt(strict[0]).startswith("s_"):
                if fs is None: fs = lambda: a.item(strict.pop(0))
                elif (i - OPT["v0"]) % OPT["vp"] == OPT["vp"] - 1:
                    f0 = fs
                    fs = lambda: (f0(), [a.item(strict.pop(0)) for _ in range(2) if txt(strict[0]).startswith("s_")])
            elif i - lastv[0] >= OPT["vp"]:
                lastv[0] = i
                xm = lambda: a.item(strict.pop(0))
        G.gap(fs, fm, xm)
    xw = lambda nt: ("XW", f"ds_write_b128 v{A_XW}, {Q4(ACC(nt))} offset:{(nt & 3)*1024}")
    last = {nt: max(i for i, m in enumerate(ml) if m[3] == nt) for nt in range(8)}
    def yfinal(h, pk):
        ops = []
        for c in range(2):
            y = 192 + c * 8; kd = KD[h] + 4 * c
            if pk:
                for i in (0, 2): ops.append(f"v_pk_add_f32 {P2(y+i)}, {P2(y+i)}, {P2(y+4+i)}")
                for i in (0, 2): ops.append(f"v_pk_fma_f32 {P2(y+i)}, {P2(kd+i)}, s[44:45], {P2(y+i)} op_sel:[0,{c},0] op_sel_hi:[1,{c},1]")
            else:
                for i in range(4): ops.append(f"v_add_f32 v{y+i}, v{y+i}, v{y+4+i}")
                for i in range(4): ops.append(f"v_fmac_f32 v{y+i}, s{44+c}, v{kd+i}")
        if h: ops.append(f"s_add_u32 s{S_YO}, s{S_YO}, {64*16384}")
        for i in range(4): ops.append(f"v_cvt_pk_bf16_f32 v{208+i}, v{192+i}, v{200+i}")
        for i in range(4): ops.append(f"v_min_u32 v{208+i}, s{S_SENT}, v{208+i}")
        ops.append(f"buffer_store_dwordx4 v[208:211], v9, s[4:7], s{S_YO} offen sc1")
        return ops
    yreads = [("Y", f"ds_read_b128 {Q4(192 + 4*w)}, v{A_XR} offset:{w*4096}") for w in range(4)]
    MR = dict(sa=(0, 176), ca=(1, 160), ga=(2, 164), sb=(3, 24), cb=(4, 28))
    ld_m = []
    for nm, (vec, r) in MR.items():
        if vec % 2 == 0: ld_m.append(f"s_mov_b32 s62, {WS_MOD + vec*2048}")
        ld_m.append(f"buffer_load_dwordx4 {Q4(r)}, v{A_ML}, s[4:7], s62 offen offset:{(vec % 2)*2048} sc1")
    mregs = sum((list(range(r, r + 4)) for _, r in MR.values()), [])
    def ld_y(h, sr=62):
        return [f"s_add_u32 s{sr}, s{S_YL}, {h*64*16384}", f"buffer_load_dwordx4 v[20:23], v{A_YL}, s[4:7], s{sr} offen sc1"]
    cky = check_ops(range(20, 24), 18)
    rec = Rec()
    rec(Delay(4))
    rec(lambda: a.wait(T["XW"], T["CLR"]) if OPT["f1at"] == 3 else a.wait(T["XW"]))
    rec(lambda: stamp(a, "xb0"))
    rec("s_barrier")
    rec(lambda: stamp(a, "xb1"))
    for o in yreads: rec(o)
    if OPT["f1at"] == 3:
        for o in flag_store2(WS_F1): rec(o)
    rec(Delay(3))
    rec(lambda: a.wait(T["Y"]))
    for o in yfinal(0, False): rec(o)
    rec(lambda: stamp(a, "za"))
    if OPT["xb"]: rec("s_barrier")
    rec(lambda: T.__setitem__("ZAdone", 1))
    xa_rest = rec.l
    def hook(i, f): hooks.setdefault(i, []).append(f)
    for nt in range(4): hook(last[nt] + 3, lambda nt=nt: G.st[0].insert(0, xw(nt)) if nt < 3 else G.add(0, [xw(nt)] + xa_rest))
    b4ops = [lambda: a.wait(T["W1"], T["CLR"]), lambda: stamp(a, "zb"), "s_barrier", lambda: T.__setitem__("B4done", 1)] + \
            (flag_store2(WS_F1, "s63") if OPT["f1at"] == 4 else []) + w1_tr(0, A_TR)
    b4 = [None]
    xdone = set()
    i3 = min(i for i, m in enumerate(ml) if m[:2] == (1, 3))
    if OPT["mat"] >= 0: hook(i3 + OPT["mat"], lambda: G.add(0, named("M", ld_m if OPT["msc"] else plain(ld_m))))
    ld_f1 = flag_load(WS_F1, 236)
    def yhook():
        assert not G.st[2], "mod final still pending"
        G.add(0, named("YL", ld_y(0)))
    hook(i3 + OPT["yat"], yhook)
    a.wait(tb[0, 0, 0])
    for i in range(len(ml)):
        if i == 40: stamp(a, 8)
        stamp(a, f"i{i}")
        if i == OPT["modat"]:
            while T.get("mod") is None: a.item(G.st[1].pop(0))
            modblock()
            G.add(2, [Delay(2), lambda: a.wait(T["MW"]), "s_barrier"] + modfin)
        if b4[0] is None and "W1done" in T and "ZAdone" in T: b4[0] = i + OPT["b4lag"]
        if i == b4[0]: G.add(3, b4ops); print("b4 at mfma", i, file=sys.stderr)
        for nt in range(4, 7):
            if ("ZAdone" if OPT["xb"] else "B4done") in T and nt not in xdone and i >= last[nt] + 3:
                xdone.add(nt); G.st[0].insert(0, xw(nt))
        run_m(i)
    print("conv leftovers", [len(x) for x in G.st], file=sys.stderr)
    stamp(a, "cm")
    if strict: print("strict left", len(strict), file=sys.stderr)
    while strict: a(strict.pop(0))
    G.drain([0, 1, 2])
    if OPT["ln1at"] == 4:
        if "ZAdone" in T and OPT["xb"]:
            for nt in range(4, 8):
                if nt not in xdone: xdone.add(nt); a(xw(nt))
        ln1()
    if b4[0] is None or b4[0] >= len(ml): G.add(3, b4ops)
    while "B4done" not in T: a(G.st[3].pop(0))
    stamp(a, "c1")
    for nt in range(4, 8):
        if nt not in xdone: a(xw(nt))
    G.drain([3])
    w1b = w1_groups()
    a(f"v_add_u32 v18, {L_RSA}, v{A_RW}")
    a(f"v_add_u32 v19, {L_RSA}, v{A_RR}")
    for j in range(4): a(f"v_add_u32 v{VW+j}, {256*3584}, v{VW+j}")
    if OPT["mat"] < 0:
        for o in named("M", ld_m if OPT["msc"] else plain(ld_m)): a(o)
    if OPT["wbe"]:
        a.wait(T["WTR"])
        a("s_barrier")
        a.bg = w1b; a.bg_every = OPT["wbp"]; a.flush_bg(OPT["wbe"])
    if OPT["ln1at"] == 3: ln1()
    stamp(a, "c2")
    ckm = check_ops(mregs, 96)
    cky = check_ops(range(20, 24), 96)
    a.wait(T["M"])
    for o in ckm: a(o)
    k.retry(ld_m, ckm)
    for nm, dst in (("sa", 64), ("ca", 72), ("ga", 104), ("cb", 80), ("sb", 88)):
        for i in range(4):
            a(f"v_lshlrev_b32 v{dst+2*i}, 16, v{MR[nm][1]+i}")
            a(f"v_and_b32 v{dst+1+2*i}, s{S_HI}, v{MR[nm][1]+i}")
    for i in range(0, 8, 2): a(f"v_pk_mul_f32 {P2(64+i)}, {P2(64+i)}, {P2(104+i)}")
    for i in range(0, 8, 2): a(f"v_pk_mul_f32 {P2(72+i)}, {P2(72+i)}, {P2(104+i)}")
    a.wait(T["YL"])
    stamp(a, "y0")
    for o in cky: a(o)
    k.retry(ld_y(0), cky)
    a("ds_write2st64_b32 v18, v20, v21 offset0:0 offset1:4")
    a("ds_write2st64_b32 v18, v22, v23 offset0:8 offset1:12")
    for h in range(2):
        for i in range(0, 8, 2): a(f"v_pk_fma_f32 {P2(PR[h]+i)}, {P2(PR[h]+i)}, {P2(72+i)}, {P2(64+i)}")
    a("s_waitcnt lgkmcnt(0)")
    a("s_barrier")
    stamp(a, "c3")
    XR = (176, 188)
    def row_ops(h, b, pk):
        r = Rec()
        x, hh_, st = b + 4, b + 12, b + 16
        r(f"v_mov_b32 v{st}, 0")
        r(f"v_mov_b32 v{st+1}, 0")
        for i in range(4):
            r(f"v_lshlrev_b32 v{x+2*i}, 16, v{b+i}")
            r(f"v_and_b32 v{x+1+2*i}, s{S_HI}, v{b+i}")
        if pk:
            for i in range(4): r(f"v_pk_fma_f32 {P2(x+2*i)}, {P2(x+2*i)}, {P2(PR[h]+2*i)}, {P2(220+8*h+2*i)}")
        else:
            for i in range(8): r(f"v_fma_f32 v{x+i}, v{x+i}, v{PR[h]+i}, v{220+8*h+i}")
        for i in range(4): r(f"v_cvt_pk_bf16_f32 v{XR[h]+i}, v{x+2*i}, v{x+1+2*i}")
        for i in range(4):
            r(f"v_dot2c_f32_bf16 v{st}, s67, v{XR[h]+i}")
            r(f"v_dot2c_f32_bf16 v{st+1}, v{XR[h]+i}, v{XR[h]+i}")
        r(f"s_add_u32 s66, s68, {WS_H2 + h*0x100000}")
        for dpp in WAVE_RED:
            for i in range(2): r(f"v_add_f32_dpp v{st+i}, v{st+i}, v{st+i} {dpp} bank_mask:0xf")
        ln_finish(r, [(st, st + 1, st + 2)])
        r(f"v_readlane_b32 s72, v{st+1}, 63")
        r(f"v_readlane_b32 s73, v{st}, 63")
        r(f"v_mov_b32 v{st}, s73")
        if pk:
            for i in range(4): r(f"v_pk_fma_f32 {P2(x+2*i)}, {P2(x+2*i)}, s[72:73], {P2(st)} op_sel_hi:[1,0,0]")
            for i in range(4): r(f"v_pk_fma_f32 {P2(x+2*i)}, {P2(x+2*i)}, {P2(80+2*i)}, {P2(88+2*i)}")
        else:
            for i in range(8): r(f"v_fma_f32 v{x+i}, v{x+i}, s72, v{st}")
            for i in range(8): r(f"v_fma_f32 v{x+i}, v{x+i}, v{80+i}, v{88+i}")
        for i in range(4): r(f"v_cvt_pk_bf16_f32 v{hh_+i}, v{x+2*i}, v{x+1+2*i}")
        san(r, range(hh_, hh_ + 4))
        r(f"buffer_store_dwordx4 {Q4(hh_)}, v2, s[4:7], s66 offen sc1")
        return r.l
    t = a("ds_read_b128 v[32:35], v19")
    for o in ld_f1: tf1 = a(o)
    for o in yreads: ty = a(o)
    a.bg = w1b; a.bg_every = OPT["p2"]; a.flush_bg(OPT["n2"])
    a.wait(t)
    for o in row_ops(0, 32, True): a(o)
    stamp(a, "h0")
    a.wait(ty)
    for o in yfinal(1, True): a(o)
    stamp(a, 9)
    if OPT["dpost"] == 1: ld_touchd()
    a.bg_every = OPT["p2b"]
    S_ZS, S_ZM, S_PF = 70, 69, 61
    VZ = 108
    SL = lambda t: ((t + 2) % 4) * 16384
    def ld_z(t, sr=63):
        return [f"s_add_u32 m0, s{S_ZM}, {SL(t)}", f"s_add_u32 s{sr}, s{S_ZS}, {t*16*16384}"] + \
               [(f"Z{t}", f"buffer_load_dwordx4 v{VZ+i}, s[4:7], s{sr} offen offset:{i*1024} sc1 lds") for i in range(4)]
    a(f"s_lshl_b32 s{S_ZS}, s{S_RB}, 14")
    a(f"s_lshl_b32 s{S_ZM}, s3, 12")
    a(f"s_add_u32 s{S_ZS}, s{S_ZS}, s{S_ZM}")
    a(f"s_add_u32 s{S_ZS}, s{S_ZS}, {WS_H2}")
    a(f"s_add_u32 s{S_ZS}, s{S_ZS}, s{S_SPARE}")
    a(f"s_add_u32 s{S_ZM}, s{S_ZM}, {L_Z}")
    a("s_lshl_b32 s63, s3, 6")
    a(f"v_xor_b32 v{VZ}, s63, v2")
    for i in range(1, 4): a(f"v_xor_b32 v{VZ+i}, {16*i}, v{VZ}")
    S_DB, S_T2, S_HS, S_F2 = 16, 17, 24, 25
    if OPT["dbmap"] == 1:
        a(f"s_and_b32 s{S_DB}, s{S_IDX}, 3")
        a(f"s_bfe_u32 s60, s{S_IDX}, 0x10002")
        a(f"s_lshl1_add_u32 s{S_DB}, s{S_DB}, s60")
    elif OPT["dbmap"] == 2:
        a(f"s_xor_b32 s{S_DB}, s{S_IDX}, 4")
        a(f"s_and_b32 s{S_DB}, s{S_DB}, 7")
    elif OPT["dbmap"] == 3:
        a(f"s_lshr_b32 s{S_DB}, s{S_IDX}, 2")
        a(f"s_xor_b32 s{S_DB}, s{S_DB}, 4")
    else: a(f"s_and_b32 s{S_DB}, s{S_IDX}, 7")
    if OPT["dbmap"] == 3: a(f"s_and_b32 s60, s{S_IDX}, 3")
    else: a(f"s_lshr_b32 s60, s{S_IDX}, 3")
    a(f"s_lshl_b32 s63, s{S_XCD}, 1")
    a("s_lshr_b32 s62, s60, 1")
    a("s_add_u32 s63, s63, s62")
    a(f"s_lshl_b32 s{S_F2}, s63, 13")
    a(f"s_mul_i32 s62, s3, {14*128}")
    a(f"s_add_u32 s{S_F2}, s{S_F2}, s62")
    a("s_and_b32 s60, s60, 1")
    a("s_lshl_b32 s60, s60, 4")
    a(f"s_add_u32 s{S_T2}, s60, s63")
    a(f"s_mul_i32 s{S_HS}, s{S_T2}, 56")
    a("s_mul_i32 s60, s3, 14")
    a(f"s_add_u32 s{S_HS}, s{S_HS}, s60")
    a(f"s_lshl_b32 s{S_HS}, s{S_HS}, 10")
    a(f"s_add_u32 s{S_HS}, s{S_HS}, {WS_HH}")
    a(f"s_mul_i32 s60, s{S_RB}, 56")
    a(f"s_add_u32 s60, s60, s{S_CT}")
    a("s_lshl_b32 s60, s60, 10")
    a(f"s_add_u32 s60, s60, s{S_SPARE}")
    a(f"s_add_u32 s{S_HO}, s60, {WS_HH}")
    a(f"s_lshl_b32 s{S_PF}, s{S_RB}, 13")
    a(f"s_lshl_b32 s60, s{S_CT}, 7")
    a(f"s_add_u32 s{S_PF}, s{S_PF}, s60")
    a(f"s_and_b32 s60, s{S_FO}, {OOB}")
    a(f"s_lshl_b32 s62, s{S_ROW}, 7")
    a(f"s_add_u32 s{S_FO}, s62, s60")
    ZA = 104
    a("v_xor_b32 v3, v6, v5")
    a("v_lshlrev_b32 v3, 4, v3")
    a("v_lshl_add_u32 v3, v5, 10, v3")
    a(f"v_add_u32 v{ZA}, {L_Z}, v3")
    for i in range(1, 4): a(f"v_xor_b32 v{ZA+i}, {64*i}, v{ZA}")
    a(f"v_add_u32 v3, s{S_ZM}, v2")
    a.wait(tf1)
    for o in flag_chk(236): a(o)
    k.retry(ld_f1, flag_chk(236))
    a("s_barrier")
    print("W1b left:", len(a.bg), file=sys.stderr)
    a.flush_bg()
    stamp(a, "w2")
    ld_yb = [f"s_add_u32 s62, s{S_YL}, {64*16384}", f"buffer_load_dwordx4 v[156:159], v{A_YL}, s[4:7], s62 offen sc1"]
    for o in ld_z(0) + (named("YB", ld_yb) if OPT["ybat"] == 0 else []) + ld_z(1) + (named("YB", ld_yb) if OPT["ybat"] == 1 else []): a(o)
    if OPT["ddef"]:
        srd(a, 52, P_WD, 1792 * 1024)
        a("s_lshl2_add_u32 s72, s2, s3")
        a("s_mul_i32 s72, s72, 1792")
        a("v_min_u32 v18, 13, v1")
        a("v_lshlrev_b32 v18, 7, v18")
        a("buffer_load_dword v237, v18, s[52:55], s72 offen")
    srd(a, 48, P_WD, 1792 * 1024)
    a(f"s_mul_i32 s{S_WS}, s3, {448*1024}")
    a(f"s_lshl_b32 s60, s{S_DB}, 7")
    a(f"s_add_u32 s{S_WS}, s{S_WS}, s60")
    if OPT.get("x_lin"):
        a(f"s_lshl2_add_u32 s{S_WS}, s{S_DB}, s3")
        a(f"s_mul_i32 s{S_WS}, s{S_WS}, 57344")
    a(f"s_mul_i32 s{S_WM}, s3, 24576")
    VD, VT = 116, 124
    setup2 = Rec()
    setup2("v_bfe_u32 v120, v1, 1, 2")
    setup2("v_xor_b32 v120, v120, v6")
    setup2("v_and_b32 v121, 1, v1")
    setup2("v_lshl_add_u32 v120, v120, 1, v121")
    setup2("v_lshlrev_b32 v121, 10, v4")
    setup2(f"v_lshl_add_u32 v{VD}, v120, 4, v121")
    for j in range(1, 4): setup2(f"v_add_u32 v{VD+j}, {j*(8192-1024)}, v{VD}")
    setup2("v_lshrrev_b32 v120, 2, v1")
    setup2("v_lshlrev_b32 v120, 7, v120")
    setup2("v_and_b32 v121, 3, v1")
    setup2("v_lshl_add_u32 v120, v121, 3, v120")
    setup2(f"v_add_u32 v120, s{S_WM}, v120")
    setup2("v_bfe_u32 v121, v1, 3, 2")
    for dt in range(4):
        setup2(f"v_xor_b32 v122, {dt}, v121")
        setup2(f"v_lshl_add_u32 v{VT+dt}, v122, 5, v120")
    def wd_dma(u):
        l = [f"s_add_u32 m0, s{S_WM}, {(u % 6)*4096}"]
        for j in range(4): l.append((f"WD{u}", f"buffer_load_dwordx4 v{2 if OPT.get('x_lin') else VD+j}, s[48:51], s{S_WS} offen offset:{j*1024} lds"))
        l.append(f"s_add_u32 s{S_WS}, s{S_WS}, {4096 if OPT.get('x_lin') else 32768}")
        return l
    WR = lambda u, dt: ("v", 128 + (u * 4 + dt) * 4) if u < 8 else ("a", 112 + ((u - 8) * 4 + dt) * 4)
    def wd_tr(u):
        l = []
        for dt in range(4):
            kk, r = WR(u, dt)
            for h in range(2):
                l.append((f"WT{u}", f"ds_read_b64_tr_b16 {kk}[{r+2*h}:{r+2*h+1}], v{VT+dt} offset:{(u % 6)*4096 + h*2048}"))
        return l
    H3R = [64, 68, 72, 76, 96, 100, 104, 108, 4, 12, 116, 120, 112, 124]
    H0V = [100, 64, 68, 72, 76, 96][:OPT["h0v"]]
    HB = lambda p, s: ("v", H3R[s]) if p == 3 else ("v", H0V[s]) if (p == 0 and s < len(H0V)) else ("a", (208 + 4 * s) % 256) if p == 2 else ("a", p * 56 + 4 * s)
    def ld_h(p, s, sr=63):
        o = []
        if s % 4 == 0: o.append(f"s_add_u32 s{sr}, s{S_HS}, {(0 if OPT.get('x_h') else p)*32*56*1024 + s*1024 + (OOB if OPT.get('x_h') == 2 else 0)}")
        kk, r = HB(p, s)
        o.append((f"H{p}_{s}", f"buffer_load_dwordx4 {Q4(r, kk)}, v2, s[4:7], s{sr} offen offset:{(s%4)*1024} sc1"))
        return o
    def ld_f2(base, vd, va):
        return [f"v_min_u32 v{va}, 13, v1", f"v_lshlrev_b32 v{va}, 7, v{va}", f"s_add_u32 s62, s{S_F2}, {base}",
                f"buffer_load_dword v{vd}, v{va}, s[4:7], s62 offen sc1"]
    def ht_ops(p0, np_, va, vb):
        r = Rec()
        r(f"v_min_u32 v{va}, 13, v5")
        r(f"v_lshlrev_b32 v{va}, 7, v{va}")
        if np_ > 1:
            r(f"v_and_b32 v{vb}, {np_-1}, v6")
            r(f"v_mul_u32_u24 v{vb}, {32*56*1024}, v{vb}")
            r(f"v_add_u32 v{va}, v{va}, v{vb}")
        r(f"s_mul_i32 s62, s{S_DB}, {14*128}")
        r(f"s_add_u32 s62, s62, s{S_HS}")
        if p0: r(f"s_add_u32 s62, s62, {p0*32*56*1024}")
        r(f"buffer_load_dword v{vb}, v{va}, s[4:7], s62 offen sc1")
        return r.l
    chk1 = lambda vd: [f"v_cmp_ne_u32 vcc, v{vd}, v{vd}" if OPT.get("x_nof") else f"v_cmp_ne_u32 vcc, s{S_TAG}, v{vd}"]
    def ld_fb(vd, va, sr=62):
        return [f"v_bfe_u32 v{va}, v1, 2, 1", f"v_lshlrev_b32 v{va}, 7, v{va}", f"v_and_b32 v{vd}, 3, v1", f"v_add_lshl_u32 v{va}, v{va}, v{vd}, 7",
                f"s_lshl_b32 s{sr}, s{S_T2}, 9", f"s_add_u32 s{sr}, s{sr}, {WS_FB}", f"buffer_load_dword v{vd}, v{va}, s[4:7], s{sr} offen sc1"]
    RB0 = 131072
    XV, GV, WV = 80, 88, 92
    rec = Rec()
    srd(rec, 8, P_OUT, 0x200000)
    rec("v_lshrrev_b32 v96, 4, v0")
    rec("v_lshlrev_b32 v11, 10, v96")
    rec("v_lshl_add_u32 v11, v5, 3, v11")
    rec("v_lshrrev_b32 v97, 2, v5")
    rec("v_lshlrev_b32 v97, 3, v97")
    rec("v_and_b32 v98, 3, v5")
    rec("v_add_lshl_u32 v97, v97, v98, 3")
    rec(f"s_lshl_b32 s72, s{S_T2}, 14")
    rec(f"s_lshl_b32 s73, s{S_DB}, 7")
    rec("s_add_u32 s71, s72, s73")
    rec(f"s_lshl_b32 s73, s{S_DB}, 8")
    rec(f"s_add_u32 s66, s73, {WS_MOD + 5*2048}")
    rec("v_xor_b32 v98, v6, v5")
    rec("v_lshlrev_b32 v98, 4, v98")
    rec("v_lshl_add_u32 v98, v5, 8, v98")
    rec("s_lshl_b32 s72, s3, 12")
    rec(f"s_add_u32 s72, s72, {RB0}")
    rec(f"v_add_u32 v{WV}, s72, v98")
    for dt in range(1, 4): rec(f"v_xor_b32 v{WV+dt}, {64*dt}, v{WV}")
    rec("v_xor_b32 v10, v5, v96")
    rec("v_lshlrev_b32 v10, 4, v10")
    rec("v_lshl_add_u32 v10, v96, 8, v10")
    rec(f"v_add_u32 v10, {RB0}, v10")
    setup3 = rec.l
    ld_g = [f"buffer_load_dwordx2 {P2(GV+2)}, v97, s[4:7], s66 offen sc1"]
    ld_r = []
    for p in range(4):
        ld_r.append(f"s_add_u32 s62, s71, {WS_X1 + p*32*16384}")
        ld_r.append(f"buffer_load_dwordx2 {P2(XV+2*p)}, v11, s[4:7], s62 offen sc1")
    ckg = check_ops(range(GV + 2, GV + 4), 14)
    res1 = setup3 + ld_fb(99, 98, 72) + named("GB", ld_g)
    res2 = [lambda: a.wait(T["GB"])] + chk1(99) + [lambda: k.retry(ld_fb(99, 98), chk1(99))] + ld_r + ckg + [lambda: k.retry(ld_g, ckg)] + \
           [f"v_lshlrev_b32 v{GV}, 16, v{GV+2}", f"v_and_b32 v{GV+1}, s{S_HI}, v{GV+2}", f"v_lshlrev_b32 v{GV+2}, 16, v{GV+3}", f"v_and_b32 v{GV+3}, s{S_HI}, v{GV+3}"]
    xs_ops = [f"s_add_u32 s60, s68, {WS_X1}", f"buffer_store_dwordx4 {Q4(XR[0])}, v2, s[4:7], s60 offen sc1",
              "s_add_u32 s60, s60, 0x100000", ("XS", f"buffer_store_dwordx4 {Q4(XR[1])}, v2, s[4:7], s60 offen sc1")]
    for o in setup2.l: a(o)
    L_RS2 = L_Z - 4096
    a(f"v_add_u32 v{A_RW}, {L_RS2}, v{A_RW}")
    a(f"v_add_u32 v{A_RR}, {L_RS2}, v{A_RR}")
    ckyb = check_ops(range(156, 160), 14)
    yb1 = [lambda: a.wait(T["YB"])] + ckyb + [lambda: k.retry(ld_yb, ckyb),
           f"ds_write2st64_b32 v{A_RW}, v156, v157 offset0:0 offset1:4", ("YW", f"ds_write2st64_b32 v{A_RW}, v158, v159 offset0:8 offset1:12"),
           Delay(3), lambda: a.wait(T["YW"])]
    yb2 = [("YR", f"ds_read_b128 v[156:159], v{A_RR}"), Delay(5), lambda: a.wait(T["YR"])]
    if OPT["hop"]:
        a("s_branch L_hop0")
        a.label("L_hopback")
    a.wait(T["W1"])
    if OPT["ybat"] == 2:
        for o in named("YB", ld_yb): a(o)
    stamp(a, "y1")
    a("s_barrier")
    a(f"s_cmp_lg_u32 s{S_SPARE}, 0")
    a("s_cbranch_scc1 L_spare")
    for o in w1_tr(1, A_TR): a(o)
    def verify_ops(t):
        rd = [("ZV", f"ds_read_b128 {Q4(64+4*i)}, v3 offset:{SL(t) + i*1024}") for i in range(4)]
        ck = check_ops(range(64, 80), 14)
        return [lambda: a.wait(T[f"Z{t}"])] + rd + [Delay(5), lambda: a.wait(T["ZV"])] + ck + [lambda: k.retry(ld_z(t, 62), ck, mid=rd)]
    stamp(a, 10)
    for o in verify_ops(0): a(o)
    a("s_barrier")
    for o in yb1: a(o)
    a("s_barrier")
    a(yb2[0])
    stamp(a, 11)
    npad = [0]
    def pad(last=False):
        i = npad[0]; npad[0] += 1
        a.emit(f"s_branch L_skip{i}")
        a.label(f"L_hop{i}")
        a.emit("s_branch L_hopback" if last else f"s_branch L_hop{i+1}")
        a.label(f"L_skip{i}")
    NB = 4
    BF = lambda n: 16 + (n % NB) * 4
    tok = {}
    def loadZ(n):
        t, s = divmod(n, 16)
        tok[n] = a.emit(f"ds_read_b128 {Q4(BF(n))}, v{ZA + (s & 3)} offset:{SL(t) + (s >> 2)*256}")
    for n in range(NB - 1): loadZ(n)
    GA = lambda t: 32 + (t & 1) * 16
    def epi_ops(t):
        acc = GA(t)
        ops = [f"v_mul_f32 v{acc+i}, v{acc+i}, v{acc+8+i}" for i in range(8)]
        ops += [f"v_cvt_pk_bf16_f32 v{112+i}, v{acc+2*i}, v{acc+2*i+1}" for i in range(4)]
        if t >= 6: ops += [f"v_min_u32 v{112+i}, s{S_SENT}, v{112+i}" for i in range(4)]
        ops.append((f"HS{t}", f"buffer_store_dwordx4 v[112:115], v2, s[4:7], s{S_HO} offen sc1"))
        ops.append(f"s_add_u32 s{S_HO}, s{S_HO}, {16*56*1024}")
        return ops
    G = Gaps(a, 5)
    G.order = [0, 3, 4, 1, 2]
    G.pace[1] = OPT.get("p3", 4)
    a.wait(tok[0])
    for t in range(8):
        stamp(a, f"t{t}")
        if OPT["hop"] and t in (2, 4, 6): pad()
        if t >= 1: G.add(0, [Delay(OPT["epd"])] + epi_ops(t - 1))
        if t >= 1 and OPT.get("sfirst"): G.add(1, [Delay(0, lambda t=t: f"HS{t-1}" in T)])
        if t + 2 < 8 and not (t == 2 and OPT["z4late"]): G.add(1, ld_z(t + 2))
        if t == 0:
            G.add(3, [Delay(OPT["hcd"]), f"s_add_u32 s60, s{S_HO}, {6*16*56*1024}", "buffer_store_dwordx4 v[244:247], v2, s[4:7], s60 offen sc1",
                      f"s_add_u32 s60, s60, {16*56*1024}", "buffer_store_dwordx4 v[244:247], v2, s[4:7], s60 offen sc1"])
        if t == 1: G.add(2, xs_ops)
        if 2 <= t <= 5:
            u = 2 * (t - 2)
            G.add(2, [lambda u=u: a.wait(T[f"WD{u+1}"])] + wd_tr(u) + wd_tr(u + 1))
        if t <= 6:
            u = 2 * t
            if u >= 6: G.add(1, [lambda u=u: a.wait(T[f"WT{u-5}"])])
            G.add(1, wd_dma(u) + wd_dma(u + 1))
            if t == 2 and OPT["z4late"]: G.add(1, ld_z(4))
        for s in range(16):
            n = t * 16 + s
            if s == (8 if t == 3 else 6) and t + 1 < 8: G.add(0, verify_ops(t + 1))
            if n - OPT["fset"] in (48, 80, 112):
                tt = (n - OPT["fset"]) // 16
                G.add(3, [lambda tt=tt: a.wait(T[f"HS{tt-2}"])] + flag_store({3: WS_F20, 5: WS_F2A, 7: WS_F2B}[tt], 8, 7, off=f"s{S_PF}"))
            if (t, s) == OPT["f0ld"]: G.add(0, named("F20", ld_f2(WS_F20, 12, 13)))
            if (t, s) == OPT["f0ck"]:
                G.add(0, [lambda: a.wait(T["F20"])] + chk1(12) + [lambda: k.retry(ld_f2(WS_F20, 12, 13), chk1(12))] + (ht_ops(0, 1, 96, 97) if OPT["ht"] else []))
            if (t, s) == (6, 13) and H0V: G.add(1, [Delay(0, lambda: not G.st[0])] + sum((ld_h(0, ss) for ss in range(len(H0V))), []))
            if (t, s) == (7, OPT["h0s"]):
                G.pace[1] = OPT["hp"]
                G.add(1, sum((ld_h(0, ss) for ss in range(len(H0V), 14)), []))
            if (t, s) == (0, 0): G.add(2, row_ops(1, 156, False))
            if (t, s) == (4, 9): G.add(4, res1)
            if (t, s) == (6, 3): G.add(0, res2)
            if t == 7 and s == 8: G.add(2, [lambda: a.wait(T["WD13"])])
            if t == 7 and 8 <= s <= 13: G.add(2, wd_tr(s))
            if (t, s) == OPT["f2ld"]: G.add(0, named("F2", ld_f2(WS_F2A, 15, 9)))
            if (t, s) == OPT["f2ck"]:
                G.add(0, [lambda: a.wait(T["F2"])] + chk1(15) + [lambda: (k.retry(ld_f2(WS_F2A, 15, 9), chk1(15)), T.__setitem__("F2Adone", 1))] + (ht_ops(1, 1, 96, 97) if OPT["ht"] else []))
            if (t, s) == OPT["f2bld"]: G.add(0, named("F2", ld_f2(WS_F2B, 12, 13)))
            if t == 7 and s >= OPT["hstart"] and "F2Adone" in T and "Hgo" not in T:
                T["Hgo"] = 1
                G.pace[1] = OPT["hp"]
                G.add(1, sum((ld_h(1, ss) for ss in range(14)), []))
            if s == 13:
                if G.left([0]): print("tile", t, "pre-barrier drain", G.left([0]), file=sys.stderr)
                G.drain([0])
                if t == 2: a.wait(T["XS"])
                a.emit("s_barrier")
                if t == 2: G.add(3, flag_store(WS_FB, 8, 7))
            for ct in range(4):
                d = Q4(GA(t) + 4 * ct)
                a.emit(f"v_mfma_f32_16x16x32_bf16 {d}, {Q4((s*4+ct)*4,'a')}, {Q4(BF(n))}, {'0' if s == 0 else d}")
                nn = n + NB - 1
                fm = (lambda: loadZ(nn)) if (ct == 0 and nn < 128) else None
                fs = (lambda: a.wait(tok[n + 1])) if (ct == 3 and n + 1 < 128) else None
                G.gap(fs, fm)
        if G.left(): print("tile", t, "leftover", [len(x) for x in G.st], file=sys.stderr)
        if t < 7: G.drain([0, 2, 3, 4] if (t == 6 and H0V) else None)
    G.drain([0, 3])
    wtleft = G.st[2]
    nwtleft = len(wtleft)
    while f"H0_13" not in T: a.item(G.st[1].pop(0))
    h1left = G.st[1]
    nh1left = len(h1left)
    a.label("L_gemm2")
    stamp(a, 12)
    G = Gaps(a, 3)
    G.pace[1] = OPT["hp"]
    G.add(1, h1left)
    G.add(2, wtleft)
    def ost(p, sr=60):
        return [f"s_add_u32 s{sr}, s71, {p*32*16384}", f"buffer_store_dwordx2 {P2(XV+2*p)}, v11, s[8:11], s{sr} offen {OPT['outf'] if p < OPT['outp'] else ''}"]
    rw = lambda p, dt: ("RW", f"ds_write_b128 v{WV+dt}, {Q4(GA(p)+4*dt)} offset:{(p & 1)*16384}")
    def red_ops(p, pk=False):
        ops = [lambda: a.wait(T["RW"]), "s_barrier"]
        ro = (p & 1) * 16384
        for w in range(4): ops.append(("RR", f"ds_read_b128 {Q4(16+4*w)}, v10 offset:{ro + w*4096}"))
        u = GA(p)
        for e in range(2):
            ops.append(f"v_lshlrev_b32 v{u+2*e}, 16, v{XV+2*p+e}")
            ops.append(f"v_and_b32 v{u+1+2*e}, s{S_HI}, v{XV+2*p+e}")
        ops += [Delay(4), lambda: a.wait(T["RR"])]
        if pk:
            for j in (0, 2): ops += [f"v_pk_add_f32 {P2(16+j)}, {P2(16+j)}, {P2(20+j)}", f"v_pk_add_f32 {P2(24+j)}, {P2(24+j)}, {P2(28+j)}"]
            for j in (0, 2): ops.append(f"v_pk_add_f32 {P2(16+j)}, {P2(16+j)}, {P2(24+j)}")
            for j in (0, 2): ops.append(f"v_pk_fma_f32 {P2(16+j)}, {P2(16+j)}, {P2(GV+j)}, {P2(u+j)}")
        else:
            for j in range(4): ops += [f"v_add_f32 v{16+j}, v{16+j}, v{20+j}", f"v_add_f32 v{24+j}, v{24+j}, v{28+j}"]
            for j in range(4): ops.append(f"v_add_f32 v{16+j}, v{16+j}, v{24+j}")
            for j in range(4): ops.append(f"v_fma_f32 v{16+j}, v{16+j}, v{GV+j}, v{u+j}")
        for j in (0, 2): ops.append(f"v_cvt_pk_bf16_f32 v{XV+2*p+j//2}, v{16+j}, v{17+j}")
        if p >= OPT["defer"]: ops += ost(p)
        return ops
    ck3 = check_ops(sum((list(range(r, r + 4)) for r in H3R), []), 1)
    def flush1(name):
        while name not in T: a.item(G.st[1].pop(0))
    def ld_h1(p, s):
        kk, r = HB(p, s)
        return [f"s_add_u32 s62, s{S_HS}, {p*32*56*1024 + s*1024}", f"buffer_load_dwordx4 {Q4(r, kk)}, v2, s[4:7], s62 offen sc1"]
    a.wait(T["H0_0"])
    for p in range(4):
        stamp(a, f"p{p}")
        if OPT["hop"] and p in (0, 2): pad(last=(p == 2))
        if p == 0: G.add(0, [Delay(3)] + epi_ops(7))
        else: G.add(0, [Delay(3)] + [rw(p - 1, dt) for dt in range(4)] + [Delay(6)] + red_ops(p - 1))
        if p == 3: G.add(1, sum((ost(pp, 63) for pp in range(OPT["defer"])), []))
        order = [(s, dt) for s in range(14) for dt in range(4)] if p < 3 else [(s, dt) for dt in range(4) for s in range(14)]
        for ii, (s, dt) in enumerate(order):
            if dt == 0 and p < 3:
                if (8 + p, s) == OPT["f2bld"]: G.add(0, named("F2", ld_f2(WS_F2B, 12, 13)))
                if (p, s) == OPT["f2bck"]:
                    G.add(0, [lambda: a.wait(T["F2"])] + chk1(12) + [lambda: k.retry(ld_f2(WS_F2B, 12, 13), chk1(12))] +
                          (ht_ops(2, 1, 96, 97) if OPT["ht"] else []) + [lambda: G.add(1, sum((ld_h(2, ss) for ss in range(14)), []))])
                if (p, s) == OPT["h3t"]: G.add(1, ht_ops(3, 1, 8, 9))
                if (p, s) == OPT["h3at"]: G.add(1, sum((ld_h(3, ss) for ss in range(14)), []))
                if (p, s) == OPT["h3ck"]:
                    cks = []
                    for lo, hi in ((0, 5), (5, 10), (10, 14)):
                        ck = check_ops(sum((list(range(r, r + 4)) for r in H3R[lo:hi]), []), 1)
                        cks += [Delay(OPT["h3d"], lambda hi=hi: f"H3_{hi-1}" in T), lambda hi=hi: (flush1(f"H3_{hi-1}"), a.wait(T[f"H3_{hi-1}"]))] + ck + \
                               [lambda ck=ck, lo=lo, hi=hi: k.retry(sum((ld_h1(3, ss) for ss in range(lo, hi)), []), ck)]
                    G.add(2, cks)
            if p == 3 and s == 3 and dt > 0: G.add(0, [rw(3, dt - 1)])
            d = Q4(GA(p) + 4 * dt)
            wk, wr = WR(s, dt); hk, hr = HB(p, s)
            a.emit(f"v_mfma_f32_16x16x32_bf16 {d}, {Q4(wr, wk)}, {Q4(hr, hk)}, {'0' if s == 0 else d}")
            fs = None
            if dt == 3 and p < 3:
                np_, ns = (p, s + 1) if s < 13 else (p + 1, 0)
                toks = []
                if np_ < 3:
                    while f"H{np_}_{ns}" not in T: a.item(G.st[1].pop(0))
                    toks.append(f"H{np_}_{ns}")
                if np_ == 0 and ns >= 8:
                    while any(isinstance(o, tuple) and o[0] == f"WT{ns}" for o in G.st[2]): a.item(G.st[2].pop(0))
                    toks.append(f"WT{ns}")
                if toks: fs = lambda toks=toks: a.wait(*[T[x] for x in toks])
            G.gap(fs, None)
        if G.left(): print("gemm2 p", p, "leftover", [len(x) for x in G.st], file=sys.stderr)
        G.drain([0, 2] if p < 3 else None)
    stamp(a, "p4")
    a(rw(3, 3))
    for o in red_ops(3, True): a(o)
    if STAMP and DIAG is None:
        a("s_waitcnt vmcnt(0)")
        a("s_memrealtime s[72:73]")
        a("s_waitcnt lgkmcnt(0)")
        a("s_lshl_b32 s60, s2, 2")
        a("s_add_u32 s60, s60, s3")
        a("s_lshl_b32 s60, s60, 6")
        a(f"s_add_u32 s60, s60, {WS_STAMP}")
        a("s_mov_b64 exec, 1")
        for i in range(16):
            a(f"v_mov_b32 v2, s{76+2*i if i < 13 else (72, 20, 21)[i-13]}")
            a(f"buffer_store_dword v2, off, s[4:7], s60 offset:{4*i}")
    if DIAG is not None:
        a("s_waitcnt vmcnt(0)")
        a("s_memrealtime s[72:73]")
        a("s_waitcnt lgkmcnt(0)")
        a("s_cmp_lg_u32 s2, 100")
        a("s_cbranch_scc1 L_end")
        src = 72 if DIAG == 13 else 76 + 2 * DIAG
        a(f"s_sub_u32 s60, s{src}, s76")
        a("s_add_u32 s60, s60, 6000")
        a("s_min_u32 s60, s60, 20000")
        a.label("L_diag")
        a("s_memrealtime s[72:73]")
        a("s_waitcnt lgkmcnt(0)")
        a("s_sub_u32 s61, s72, s76")
        a("s_cmp_lt_u32 s61, s60")
        a("s_cbranch_scc1 L_diag")
    a.label("L_end")
    a("s_endpgm")
    a.label("L_spare")
    a("s_waitcnt vmcnt(0)")
    for o in yb1[1:]: a(o)
    a("s_barrier")
    for o in yb2: a(o)
    for o in row_ops(1, 156, True): a(o)
    for o in xs_ops: a(o)
    if OPT["dpost"] == 2: ld_touchd()
    a("s_waitcnt vmcnt(0)")
    a("s_barrier")
    for o in flag_store(WS_FB, 9, 7): a(o)
    for grp in ((range(0, 6), range(0, 6)), (range(6, 12), range(6, 8)), (range(12, 14), ())):
        for u in grp[0]:
            for o in wd_dma(u): a(txt(o))
        a("s_waitcnt vmcnt(0)")
        for u in grp[1]:
            for o in wd_tr(u): a(txt(o))
        a("s_waitcnt lgkmcnt(0)")
    allw = sum((wd_tr(u) for u in range(8, 14)), [])
    for o in allw[:len(allw) - nwtleft]: a(txt(o))
    a(f"s_sleep {OPT['spsl']}")
    for o in res1: a(txt(o))
    a("s_waitcnt vmcnt(0)")
    for o in res2[1:]: a(o)
    def spf(p, base):
        ld = [f"s_add_u32 s62, s30, {base}", "buffer_load_dword v15, v9, s[4:7], s62 offen sc1"]
        for o in ld: a(o)
        a("s_waitcnt vmcnt(0)")
        for o in chk1(15): a(o)
        k.retry(ld, chk1(15), sleep=6)
        a(f"s_add_u32 s62, s31, {p*32*56*1024}")
        a("buffer_load_dword v100, v101, s[4:7], s62 offen sc1")
        a("s_add_u32 s62, s62, 6144")
        a("buffer_load_dword v100, v101, s[4:7], s62 offen sc1")
    if OPT["spf"]:
        a(f"s_and_b32 s60, s{S_IDX}, 3")
        a("s_lshr_b32 s62, s60, 1")
        a(f"s_lshl1_add_u32 s62, s{S_XCD}, s62")
        a("s_lshl_b32 s30, s62, 13")
        a(f"s_mul_i32 s63, s3, {14*128}")
        a("s_add_u32 s30, s30, s63")
        a("s_and_b32 s60, s60, 1")
        a("s_lshl4_add_u32 s62, s60, s62")
        a("s_mul_i32 s31, s62, 56")
        a("s_mul_i32 s63, s3, 14")
        a("s_add_u32 s31, s31, s63")
        a("s_lshl_b32 s31, s31, 10")
        a(f"s_add_u32 s31, s31, {WS_HH}")
        a("v_min_u32 v9, 13, v1")
        a("v_lshlrev_b32 v9, 7, v9")
        a("v_lshlrev_b32 v101, 7, v1")
        spf(0, WS_F20)
        spf(1, WS_F2A)
    for o in ld_f2(WS_F2A, 15, 9): a(o)
    a("s_waitcnt vmcnt(0)")
    for o in chk1(15): a(o)
    k.retry(ld_f2(WS_F2A, 15, 9), chk1(15), sleep=8)
    allh = sum((ld_h(p, s) for p in range(2) for s in range(14)), [])
    for o in allh[:len(allh) - nh1left]: a(txt(o))
    if OPT["spf"]: spf(2, WS_F2B)
    for o in ld_f2(WS_F2B, 12, 13): a(o)
    a("s_waitcnt vmcnt(0) lgkmcnt(0)")
    a("s_nop 4")
    a("s_branch L_gemm2")
    k.emit_slow()
    a.label("L_codeend")
    print("instrs", a.ninstr, "nops", a.nnop, file=sys.stderr)
    return a.text()

def main(path):
    t = f"; @launch grid=(256,1,1) block=(256,1,1) lds={LDS_BYTES}\n"
    t += '.amdgcn_target "amdgcn-amd-amdhsa--gfx950"\n.text\n'
    t += build()
    t += f""".section .rodata,"a"
.p2align 6
.amdhsa_kernel {NAME}_kernel
  .amdhsa_next_free_vgpr 512
  .amdhsa_next_free_sgpr 102
  .amdhsa_accum_offset 256
  .amdhsa_group_segment_fixed_size 0
  .amdhsa_kernarg_size 120
  .amdhsa_user_sgpr_count 2
  .amdhsa_user_sgpr_kernarg_segment_ptr 1
  .amdhsa_system_sgpr_workgroup_id_x 1
  .amdhsa_float_denorm_mode_32 3
.end_amdhsa_kernel
"""
    open(path, "w").write(t)

if __name__ == "__main__":
    for x in "ht=0 dpost=0 spf=0 modat=-1 rot=0 n0=0 f0at=15 aftat=24 n2=2 p2=24 p2b=7 cf=1 fs=6 h3at=1:8 p1=2 p3=4 fset=-3 hcd=30 h3d=8 h3ck=2:2 z4late=1 defer=2 f2bld=7:14 f2bck=0:10 hp=3 f0ld=5:10 f0ck=6:10 f2ld=6:10 f2ck=7:5 hstart=7 n1=0 f1at=3 ord=/m/y/n/ cord=cqWzD bg1=0 b4lag=20 ln1at=4 yat=12 mat=1".split() + sys.argv[2:]:
        kk, _, vv = x.partition("=")
        if kk == "stamp":
            STAMP = True
            if vv: SLIST = [int(y) if y.isdigit() else y for y in vv.split(",")]
        elif kk == "diag":
            STAMP = True; DIAG = int(vv)
        elif vv == "none": OPT[kk] = ""
        elif ":" in vv: OPT[kk] = tuple(int(y) for y in vv.split(":"))
        else: OPT[kk] = int(vv) if vv.lstrip("-").isdigit() else vv
    main(sys.argv[1])
```

```python
import sys
from dsl import Asm, Gaps, Delay, cls_of
NAME = "adaLN_cond__ssm_conv_h3__glu_gated_bilinear__prompt"

WS_KV, WS_Y, WS_H2, WS_X1, WS_HH = 0x0, 0x200000, 0x400000, 0x600000, 0x800000
WS_MOD = 0x1000000
WS_F0, WS_F1, WS_FB, WS_F2A, WS_F2B, WS_EP = 0x1030000, 0x1040000, 0x1050000, 0x1060000, 0x1080000, 0x10a0000
WS_F20 = 0x10c0000
WS_STAMP = 0x1800000
WS_SIZE = 0x2000000
OOB = 0x40000000
SPIN = 20000

L_KC, L_UU, L_RSA, L_MP = 131072, 147712, 156928, 161024
L_EX, L_RSB = L_KC, L_UU
L_Z = 98304
LDS_BYTES = 163840

P_Q, P_K, P_V, P_SH, P_SK, P_SD, P_WG, P_WU, P_WD, P_C, P_WM, P_OUT, P_DBG, P_WS = 16, 18, 20, 22, 24, 26, 30, 32, 34, 36, 38, 40, 42, 44
S_XCD, S_IDX, S_TAG, S_HI, S_SENT, S_RB, S_CT, S_D, S_SPARE = 46, 47, 56, 57, 58, 59, 28, 29, 75
S_WS, S_WM = 18, 19
S_FO, S_HO, S_YO, S_ROW, S_MO = 64, 65, 71, 22, 42
STAMP = False
DIAG = None
OPT = dict(ord="//m/n/cq", f0ld=(5, 4), f0ck=(6, 3), spf=1, z4late=1, hcd=30, dpost=1, mat=1, f1at=4, modat=60, cord="ncWzd", fset=2, cf=1, bg1=0, qconv=0, spsl=1, zsleep=0, ln1at=3, cconv=0, yat=12, defer=2, fs=6, ht=1, hp=3, hstart=1, f2ld=(6, 1), f2ck=(6, 9), f2bld=(7, 14), h3t=(9, 9), f2bck=(0, 5), h3at=(1, 9), rl=0, hct=(3, 4), xst=(1, 2), r1at=(5, 4), r2at=(6, 8), wbin=0, b4free=0, zat=-1, outp=4, msc=1, tagv=0, dv=0, dbmap=3, dbl=0, wbe=0, wbp=16, xpri=0, v0=0, vp=4, h0v=0, h0s=1, hop=0, ybat=0, epd=3, rsl=4, r1=2, h3d=8, xb=1, ddef=0, h3ck=(2, 2), rot=1, early2=1, f0at=12, aftat=20, t2=1, dt=0, n0=0, n1=0, pollat=-1, b4lag=10, p1=3, p2=12, n2=8, p2b=4, touch=1, outf="sc1", zearly=1)
Q4 = lambda r, k="v": f"{k}[{r}:{r+3}]"
P2 = lambda r: f"v[{r}:{r+1}]"
SLIST = [0, 1, 2, 3, 4, 5, 6, 7, 8, 9, 10, 11, 12]

def stamp(a, name):
    if STAMP and name in SLIST:
        i = SLIST.index(name)
        a.emit(f"s_memrealtime s[{76+2*i}:{77+2*i}]")

def srd(a, d, p, nbytes):
    a(f"s_mov_b32 s{d}, s{p}")
    a(f"s_mov_b32 s{d+1}, s{p+1}")
    a(f"s_mov_b32 s{d+2}, {hex(nbytes)}")
    a(f"s_mov_b32 s{d+3}, 0x20000")

def ln_finish(a, pairs):
    def each(f):
        for p in pairs: a(f(*p))
    each(lambda s, q, t: f"v_mul_f32 v{s}, 0x3b000000, v{s}")
    each(lambda s, q, t: f"v_mul_f32 v{q}, 0x3b000000, v{q}")
    each(lambda s, q, t: f"v_fma_f32 v{q}, -v{s}, v{s}, v{q}")
    each(lambda s, q, t: f"v_max_f32 v{q}, 0, v{q}")
    each(lambda s, q, t: f"v_cvt_pk_bf16_f32 v{t}, v{q}, v{s}")
    each(lambda s, q, t: f"v_lshlrev_b32 v{q}, 16, v{t}")
    each(lambda s, q, t: f"v_and_b32 v{s}, s{S_HI}, v{t}")
    each(lambda s, q, t: f"v_add_f32 v{q}, 0x3727c5ac, v{q}")
    each(lambda s, q, t: f"v_cvt_pk_bf16_f32 v{t}, v{q}, v{q}")
    each(lambda s, q, t: f"v_lshlrev_b32 v{q}, 16, v{t}")
    each(lambda s, q, t: f"v_sqrt_f32 v{q}, v{q}")
    each(lambda s, q, t: f"v_cvt_pk_bf16_f32 v{t}, v{q}, v{q}")
    each(lambda s, q, t: f"v_lshlrev_b32 v{q}, 16, v{t}")
    each(lambda s, q, t: f"v_rcp_f32 v{q}, v{q}")
    each(lambda s, q, t: f"v_mul_f32 v{s}, -v{s}, v{q}")

WAVE_RED = ("quad_perm:[1,0,3,2] row_mask:0xf", "quad_perm:[2,3,0,1] row_mask:0xf", "row_half_mirror row_mask:0xf",
            "row_mirror row_mask:0xf", "row_bcast:15 row_mask:0xa", "row_bcast:31 row_mask:0xc")

def san(a, regs):
    for r in regs: a(f"v_min_u32 v{r}, s{S_SENT}, v{r}")

def check_ops(regs, t):
    ops = []
    regs = list(regs)
    if len(regs) == 2:
        ops.append(f"v_max_u32 v{t}, v{regs[0]}, v{regs[1]}"); rest = []
    else:
        ops.append(f"v_max3_u32 v{t}, v{regs[0]}, v{regs[1]}, v{regs[2]}"); rest = regs[3:]
    while rest:
        if len(rest) >= 2:
            ops.append(f"v_max3_u32 v{t}, v{t}, v{rest[0]}, v{rest[1]}"); rest = rest[2:]
        else:
            ops.append(f"v_max_u32 v{t}, v{t}, v{rest[0]}"); rest = rest[1:]
    ops.append(f"v_cmp_eq_u32 vcc, -1, v{t}")
    return ops

def txt(o): return o[1] if isinstance(o, tuple) else o
def named(name, l): return list(l[:-1]) + [(name, txt(l[-1]))]

class Rec:
    def __init__(s): s.l = []
    def __call__(s, t): s.l.append(t)

class K:
    def __init__(self):
        self.a = Asm(); self.slow = []; self.nl = 0
    def retry(self, loads, chk, mid=(), sleep=None):
        if sleep is None: sleep = OPT["rsl"]
        a = self.a
        self.nl += 1; n = self.nl
        a.emit(f"s_cbranch_vccnz L_slow{n}")
        a.label(f"L_back{n}")
        self.slow.append((n, [txt(o) for o in loads], list(chk), [txt(o) for o in mid], sleep))
        if STAMP: print("retry site", n, txt(loads[-1])[:70], file=sys.stderr)
    def emit_slow(self):
        a = self.a
        for n, loads, chk, mid, sleep in self.slow:
            a.label(f"L_slow{n}")
            a("s_nop 7"); a("s_nop 7")
            a("s_mov_b32 s33, 0")
            a("s_mov_b32 s23, m0")
            if STAMP: a(f"s_bitset1_b32 s20, {n}")
            a.label(f"L_sl{n}")
            if STAMP: a("s_add_u32 s21, s21, 1")
            if sleep: a(f"s_sleep {sleep}")
            for o in loads: a(o)
            a("s_waitcnt vmcnt(0)")
            if mid:
                for o in mid: a(o)
                a("s_waitcnt lgkmcnt(0)")
            for o in chk: a(o)
            a("s_add_u32 s33, s33, 1")
            a(f"s_cmp_ge_u32 s33, {SPIN}")
            a(f"s_cbranch_scc1 L_sx{n}")
            a(f"s_cbranch_vccnz L_sl{n}")
            a.label(f"L_sx{n}")
            a("s_mov_b32 m0, s23")
            a("s_nop 4")
            a(f"s_branch L_back{n}")

A_SW, A_SR, A_A, A_KP, A_KW, A_B, A_XW, A_XR, A_KE, A_TR = 128, 129, 130, 134, 135, 136, 137, 138, 139, 140
A_MW, A_MR, A_MS, A_FS, A_FL, A_TG, A_ML, A_YL, A_RW, A_RR, A_WM, A_C, A_L1 = 144, 145, 146, 146, 148, 149, 150, 151, 152, 153, 154, 155, 156
A_SW2 = 157
S_KP, S_YL = 30, 32
def flag_store(base, vt, va, so="s60", off=f"s{S_FO}"):
    return [f"s_add_u32 {so}, {off}, {base}", f"v_lshlrev_b32 v{va}, 26, v6", f"v_lshl_add_u32 v{va}, v5, 2, v{va}",
            f"v_mov_b32 v{vt}, s{S_TAG}", f"buffer_store_dword v{vt}, v{va}, s[4:7], {so} offen sc1"]
def flag_store2(base, so="s60"):
    return [f"s_add_u32 {so}, s{S_FO}, {base}", f"buffer_store_dword v{A_TG}, v{A_FS}, s[4:7], {so} offen sc1"]
def flag_load(base, vd, so="s62"):
    return [f"s_mov_b32 {so}, {base}", f"buffer_load_dword v{vd}, v{A_FL}, s[4:7], {so} offen sc1"]
def plain(l): return [(o[0], o[1].replace(" sc1", "")) if isinstance(o, tuple) else o.replace(" sc1", "") for o in l]
def flag_chk(vd): return [f"v_cmp_ne_u32 vcc, s{S_TAG}, v{vd}"]

VW = 240
def w1_groups():
    g = []
    for j in range(32):
        l = []
        if j % 4 == 0:
            if OPT["rot"]:
                l.append("s_add_u32 s26, s26, 4096")
                l.append("s_and_b32 s26, s26, 0x7fff")
                l.append(f"s_add_u32 m0, s{S_WM}, s26")
                l.append("s_mul_i32 s27, s26, 14")
            else:
                l.append(f"s_add_u32 m0, s{S_WM}, {j*1024}")
                l.append(f"s_mov_b32 s27, {j*14336}")
        l.append(("W1", f"buffer_load_dwordx4 v{VW + j % 4}, s[48:51], s27 offen offset:{(j % 4)*1024} lds"))
        g.append(l)
    return g

def w1_tr_setup(a, b):
    a(f"v_bfe_u32 v{b+1}, v1, 2, 3")
    a("s_lshl_b32 s63, s3, 1")
    a(f"v_xor_b32 v{b+1}, s63, v{b+1}")
    a(f"v_bfe_u32 v{b}, v1, 2, 2")
    a(f"v_lshl_add_u32 v{b}, v6, 3, v{b}")
    a(f"v_lshlrev_b32 v{b}, 8, v{b}")
    a(f"v_and_b32 v{b+2}, 3, v1")
    a(f"v_lshl_add_u32 v{b}, v{b+2}, 3, v{b}")
    a(f"v_lshl_add_u32 v{b}, v{b+1}, 5, v{b}")
    a(f"v_xor_b32 v{b+1}, 32, v{b}")
    a(f"v_add_u32 v{b+2}, 0x10000, v{b}")
    a(f"v_add_u32 v{b+3}, 0x10000, v{b+1}")
def w1_tr(half, b):
    l = []
    for s in range(8):
        for ct in range(4):
            r = ((half * 8 + s) * 4 + ct) * 4
            for h in range(2):
                l.append(("WTR", f"ds_read_b64_tr_b16 a[{r+2*h}:{r+2*h+1}], v{b+ct} offset:{s*8192 + h*1024}"))
    return l

def build():
    k = K(); a = k.a; T = a.T
    a.raw(f".globl {NAME}_kernel\n.p2align 8\n.type {NAME}_kernel,@function\n{NAME}_kernel:")
    a("s_cmp_ge_u32 s2, 256")
    a("s_cbranch_scc1 L_end")
    stamp(a, 0)
    a("s_load_dwordx16 s[16:31], s[0:1], 0")
    a("s_load_dwordx8 s[32:39], s[0:1], 64")
    a("s_load_dwordx2 s[40:41], s[0:1], 96")
    a("s_load_dwordx2 s[44:45], s[0:1], 112")
    a("s_getpc_b64 s[4:5]")
    a.label("L_pc0")
    a("s_lshl_b32 s6, s2, 3")
    a("s_and_b32 s6, s6, 0xc0")
    a("v_lshrrev_b32 v3, 2, v0")
    a("v_add_lshl_u32 v3, v3, s6, 7")
    a("v_min_u32 v3, L_codeend-L_pc0-4, v3")
    a("global_load_dword v236, v3, s[4:5]")
    a("v_lshrrev_b32 v1, 6, v0")
    a("v_readfirstlane_b32 s3, v1")
    a("v_and_b32 v1, 63, v0")
    a("v_lshlrev_b32 v2, 4, v1")
    a(f"s_and_b32 s{S_XCD}, s2, 7")
    a(f"s_lshr_b32 s{S_IDX}, s2, 3")
    if OPT.get("remap"):
        a(f"s_xor_b32 s60, s{S_IDX}, 4")
        a("s_and_b32 s61, s60, 7")
        a("s_lshr_b32 s60, s60, 3")
        a(f"s_lshl2_add_u32 s{S_IDX}, s61, s60")
    a(f"s_mov_b32 s{S_HI}, 0xffff0000")
    a(f"s_mov_b32 s{S_SENT}, 0xfffffffe")
    a(f"s_lshr_b32 s60, s{S_IDX}, 2")
    a(f"s_lshl_b32 s61, s{S_XCD}, 3")
    a("s_add_u32 s66, s60, s61")
    a(f"s_and_b32 s61, s{S_IDX}, 3")
    a("s_lshl_b32 s62, s66, 15")
    a("s_lshl_b32 s63, s61, 8")
    a("s_add_u32 s62, s62, s63")
    a("s_lshl_b32 s63, s3, 6")
    a("s_add_u32 s62, s62, s63")
    a("v_and_b32 v5, 15, v1")
    a("v_lshrrev_b32 v6, 4, v1")
    a("v_lshlrev_b32 v7, 13, v6")
    a("v_lshl_add_u32 v7, v5, 2, v7")
    a("v_add_u32 v7, s62, v7")
    a("v_subrev_u32 v3, 3072, v7")
    a("v_add_u32 v49, 4096, v7")
    a("s_lshl_b32 s63, s61, 2")
    a("s_add_u32 s63, s63, s3")
    a("s_lshl_b32 s63, s63, 4")
    a("s_lshl_b32 s73, s63, 4")
    a("v_lshlrev_b32 v8, 4, v5")
    a("s_lshl2_add_u32 s65, s66, s61")
    a(f"s_lshl_b32 s65, s65, {OPT['fs']}")
    a("s_lshl_b32 s69, s66, 8")
    a("s_add_u32 s69, s69, s63")
    a("s_lshl_b32 s69, s69, 7")
    for i in range(4): a(f"v_mov_b32 v{244+i}, -1")
    a(f"s_mul_i32 s67, s{S_XCD}, 6")
    a("s_add_u32 s67, s67, s60")
    a("s_lshl_b32 s67, s67, 2")
    a("s_add_u32 s67, s67, s61")
    a(f"s_cmp_ge_u32 s{S_IDX}, 24")
    a(f"s_cselect_b32 s74, {OOB}, 0")
    a("s_cmp_eq_u32 s3, 0")
    a(f"s_cselect_b32 s70, 0, {OOB}")
    a(f"s_lshl_b32 s{S_MO}, s67, 6")
    a(f"s_add_u32 s{S_MO}, s{S_MO}, {WS_MOD}")
    a("s_or_b32 s63, s74, s70")
    a(f"s_add_u32 s{S_MO}, s{S_MO}, s63")
    a("s_lshr_b32 s63, s67, 5")
    a("s_lshr_b32 s63, 0x12, s63")
    a("s_and_b32 s63, s63, 1")
    a("s_mul_i32 s43, s63, 0x3f800000")
    a(f"s_lshl_b32 s63, s2, {OPT['fs']}")
    a(f"s_add_u32 s{S_FO}, s63, s70")
    a("s_add_u32 s70, s65, s70")
    a(f"s_add_u32 s70, s70, {WS_F0}")
    a("v_lshrrev_b32 v9, 2, v1")
    a("v_lshlrev_b32 v9, 14, v9")
    a("v_and_b32 v40, 3, v1")
    a("v_lshl_add_u32 v9, v40, 4, v9")
    a(f"s_lshl_b32 s{S_YO}, s3, 18")
    a("s_lshl_b32 s72, s2, 6")
    a(f"s_add_u32 s{S_YO}, s{S_YO}, s72")
    a(f"s_add_u32 s{S_YO}, s{S_YO}, {WS_Y}")
    a(f"v_and_b32 v{A_L1}, 1, v1")
    a("s_waitcnt lgkmcnt(0)")
    stamp(a, 1)
    srd(a, 4, P_WS, WS_SIZE)
    if OPT["tagv"]:
        a(f"s_mov_b32 s72, {WS_EP}")
        a(f"buffer_load_dword v{A_TG}, off, s[4:7], s72 sc1")
    else:
        a(f"s_add_u32 s62, s{P_WS}, {WS_EP}")
        a(f"s_addc_u32 s63, s{P_WS+1}, 0")
        a(f"s_load_dword s{S_TAG}, s[62:63], 0")
    def first_clears():
        a("buffer_store_dwordx4 v[244:247], v2, s[4:7], s69 offen sc1")
        a("buffer_store_dwordx4 v[244:247], v2, s[4:7], s69 offen offset:1024 sc1")
        a(f"buffer_store_dwordx4 v[244:247], v9, s[4:7], s{S_YO} offen sc1")
        a("s_mov_b64 exec, 0xf")
        T["clr0"] = a(f"buffer_store_dwordx4 v[244:247], v2, s[4:7], s{S_MO} offen sc1")
        a("s_mov_b64 exec, -1")
    a("s_lshl_b32 s72, s2, 2")
    a(f"s_load_dword s{S_D}, s[{P_SD}:{P_SD+1}], s72")
    a("s_lshr_b32 s60, s3, 1")
    a("s_and_b32 s61, s3, 1")
    a("s_lshl1_add_u32 s62, s2, s60")
    a("s_lshl_b32 s62, s62, 12")
    a(f"s_load_dword s44, s[{P_SK}:{P_SK+1}], s62")
    srd(a, 8, P_K, 0x200000)
    srd(a, 12, P_V, 0x200000)
    srd(a, 52, P_SH, 4096)
    if STAMP: a("s_mov_b64 s[20:21], 0")
    a("s_mul_i32 s65, s60, 8320")
    a("s_lshl_b32 s61, s61, 8")
    kl = []
    for i in range(11):
        base, off = (3, i) if i < 3 else (7, i - 3) if i < 7 else (49, i - 7)
        kl.append(f"buffer_load_dword v{10+i}, v{base}, s[8:11], 0 offen offset:{off*1024}")
    vl = []
    for i in range(8):
        base, off = (7, i) if i < 4 else (49, i - 4)
        vl.append(f"buffer_load_dword v{21+i}, v{base}, s[12:15], 0 offen offset:{off*1024}")
    kvl = [kl[3], vl[0]] + kl[:3] + kl[4:] + vl[1:]
    if OPT["cf"] == 1: first_clears()
    for o in kvl[:2]: a(o)
    a("buffer_load_dwordx4 v[32:35], v8, s[52:55], s73 offen")
    if OPT["cf"] == 2: first_clears()
    def rest_loads():
        for o in kvl[2:]: T["kv0"] = a(o)
        if OPT["cf"] == 0: first_clears()
        srd(a, 52, P_SK, 0x200000)
        a("s_lshl1_add_u32 s62, s2, s60")
        a("s_lshl_b32 s62, s62, 12")
        a("s_lshl_b32 s63, s61, 3")
        a("s_add_u32 s62, s62, s63")
        a("s_add_u32 s63, s63, s65")
        a(f"s_add_u32 m0, s63, {L_KC + 32}")
        a("v_add_u32 v36, 2, v2")
        a("buffer_load_dwordx4 v2, s[52:55], s62 offen lds")
        a("buffer_load_dwordx4 v2, s[52:55], s62 offen offset:1024 lds")
        a(f"s_add_u32 m0, s63, {L_KC + 32 + 4160}")
        a("s_nop 0")
        a("buffer_load_dwordx4 v36, s[52:55], s62 offen lds")
        T["kern"] = a("buffer_load_dwordx4 v36, s[52:55], s62 offen offset:1024 lds")
    if OPT["rl"] == 0: rest_loads()
    a(f"s_lshl_b32 s{S_ROW}, s{S_XCD}, 5")
    a(f"s_add_u32 s{S_ROW}, s{S_ROW}, s{S_IDX}")
    if OPT["r1"] == 1:
        a(f"s_mul_i32 s72, s{S_XCD}, 28")
        a(f"s_add_u32 s72, s72, s{S_IDX}")
        a(f"s_and_b32 s{S_RB}, s72, 15")
        a(f"s_lshl_b32 s26, s{S_RB}, 12")
        a("s_lshr_b32 s66, s72, 4")
    else:
        a(f"s_and_b32 s72, s{S_XCD}, 3")
        a("s_mul_i32 s72, s72, 28")
        a(f"s_add_u32 s72, s72, s{S_IDX}")
        a(f"s_lshr_b32 s73, s{S_XCD}, 2")
        a("s_lshl_b32 s73, s73, 3")
        a(f"s_and_b32 s{S_RB}, s72, 7")
        a(f"s_lshl_b32 s26, s{S_RB}, 12")
        a(f"s_add_u32 s{S_RB}, s{S_RB}, s73")
        a("s_lshr_b32 s66, s72, 3")
    a(f"s_lshl2_add_u32 s{S_CT}, s66, s3")
    a(f"s_cmp_ge_u32 s{S_IDX}, 28")
    a(f"s_cselect_b32 s{S_SPARE}, {OOB}, 0")
    a("s_cmp_ge_u32 s3, 2")
    a(f"s_cselect_b32 s48, s{P_WU}, s{P_WG}")
    a(f"s_cselect_b32 s49, s{P_WU+1}, s{P_WG+1}")
    a(f"s_mov_b32 s50, {0 if OPT.get('x_now1') else 512*3584}")
    a("s_mov_b32 s51, 0x20000")
    a(f"s_lshl2_add_u32 s72, s{S_ROW}, s3")
    a("s_lshl_b32 s68, s72, 10")
    a("s_and_b32 s73, s3, 1")
    a(f"s_mul_i32 s73, s73, {128*3584}")
    a("s_lshl_b32 s72, s66, 8")
    a("s_add_u32 s73, s73, s72")
    a(f"s_add_u32 s73, s73, s{S_SPARE}")
    a(f"s_lshl_b32 s{S_WM}, s3, 15")
    a("v_bfe_u32 v37, v1, 1, 3")
    a("v_xor_b32 v38, v37, v6")
    a(f"v_lshl_add_u32 v38, v38, 1, v{A_L1}")
    a("v_mul_u32_u24 v39, 3584, v6")
    a("v_add_u32 v39, s73, v39")
    a(f"v_lshl_add_u32 v{VW}, v38, 4, v39")
    a(f"v_add_u32 v{VW+1}, {14336-1024}, v{VW}")
    a("v_xor_b32 v38, 8, v38")
    a(f"v_lshl_add_u32 v{VW+2}, v38, 4, v39")
    a(f"v_add_u32 v{VW+2}, {2*(14336-1024)}, v{VW+2}")
    a(f"v_add_u32 v{VW+3}, {14336-1024}, v{VW+2}")
    w1q = w1_groups()
    def w4():
        for _ in range(4):
            for o in w1q.pop(0): a(o)
    def xt_ops(nrows, row0, vt, vt2):
        r = Rec()
        r(f"v_bfe_u32 v{vt}, v1, 3, {nrows.bit_length()-1}")
        r(f"v_mul_u32_u24 v{vt}, 3584, v{vt}")
        r(f"v_and_b32 v{vt2}, 7, v1")
        if OPT["r1"] == 1:
            r(f"s_mul_i32 s73, s{S_XCD}, 28")
            r("s_add_u32 s72, s73, 27")
            r("s_lshr_b32 s72, s72, 4")
            r("s_lshr_b32 s73, s73, 4")
            r("s_sub_u32 s72, s72, s73")
            r("s_lshl1_add_u32 s72, s72, 1")
            r(f"v_min_u32 v{vt2}, s72, v{vt2}")
            r("s_lshl_b32 s73, s73, 8")
            r(f"v_add_u32 v{vt}, s73, v{vt}")
        r(f"v_lshl_add_u32 v{vt}, v{vt2}, 7, v{vt}")
        r("s_and_b32 s73, s3, 1")
        r(f"s_lshl1_add_u32 s72, s{S_IDX}, s73")
        r(f"s_mul_i32 s72, s72, {nrows*3584}")
        if OPT["r1"] != 1:
            r(f"s_and_b32 s73, s{S_XCD}, 3")
            r("s_mul_i32 s73, s73, 28")
            r("s_lshr_b32 s73, s73, 3")
            r("s_lshl_b32 s73, s73, 8")
            r("s_add_u32 s72, s72, s73")
        if row0: r(f"s_add_u32 s72, s72, {row0*3584}")
        r(f"buffer_load_dword v159, v{vt}, s[48:51], s72 offen")
        return r.l
    def xt(nrows, row0):
        for o in xt_ops(nrows, row0, 158, 147): a(o)
    def mod_blk(i):
        a(f"s_add_u32 s72, s{S_IDX}, {i}")
        a("s_and_b32 s72, s72, 3")
        a("s_lshl2_add_u32 s72, s3, s72")
        a("s_lshl_b32 s73, s72, 6")
        a(f"buffer_load_ushort v{160+i}, v{A_C}, s[12:15], s73 offen")
        a(f"s_mul_i32 s72, s72, {32*6144}")
        T["mod"] = a(f"buffer_load_dwordx4 {Q4(164+4*i)}, v{A_WM}, s[8:11], s72 offen")
    def ld_mod():
        srd(a, 8, P_WM, 0 if OPT.get("x_nomod") else 512 * 6144)
        srd(a, 12, P_C, 1024)
        a(f"v_lshrrev_b32 v{A_C}, 1, v1")
        a(f"v_mul_u32_u24 v{A_WM}, 6144, v{A_C}")
        a(f"v_lshl_add_u32 v{A_WM}, v{A_L1}, 4, v{A_WM}")
        a("s_lshl_b32 s73, s67, 5")
        a("s_add_u32 s73, s73, s74")
        a(f"v_add_u32 v{A_WM}, s73, v{A_WM}")
        a(f"v_lshlrev_b32 v{A_C}, 1, v{A_C}")
        mod_blk(0)
    def ld_mod2():
        for i in range(1, 4): mod_blk(i)
    def ld_touch():
        a("s_and_b32 s73, s3, 1")
        a("s_lshl1_add_u32 s72, s2, s73")
        a("s_mul_i32 s72, s72, 3584")
        a("v_min_u32 v237, 27, v1")
        a("v_lshlrev_b32 v237, 7, v237")
        a("buffer_load_dword v237, v237, s[48:51], s72 offen")
    def ld_touchd():
        srd(a, 52, P_WD, 1792 * 1024)
        a(f"s_lshl2_add_u32 s72, s{S_XCD}, s{S_IDX}")
        a("s_sub_u32 s72, s72, 28")
        a("s_and_b32 s72, s72, 31")
        a("s_lshl2_add_u32 s72, s72, s3")
        a("s_mul_i32 s72, s72, 14336")
        a(f"s_xor_b32 s73, s{S_SPARE}, {OOB}")
        a("s_add_u32 s72, s72, s73")
        a("v_lshlrev_b32 v158, 7, v1")
        a("buffer_load_dword v159, v158, s[52:55], s72 offen")
        a("s_add_u32 s72, s72, 6144")
        a("buffer_load_dword v159, v158, s[52:55], s72 offen")
    def ld_q():
        srd(a, 52, P_Q, 0 if OPT.get("x_noq") else 0x200000)
        a("s_add_u32 s73, s68, 0x100000")
        a("buffer_load_dwordx4 v[180:183], v2, s[52:55], s68 offen")
        T["q"] = a("buffer_load_dwordx4 v[184:187], v2, s[52:55], s73 offen")
    def clr_ops(which):
        l = []
        if OPT.get("x_noc"): return [f"s_mov_b32 s72, {OOB}", ("CLR", "buffer_store_dwordx4 v[244:247], v9, s[4:7], s72 offen sc1")]
        if "a" in which: l += [("CLR", f"buffer_store_dwordx4 v[244:247], v9, s[4:7], s{S_YO} offen sc1")]
        if "b" in which: l += [f"s_add_u32 s72, s{S_YO}, {64*16384}", ("CLR", "buffer_store_dwordx4 v[244:247], v9, s[4:7], s72 offen sc1")]
        if "h" in which: l += [f"s_add_u32 s72, s68, {WS_H2}", ("CLR", "buffer_store_dwordx4 v[244:247], v2, s[4:7], s72 offen sc1")]
        if "i" in which: l += [f"s_add_u32 s72, s68, {WS_H2 + 0x100000}", ("CLR", "buffer_store_dwordx4 v[244:247], v2, s[4:7], s72 offen sc1")]
        return l
    def clr():
        for o in clr_ops("bhi"): a(o)
    LD = dict(w=w4, x=lambda: xt(8, 0), y=lambda: xt(4, 0), z=lambda: xt(4, 256), m=ld_mod, n=ld_mod2, q=ld_q, t=ld_touch, d=ld_touchd, c=clr)
    PRE, MID, POST, AFT, LATE = OPT["ord"].split("/")
    assert sorted(set(PRE + MID + POST + AFT + LATE + OPT["cord"]) - set("tdDwxyzWV-")) == sorted("mnqc")
    if OPT["rl"] == 1: rest_loads()
    if OPT["rl"] <= 1:
        for c in PRE: LD[c]()
    a("v_lshrrev_b32 v4, 3, v1")
    a("v_and_b32 v41, 7, v1")
    a("s_mul_i32 s72, s60, 4608")
    a("s_lshl_b32 s73, s61, 3")
    a("s_add_u32 s72, s72, s73")
    a(f"s_add_u32 s72, s72, {L_UU}")
    a(f"v_sub_u32 v{A_SW}, 3, v6")
    a(f"v_xor_b32 v{A_SW}, v{A_SW}, v41")
    a("v_lshlrev_b32 v38, 7, v5")
    a(f"v_lshl_add_u32 v{A_SW}, v{A_SW}, 4, v38")
    a(f"v_add_u32 v{A_SW}, s72, v{A_SW}")
    a(f"v_xor_b32 v{A_SW2}, 64, v{A_SW}")
    a(f"v_xor_b32 v{A_SR}, v1, v4")
    a(f"v_lshlrev_b32 v{A_SR}, 4, v{A_SR}")
    a(f"v_add_u32 v{A_SR}, s72, v{A_SR}")
    a(f"v_xor_b32 v{A_A}, 1, v{A_L1}")
    a(f"v_mul_u32_u24 v{A_A}, 4156, v{A_A}")
    a(f"v_lshl_add_u32 v{A_A}, v37, 2, v{A_A}")
    a(f"v_lshl_add_u32 v{A_A}, v6, 4, v{A_A}")
    a("s_add_u32 s72, s65, s61")
    a(f"s_add_u32 s72, s72, {L_KC + 4}")
    a(f"v_add_u32 v{A_A}, s72, v{A_A}")
    for i in range(1, 4): a(f"v_add_u32 v{A_A+i}, {1024*i}, v{A_A}")
    a(f"v_lshlrev_b32 v{A_KP}, 15, v4")
    a(f"v_lshl_add_u32 v{A_KP}, v41, 4, v{A_KP}")
    a(f"s_lshl_b32 s{S_KP}, s3, 19")
    a("s_lshl_b32 s72, s2, 7")
    a(f"s_add_u32 s{S_KP}, s{S_KP}, s72")
    a(f"s_add_u32 s{S_KP+1}, s{S_KP}, {8*32768}")
    a(f"v_bfe_u32 v{A_KW}, v1, 2, 1")
    a(f"v_mul_u32_u24 v{A_KW}, 4608, v{A_KW}")
    a(f"v_lshl_add_u32 v{A_KW}, v40, 4, v{A_KW}")
    a("v_lshlrev_b32 v38, 6, v4")
    a(f"v_sub_u32 v{A_KW}, v{A_KW}, v38")
    a("s_lshl_b32 s72, s3, 10")
    a(f"s_sub_u32 s73, {L_UU + 55*64}, s72")
    a(f"v_add_u32 v{A_KW}, s73, v{A_KW}")
    a(f"v_add_u32 v{A_RR}, s72, v2")
    a(f"s_add_u32 s72, s72, {L_EX}")
    a(f"v_xor_b32 v{A_XR}, v1, v4")
    a(f"v_lshlrev_b32 v{A_XR}, 4, v{A_XR}")
    a(f"v_add_u32 v{A_XR}, s72, v{A_XR}")
    a(f"v_lshlrev_b32 v{A_B}, 5, v5")
    a("v_lshlrev_b32 v38, 4, v6")
    a(f"v_sub_u32 v{A_B}, v38, v{A_B}")
    a("s_mul_i32 s72, s60, 4608")
    a("s_add_u32 s72, s72, s61")
    a(f"s_add_u32 s72, s72, {L_UU + 480}")
    a(f"v_add_u32 v{A_B}, s72, v{A_B}")
    a(f"v_lshl_add_u32 v{A_XW}, v5, 2, v6")
    a(f"v_lshrrev_b32 v38, 3, v{A_XW}")
    a(f"v_xor_b32 v{A_XW}, v{A_XW}, v38")
    a(f"v_lshlrev_b32 v{A_XW}, 4, v{A_XW}")
    a("s_lshl_b32 s72, s3, 12")
    a(f"s_add_u32 s72, s72, {L_EX}")
    a(f"v_add_u32 v{A_XW}, s72, v{A_XW}")
    a("s_lshl_b32 s72, s3, 9")
    a(f"s_sub_u32 s72, {L_UU + 4088 - 2048}, s72")
    a(f"v_lshlrev_b32 v{A_KE}, 3, v1")
    a(f"v_sub_u32 v{A_KE}, s72, v{A_KE}")
    if OPT["rl"] == 2:
        rest_loads()
        for c in PRE: LD[c]()
    w1_tr_setup(a, A_TR)
    a(f"v_lshlrev_b32 v{A_MW}, 3, v6")
    a(f"v_lshl_add_u32 v{A_MW}, v{A_L1}, 5, v{A_MW}")
    a("s_lshl_b32 s72, s3, 6")
    a(f"s_add_u32 s72, s72, {L_MP}")
    a(f"v_add_u32 v{A_MW}, s72, v{A_MW}")
    a(f"v_lshlrev_b32 v{A_MS}, 2, v5")
    a(f"v_lshlrev_b32 v{A_MR}, 3, v41")
    a(f"v_add_u32 v{A_MR}, {L_MP}, v{A_MR}")
    a("v_min_u32 v38, 1, v6")
    a(f"v_lshl_add_u32 v{A_MS}, v38, 26, v{A_MS}")
    a(f"v_lshlrev_b32 v{A_FL}, {OPT['fs']}, v0")
    a(f"v_lshrrev_b32 v{A_ML}, 1, v1")
    a(f"v_lshlrev_b32 v{A_ML}, 6, v{A_ML}")
    a(f"v_lshl_add_u32 v{A_ML}, v{A_L1}, 4, v{A_ML}")
    a(f"v_lshlrev_b32 v{A_YL}, 6, v0")
    a(f"v_lshlrev_b32 v{A_RW}, 2, v0")
    a(f"s_lshr_b32 s{S_YL}, s{S_ROW}, 2")
    a(f"s_lshl_b32 s{S_YL}, s{S_YL}, 14")
    a(f"s_and_b32 s72, s{S_ROW}, 3")
    a("s_lshl_b32 s72, s72, 4")
    a(f"s_add_u32 s{S_YL}, s{S_YL}, s72")
    a(f"s_add_u32 s{S_YL}, s{S_YL}, {WS_Y}")
    for i in range(4): a(f"v_mov_b32 v{44+i}, 0")
    a("v_lshrrev_b32 v38, 5, v1")
    a("v_and_b32 v39, 31, v1")
    a("v_mul_u32_u24 v38, 4608, v38")
    a("v_lshl_add_u32 v38, v39, 4, v38")
    a(f"v_add_u32 v38, {L_UU + 4096}, v38")
    a("ds_write_b128 v38, v[44:47]")
    a("v_bfe_u32 v38, v1, 1, 1")
    a("v_mul_u32_u24 v38, 4160, v38")
    a(f"v_lshl_add_u32 v38, v{A_L1}, 4, v38")
    a(f"s_add_u32 s72, s65, {L_KC}")
    a("v_add_u32 v38, s72, v38")
    if OPT["rl"] == 3:
        rest_loads()
        for c in PRE: LD[c]()
    stamp(a, 2)
    a.wait(T["clr0"])
    if OPT["tagv"]: a(f"v_readfirstlane_b32 s{S_TAG}, v{A_TG}")
    else: a("s_waitcnt lgkmcnt(0)")
    a(f"s_mul_i32 s{S_TAG}, s{S_TAG}, 0x9e3779b1")
    a(f"s_add_u32 s{S_TAG}, s{S_TAG}, 0x7f4a7c15")
    a(f"v_mov_b32 v{A_TG}, s{S_TAG}")
    a("s_barrier")
    stamp(a, 3)
    a(f"buffer_store_dword v{A_TG}, v{A_FS}, s[4:7], s70 offen sc1")
    for c in MID: LD[c]()
    a.wait(T["kv0"])
    stamp(a, "kd")
    ld_f0 = flag_load(WS_F0, 239)
    if OPT["f0at"] == -2:
        for o in ld_f0: tf = a(o)
    for i in range(11):
        a(f"v_lshlrev_b32 v{50+2*i}, 16, v{10+i}")
        a(f"v_and_b32 v{51+2*i}, s{S_HI}, v{10+i}")
    for j in range(4):
        for c in range(2):
            src = 32 + 2 * c + (j >> 1)
            if j & 1: a(f"v_and_b32 v{88+2*j+c}, s{S_HI}, v{src}")
            else: a(f"v_lshlrev_b32 v{88+2*j+c}, 16, v{src}")
    for j in (3, 2, 1, 0):
        for i in range(8):
            if j == 3: a(f"v_pk_mul_f32 {P2(96+2*i)}, {P2(50+2*(i+3-j))}, {P2(88+2*j)}")
            else: a(f"v_pk_fma_f32 {P2(96+2*i)}, {P2(50+2*(i+3-j))}, {P2(88+2*j)}, {P2(96+2*i)}")
    for i in range(8):
        a(f"v_lshlrev_b32 v{72+2*i}, 16, v{21+i}")
        a(f"v_and_b32 v{73+2*i}, s{S_HI}, v{21+i}")
    for i in range(8):
        a(f"v_pk_mul_f32 {P2(96+2*i)}, {P2(96+2*i)}, {P2(72+2*i)}")
    for c in range(2):
        for d in range(4):
            a(f"v_cvt_pk_bf16_f32 v{112+4*c+d}, v{96+2*(7-2*d)+c}, v{96+2*(6-2*d)+c}")
        san(a, range(112 + 4 * c, 116 + 4 * c))
        a(f"ds_write_b128 v{A_SW2 if c else A_SW}, {Q4(112+4*c)}")
    r0 = a(f"ds_read_b128 v[112:115], v{A_SR}")
    r1 = a(f"ds_read_b128 v[116:119], v{A_SR} offset:1024")
    a.wait(r0)
    a("buffer_store_dwordx4 v[112:115], v2, s[4:7], s69 offen sc1")
    a.wait(r1)
    a("buffer_store_dwordx4 v[116:119], v2, s[4:7], s69 offen offset:1024 sc1")
    stamp(a, 4)
    if OPT["f0at"] == -1:
        for o in ld_f0: tf = a(o)
    for c in POST: LD[c]()
    a("v_cmp_eq_u32 vcc, 3, v40")
    a.wait(T["kern"])
    if OPT["dv"]:
        a("v_lshlrev_b32 v31, 16, v31")
        a(f"v_readfirstlane_b32 s{S_D}, v30")
    else:
        a("s_lshl_b32 s44, s44, 16")
        a("v_mov_b32 v31, s44")
    a("v_cndmask_b32 v47, v47, v31, vcc")
    a("s_mov_b64 exec, 0xf")
    a("ds_write_b128 v38, v[44:47]")
    a("s_mov_b64 exec, -1")
    a(f"s_lshl_b32 s44, s{S_D}, 16")
    a(f"s_and_b32 s45, s{S_D}, s{S_HI}")
    a("s_barrier")
    stamp(a, "k0")
    A = lambda rr, q: 128 + (rr * 8 + q) * 4
    n0 = OPT["n0"]
    for rr in range(4):
        for q in range(8):
            if rr * 8 + q == OPT["f0at"]:
                for o in ld_f0: tf = a(o)
            if rr * 8 + q == OPT["aftat"]:
                for c in AFT: LD[c]()
            o = (64 * rr + 512 * (q & 1)) // 4
            a(f"ds_read2_b32 a[{A(rr,q)}:{A(rr,q)+1}], v{A_A + (q >> 1)} offset0:{o} offset1:{o+1}")
            a(f"ds_read2_b32 a[{A(rr,q)+2}:{A(rr,q)+3}], v{A_A + (q >> 1)} offset0:{o+2} offset1:{o+3}")
            if (q & 1) and n0 > 0:
                for o in w1q.pop(0): a(o)
                n0 -= 1
    stamp(a, "af")
    ld_kv = [f"buffer_load_dwordx4 v[16:19], v{A_KP}, s[4:7], s{S_KP} offen sc1", f"buffer_load_dwordx4 v[20:23], v{A_KP}, s[4:7], s{S_KP+1} offen sc1"]
    def poll():
        stamp(a, 5)
        a.wait(tf)
        for o in flag_chk(239): a(o)
        k.retry(ld_f0, flag_chk(239))
        for o in ld_kv: T["KV"] = a(o)
        stamp(a, 6)
        for c in LATE: LD[c]()
        for _ in range(OPT["n1"]):
            for o in w1q.pop(0): a(o)
        if OPT["bg1"]: a.bg = w1q; a.bg_every = OPT["bg1"]
    PR = (212, 248)
    def ln1():
        a.wait(T["q"])
        a("s_mov_b32 s67, 0x3f803f80")
        for i in range(4): a(f"v_mov_b32 v{188+i}, 0")
        for i in range(4):
            for h in range(2):
                a(f"v_dot2c_f32_bf16 v{188+2*h}, s67, v{180+4*h+i}")
                a(f"v_dot2c_f32_bf16 v{189+2*h}, v{180+4*h+i}, v{180+4*h+i}")
        for h in range(2):
            for i in range(4):
                a(f"v_lshlrev_b32 v{220+8*h+2*i}, 16, v{180+4*h+i}")
                a(f"v_and_b32 v{221+8*h+2*i}, s{S_HI}, v{180+4*h+i}")
        for dpp in WAVE_RED:
            for i in range(4): a(f"v_add_f32_dpp v{188+i}, v{188+i}, v{188+i} {dpp} bank_mask:0xf")
        ln_finish(a, [(188, 189, 192), (190, 191, 193)])
        for h in range(2):
            a(f"v_readlane_b32 s{36+2*h}, v{189+2*h}, 63")
            a(f"v_readlane_b32 s{37+2*h}, v{188+2*h}, 63")
        for h in range(2): a(f"v_mov_b32 v{192+2*h}, s{37+2*h}")
        for h in range(2):
            for i in range(0, 8, 2): a(f"v_pk_fma_f32 {P2(PR[h]+i)}, {P2(220+8*h+i)}, s[{36+2*h}:{37+2*h}], {P2(192+2*h)} op_sel_hi:[1,0,0]")
    if OPT["ln1at"] == 0: ln1()
    if OPT["pollat"] == -1: poll()

    def modblock():
        a.wait(T["mod"])
        stamp(a, "m0")
        E, SV, UP, AC = 236, 212, 220, 228
        for i in range(4):
            a(f"v_lshlrev_b32 v{160+i}, 16, v{160+i}")
            a(f"v_mul_f32 v{E+i}, 0xbfb8aa3b, v{160+i}")
        for i in range(4): a(f"v_exp_f32 v{E+i}, v{E+i}")
        for i in range(4): a(f"v_add_f32 v{E+i}, 1.0, v{E+i}")
        for i in range(4): a(f"v_rcp_f32 v{E+i}, v{E+i}")
        for i in range(4): a(f"v_mul_f32 v{160+i}, v{160+i}, v{E+i}")
        for i in range(4): a(f"v_cvt_pk_bf16_f32 v{E+i}, v{160+i}, v{160+i}")
        for i in range(4): a(f"v_lshlrev_b32 v{SV+2*i}, 16, v{E+i}")
        for i in range(4):
            for d in range(4):
                a(f"v_lshlrev_b32 v{UP+2*d}, 16, v{164+4*i+d}")
                a(f"v_and_b32 v{UP+1+2*d}, s{S_HI}, v{164+4*i+d}")
            for d in range(4):
                if i == 0: a(f"v_pk_mul_f32 {P2(AC+2*d)}, {P2(UP+2*d)}, {P2(SV+2*i)} op_sel_hi:[1,0]")
                else: a(f"v_pk_fma_f32 {P2(AC+2*d)}, {P2(UP+2*d)}, {P2(SV+2*i)}, {P2(AC+2*d)} op_sel_hi:[1,0,1]")
        for p in range(4): a(f"v_permlane32_swap_b32 v{AC+p}, v{AC+4+p}")
        for p in range(4): a(f"v_add_f32 v{AC+p}, v{AC+p}, v{AC+4+p}")
        for p in range(2): a(f"v_permlane16_swap_b32 v{AC+p}, v{AC+2+p}")
        for p in range(2): a(f"v_add_f32 v{AC+p}, v{AC+p}, v{AC+2+p}")
        for rr in (8, 4, 2):
            for p in range(2):
                a(f"v_add_f32_dpp v{AC+p}, v{AC+p}, v{AC+p} row_ror:{rr} row_mask:0xf bank_mask:0xf")
        T["MW"] = a(f"ds_write_b64 v{A_MW}, {P2(AC)}")
        stamp(a, "m1")
    if OPT["modat"] < 0: modblock()
    if OPT["ln1at"] == 2: ln1()
    a.bg = []
    print("W1a left at conv start", len(w1q), file=sys.stderr)
    stamp(a, "tr")
    a.wait(T["KV"])
    stamp(a, "kv")
    ck = check_ops(range(16, 24), 29)
    for o in ck: a(o)
    k.retry(ld_kv, ck)
    a(f"ds_write_b128 v{A_KW}, v[16:19] offset:512")
    a(f"ds_write_b128 v{A_KW}, v[20:23]")
    a("s_waitcnt lgkmcnt(0)")
    a("s_barrier")
    stamp(a, 7)
    B = lambda rr, d: 64 + (rr & 1) * 32 + d * 4
    tb = {}
    def loadB(key, rr, d):
        tb[key, rr, d] = a.emit(f"ds_read_b128 {Q4(B(rr,d))}, v{A_B} offset:{3584 - 512*d + 64*rr}")
    for d in range(4): loadB(0, 0, d)
    G = Gaps(a, 4)
    G.pace[1] = OPT["p1"]
    if OPT["dbl"]: G.dbl = [0, 3]; G.vpri = [0]
    KD = (24, 168)
    def kd_ops(h):
        ops = []
        for c in range(2):
            for i in range(4):
                e = 3 - i
                kr = 10 + 4 * h + 2 * c + (e >> 1)
                ops.append(f"v_and_b32 v{KD[h]+4*c+i}, s{S_HI}, v{kr}" if e & 1 else f"v_lshlrev_b32 v{KD[h]+4*c+i}, 16, v{kr}")
        return ops
    rec = Rec()
    rec(f"ds_read2_b64 v[192:195], v{A_MR} offset0:0 offset1:8")
    rec(("MP", f"ds_read2_b64 v[196:199], v{A_MR} offset0:16 offset1:24"))
    rec(Delay(4))
    rec(lambda: a.wait(T["MP"]))
    for c in range(2): rec(f"v_add_f32 v{192+c}, v{192+c}, v{194+c}")
    for c in range(2): rec(f"v_add_f32 v{196+c}, v{196+c}, v{198+c}")
    for c in range(2): rec(f"v_add_f32 v{192+c}, v{192+c}, v{196+c}")
    rec("v_cvt_pk_bf16_f32 v20, v192, v193")
    rec("v_lshlrev_b32 v192, 16, v20")
    rec(f"v_and_b32 v193, s{S_HI}, v20")
    for c in range(2): rec(f"v_add_f32 v{192+c}, s43, v{192+c}")
    rec("v_cvt_pk_bf16_f32 v20, v192, v193")
    rec(f"v_min_u32 v20, s{S_SENT}, v20")
    rec(f"buffer_store_dword v20, v{A_MS}, s[4:7], s{S_MO} offen sc1")
    rec(lambda: stamp(a, "m2"))
    modfin = rec.l + kd_ops(1)
    rec = Rec()
    for h in range(2):
        for c in range(2):
            rec(("KVE", f"ds_read_b64 {P2(10+4*h+2*c)}, v{A_KE} offset:{c*4608 + (1-h)*2048}"))
    rec(f"s_min_u32 s60, s{S_FO}, 1")
    rec("s_lshl_b32 s60, s60, 30")
    rec(f"s_add_u32 s60, s60, {WS_EP}")
    rec(f"buffer_store_dword v{A_TG}, v{A_FS}, s[4:7], s60 offen sc1")
    rec(lambda: a.wait(T["KVE"]))
    for o in kd_ops(0): rec(o)
    assert OPT["modat"] < 0 and OPT["ln1at"] in (2, 3, 4) and (OPT["ln1at"] >= 3 or "q" not in OPT["cord"])
    rec.l = modfin[:-8] + rec.l + modfin[-8:]
    G.add(0, rec.l)
    class Cap:
        pass
    def cap(f):
        r = []
        save = a.item
        def fake(o):
            r.append(o); return None
        a.item = fake
        f()
        a.item = save
        return r
    st1 = []
    strict = []
    for c in OPT["cord"]:
        if c == "W": st1 += sum(w1q, []) + [lambda: T.__setitem__("W1done", 1)]; w1q.clear()
        elif c == "V":
            strict += sum(w1q, []); w1q.clear()
            st1 += [Delay(0, lambda: not strict or "Bgo" in T), lambda: T.__setitem__("W1done", 1)]
        elif c == "w":
            for _ in range(4): st1 += w1q.pop(0)
        elif c == "c": st1 += clr_ops("bhi")
        elif c == "n": st1 += named("mod", cap(ld_mod2))
        elif c == "q": st1 += named("q", cap(ld_q))
        elif c == "z": st1 += xt_ops(4, 256, 18, 19)
        elif c == "d": st1 += cap(ld_touchd)
        elif c == "D":
            r = Rec()
            srd(r, 52, P_WD, 1792 * 1024)
            r("s_lshl2_add_u32 s72, s2, s3")
            r("s_mul_i32 s72, s72, 1792")
            r("v_min_u32 v158, 13, v1")
            r("v_lshlrev_b32 v158, 7, v158")
            r("buffer_load_dword v159, v158, s[52:55], s72 offen")
            st1 += r.l
        elif c == "-": st1 += [Delay(8)]
    G.add(1, st1)
    ACC = lambda nt: 32 + nt * 4
    ml = []
    for key in range(2):
        nd = 4 if key == 0 else 8
        lo = 4 * key
        for rr in range(4):
            if rr < 3: ml += [(key, rr, d, nt) for d in range(nd) for nt in range(max(lo, d), lo + 4)]
            else: ml += [(key, rr, d, nt) for nt in range(lo, lo + 4) for d in range(nt + 1)]
    pend = []
    seen = set()
    waited = set([(0, 0, 0)])
    hooks = {}
    lastv = [-99]
    def run_m(i):
        key, rr, d, nt = ml[i]
        for f in hooks.get(i, []): f()
        if (key, rr, d) not in seen:
            seen.add((key, rr, d))
            if key == 0: pend.extend([(0, rr + 1, d)] if rr < 3 else [(1, 0, d), (1, 0, d + 4)])
            elif rr < 3: pend.append((1, rr + 1, d))
        c = "0" if (rr == 0 and d == 0) else Q4(ACC(nt))
        a.emit(f"v_mfma_f32_16x16x32_bf16 {Q4(ACC(nt))}, {Q4(A(rr,nt-d),'a')}, {Q4(B(rr,d))}, {c}")
        fs = None
        if i + 1 < len(ml):
            nk = ml[i + 1][:3]
            if nk not in waited:
                waited.add(nk)
                while nk not in tb: loadB(*pend.pop(0))
                fs = lambda: a.wait(tb[nk])
        fm = (lambda: loadB(*pend.pop(0))) if pend else None
        if OPT["xpri"] and 30 <= i < 80 and "ZAdone" not in T and G.st[0] and cls_of(G.st[0][0]) == "M" and len(pend) < 4: fm = None
        xm = None
        if strict and i >= OPT["v0"]:
            if txt(strict[0]).startswith("s_"):
                if fs is None: fs = lambda: a.item(strict.pop(0))
                elif (i - OPT["v0"]) % OPT["vp"] == OPT["vp"] - 1:
                    f0 = fs
                    fs = lambda: (f0(), [a.item(strict.pop(0)) for _ in range(2) if txt(strict[0]).startswith("s_")])
            elif i - lastv[0] >= OPT["vp"]:
                lastv[0] = i
                xm = lambda: a.item(strict.pop(0))
        G.gap(fs, fm, xm)
    xw = lambda nt: ("XW", f"ds_write_b128 v{A_XW}, {Q4(ACC(nt))} offset:{(nt & 3)*1024}")
    last = {nt: max(i for i, m in enumerate(ml) if m[3] == nt) for nt in range(8)}
    def yfinal(h, pk):
        ops = []
        for c in range(2):
            y = 192 + c * 8; kd = KD[h] + 4 * c
            if pk:
                for i in (0, 2): ops.append(f"v_pk_add_f32 {P2(y+i)}, {P2(y+i)}, {P2(y+4+i)}")
                for i in (0, 2): ops.append(f"v_pk_fma_f32 {P2(y+i)}, {P2(kd+i)}, s[44:45], {P2(y+i)} op_sel:[0,{c},0] op_sel_hi:[1,{c},1]")
            else:
                for i in range(4): ops.append(f"v_add_f32 v{y+i}, v{y+i}, v{y+4+i}")
                for i in range(4): ops.append(f"v_fmac_f32 v{y+i}, s{44+c}, v{kd+i}")
        if h: ops.append(f"s_add_u32 s{S_YO}, s{S_YO}, {64*16384}")
        for i in range(4): ops.append(f"v_cvt_pk_bf16_f32 v{208+i}, v{192+i}, v{200+i}")
        for i in range(4): ops.append(f"v_min_u32 v{208+i}, s{S_SENT}, v{208+i}")
        ops.append(f"buffer_store_dwordx4 v[208:211], v9, s[4:7], s{S_YO} offen sc1")
        return ops
    yreads = [("Y", f"ds_read_b128 {Q4(192 + 4*w)}, v{A_XR} offset:{w*4096}") for w in range(4)]
    MR = dict(sa=(0, 176), ca=(1, 160), ga=(2, 164), sb=(3, 24), cb=(4, 28))
    ld_m = []
    for nm, (vec, r) in MR.items():
        if vec % 2 == 0: ld_m.append(f"s_mov_b32 s62, {WS_MOD + vec*2048}")
        ld_m.append(f"buffer_load_dwordx4 {Q4(r)}, v{A_ML}, s[4:7], s62 offen offset:{(vec % 2)*2048} sc1")
    mregs = sum((list(range(r, r + 4)) for _, r in MR.values()), [])
    def ld_y(h, sr=62):
        return [f"s_add_u32 s{sr}, s{S_YL}, {h*64*16384}", f"buffer_load_dwordx4 v[20:23], v{A_YL}, s[4:7], s{sr} offen sc1"]
    cky = check_ops(range(20, 24), 18)
    rec = Rec()
    rec(Delay(4))
    rec(lambda: a.wait(T["XW"], T["CLR"]) if OPT["f1at"] == 3 else a.wait(T["XW"]))
    rec(lambda: stamp(a, "xb0"))
    rec("s_barrier")
    rec(lambda: stamp(a, "xb1"))
    for o in yreads: rec(o)
    if OPT["f1at"] == 3:
        for o in flag_store2(WS_F1): rec(o)
    rec(Delay(3))
    rec(lambda: a.wait(T["Y"]))
    for o in yfinal(0, False): rec(o)
    rec(lambda: stamp(a, "za"))
    if OPT["xb"]: rec("s_barrier")
    rec(lambda: T.__setitem__("ZAdone", 1))
    xa_rest = rec.l
    def hook(i, f): hooks.setdefault(i, []).append(f)
    for nt in range(4): hook(last[nt] + 3, lambda nt=nt: G.st[0].insert(0, xw(nt)) if nt < 3 else G.add(0, [xw(nt)] + xa_rest))
    b4ops = [lambda: a.wait(T["W1"], T["CLR"]) if OPT["f1at"] == 4 else a.wait(T["W1"]), lambda: stamp(a, "zb"), "s_barrier", lambda: T.__setitem__("B4done", 1)] + \
            (flag_store2(WS_F1, "s63") if OPT["f1at"] == 4 else []) + w1_tr(0, A_TR)
    w1b = w1_groups()
    def startb():
        T["Bgo"] = 1
        for _ in range(OPT["wbin"]): strict.extend(w1b.pop(0))
    if OPT["wbin"]:
        b4ops += [f"v_add_u32 v{VW+j}, {256*3584}, v{VW+j}" for j in range(4)] + [Delay(3), lambda: a.wait(T["WTR"]), "s_barrier", startb]
    b4 = [None]
    xdone = set()
    i3 = min(i for i, m in enumerate(ml) if m[:2] == (1, 3))
    if OPT["mat"] >= 0: hook(i3 + OPT["mat"], lambda: G.add(0, named("M", ld_m if OPT["msc"] else plain(ld_m))))
    ld_f1 = flag_load(WS_F1, 236)
    def yhook():
        assert not G.st[2], "mod final still pending"
        G.add(0, named("YL", ld_y(0)))
    hook(i3 + OPT["yat"], yhook)
    a.wait(tb[0, 0, 0])
    for i in range(len(ml)):
        if i == 40: stamp(a, 8)
        stamp(a, f"i{i}")
        if i == OPT["modat"]:
            while T.get("mod") is None: a.item(G.st[1].pop(0))
            modblock()
            G.add(2, [Delay(2), lambda: a.wait(T["MW"]), "s_barrier"] + modfin)
        if b4[0] is None and "W1done" in T and ("ZAdone" in T or OPT["b4free"]): b4[0] = i + OPT["b4lag"]
        if i == b4[0]: G.add(3, b4ops); print("b4 at mfma", i, file=sys.stderr)
        for nt in range(4, 7):
            if ("ZAdone" if OPT["xb"] else "B4done") in T and nt not in xdone and i >= last[nt] + 3:
                xdone.add(nt); G.st[0].insert(0, xw(nt))
        run_m(i)
    print("conv leftovers", [len(x) for x in G.st], file=sys.stderr)
    stamp(a, "cm")
    if strict: print("strict left", len(strict), file=sys.stderr)
    if "Bgo" not in T:
        while strict: a(strict.pop(0))
    G.drain([0, 1, 2])
    if OPT["ln1at"] == 4:
        if "ZAdone" in T and OPT["xb"]:
            for nt in range(4, 8):
                if nt not in xdone: xdone.add(nt); a(xw(nt))
        ln1()
    if b4[0] is None or b4[0] >= len(ml): G.add(3, b4ops)
    while "B4done" not in T: a(G.st[3].pop(0))
    stamp(a, "c1")
    for nt in range(4, 8):
        if nt not in xdone: a(xw(nt))
    G.drain([3])
    if OPT["wbin"]:
        grp = []; back = []
        for o in strict:
            grp.append(o)
            if not txt(o).startswith("s_"): back.append(grp); grp = []
        strict.clear()
        w1b[:0] = back
        print("W1b left after conv", len(w1b), file=sys.stderr)
        a.bg = w1b; a.bg_every = OPT["wbp"]
    a(f"v_add_u32 v18, {L_RSA}, v{A_RW}")
    a(f"v_add_u32 v19, {L_RSA}, v{A_RR}")
    if not OPT["wbin"]:
        for j in range(4): a(f"v_add_u32 v{VW+j}, {256*3584}, v{VW+j}")
    if OPT["mat"] < 0:
        for o in named("M", ld_m if OPT["msc"] else plain(ld_m)): a(o)
    if OPT["wbe"]:
        a.wait(T["WTR"])
        a("s_barrier")
        a.bg = w1b; a.bg_every = OPT["wbp"]; a.flush_bg(OPT["wbe"])
    if OPT["ln1at"] == 3: ln1()
    stamp(a, "c2")
    ckm = check_ops(mregs, 96)
    cky = check_ops(range(20, 24), 96)
    a.wait(T["M"])
    for o in ckm: a(o)
    k.retry(ld_m, ckm)
    for nm, dst in (("sa", 64), ("ca", 72), ("ga", 104), ("cb", 80), ("sb", 88)):
        for i in range(4):
            a(f"v_lshlrev_b32 v{dst+2*i}, 16, v{MR[nm][1]+i}")
            a(f"v_and_b32 v{dst+1+2*i}, s{S_HI}, v{MR[nm][1]+i}")
    for i in range(0, 8, 2): a(f"v_pk_mul_f32 {P2(64+i)}, {P2(64+i)}, {P2(104+i)}")
    for i in range(0, 8, 2): a(f"v_pk_mul_f32 {P2(72+i)}, {P2(72+i)}, {P2(104+i)}")
    a.wait(T["YL"])
    stamp(a, "y0")
    for o in cky: a(o)
    k.retry(ld_y(0), cky)
    a("ds_write2st64_b32 v18, v20, v21 offset0:0 offset1:4")
    a("ds_write2st64_b32 v18, v22, v23 offset0:8 offset1:12")
    for h in range(2):
        for i in range(0, 8, 2): a(f"v_pk_fma_f32 {P2(PR[h]+i)}, {P2(PR[h]+i)}, {P2(72+i)}, {P2(64+i)}")
    a("s_waitcnt lgkmcnt(0)")
    a("s_barrier")
    stamp(a, "c3")
    XR = (176, 188)
    def row_ops(h, b, pk):
        r = Rec()
        x, hh_, st = b + 4, b + 12, b + 16
        r(f"v_mov_b32 v{st}, 0")
        r(f"v_mov_b32 v{st+1}, 0")
        for i in range(4):
            r(f"v_lshlrev_b32 v{x+2*i}, 16, v{b+i}")
            r(f"v_and_b32 v{x+1+2*i}, s{S_HI}, v{b+i}")
        if pk:
            for i in range(4): r(f"v_pk_fma_f32 {P2(x+2*i)}, {P2(x+2*i)}, {P2(PR[h]+2*i)}, {P2(220+8*h+2*i)}")
        else:
            for i in range(8): r(f"v_fma_f32 v{x+i}, v{x+i}, v{PR[h]+i}, v{220+8*h+i}")
        for i in range(4): r(f"v_cvt_pk_bf16_f32 v{XR[h]+i}, v{x+2*i}, v{x+1+2*i}")
        for i in range(4):
            r(f"v_dot2c_f32_bf16 v{st}, s67, v{XR[h]+i}")
            r(f"v_dot2c_f32_bf16 v{st+1}, v{XR[h]+i}, v{XR[h]+i}")
        r(f"s_add_u32 s66, s68, {WS_H2 + h*0x100000}")
        for dpp in WAVE_RED:
            for i in range(2): r(f"v_add_f32_dpp v{st+i}, v{st+i}, v{st+i} {dpp} bank_mask:0xf")
        ln_finish(r, [(st, st + 1, st + 2)])
        r(f"v_readlane_b32 s72, v{st+1}, 63")
        r(f"v_readlane_b32 s73, v{st}, 63")
        r(f"v_mov_b32 v{st}, s73")
        if pk:
            for i in range(4): r(f"v_pk_fma_f32 {P2(x+2*i)}, {P2(x+2*i)}, s[72:73], {P2(st)} op_sel_hi:[1,0,0]")
            for i in range(4): r(f"v_pk_fma_f32 {P2(x+2*i)}, {P2(x+2*i)}, {P2(80+2*i)}, {P2(88+2*i)}")
        else:
            for i in range(8): r(f"v_fma_f32 v{x+i}, v{x+i}, s72, v{st}")
            for i in range(8): r(f"v_fma_f32 v{x+i}, v{x+i}, v{80+i}, v{88+i}")
        for i in range(4): r(f"v_cvt_pk_bf16_f32 v{hh_+i}, v{x+2*i}, v{x+1+2*i}")
        san(r, range(hh_, hh_ + 4))
        r(f"buffer_store_dwordx4 {Q4(hh_)}, v2, s[4:7], s66 offen sc1")
        return r.l
    t = a("ds_read_b128 v[32:35], v19")
    for o in ld_f1: tf1 = a(o)
    for o in yreads: ty = a(o)
    a.bg = w1b; a.bg_every = OPT["p2"]; a.flush_bg(OPT["n2"])
    a.wait(t)
    for o in row_ops(0, 32, True): a(o)
    stamp(a, "h0")
    a.wait(ty)
    for o in yfinal(1, True): a(o)
    stamp(a, 9)
    if OPT["dpost"] == 1: ld_touchd()
    a.bg_every = OPT["p2b"]
    S_ZS, S_ZM, S_PF = 70, 69, 61
    VZ = 108
    SL = lambda t: ((t + 2) % 4) * 16384
    def ld_z(t, sr=63):
        return [f"s_add_u32 m0, s{S_ZM}, {SL(t)}", f"s_add_u32 s{sr}, s{S_ZS}, {t*16*16384}"] + \
               [(f"Z{t}", f"buffer_load_dwordx4 v{VZ+i}, s[4:7], s{sr} offen offset:{i*1024} sc1 lds") for i in range(4)]
    a(f"s_lshl_b32 s{S_ZS}, s{S_RB}, 14")
    a(f"s_lshl_b32 s{S_ZM}, s3, 12")
    a(f"s_add_u32 s{S_ZS}, s{S_ZS}, s{S_ZM}")
    a(f"s_add_u32 s{S_ZS}, s{S_ZS}, {WS_H2}")
    a(f"s_add_u32 s{S_ZS}, s{S_ZS}, s{S_SPARE}")
    a(f"s_add_u32 s{S_ZM}, s{S_ZM}, {L_Z}")
    a("s_lshl_b32 s63, s3, 6")
    a(f"v_xor_b32 v{VZ}, s63, v2")
    for i in range(1, 4): a(f"v_xor_b32 v{VZ+i}, {16*i}, v{VZ}")
    S_DB, S_T2, S_HS, S_F2 = 16, 17, 24, 25
    if OPT["dbmap"] == 1:
        a(f"s_and_b32 s{S_DB}, s{S_IDX}, 3")
        a(f"s_bfe_u32 s60, s{S_IDX}, 0x10002")
        a(f"s_lshl1_add_u32 s{S_DB}, s{S_DB}, s60")
    elif OPT["dbmap"] == 2:
        a(f"s_xor_b32 s{S_DB}, s{S_IDX}, 4")
        a(f"s_and_b32 s{S_DB}, s{S_DB}, 7")
    elif OPT["dbmap"] == 3:
        a(f"s_lshr_b32 s{S_DB}, s{S_IDX}, 2")
        a(f"s_xor_b32 s{S_DB}, s{S_DB}, 4")
    else: a(f"s_and_b32 s{S_DB}, s{S_IDX}, 7")
    if OPT["dbmap"] == 3: a(f"s_and_b32 s60, s{S_IDX}, 3")
    else: a(f"s_lshr_b32 s60, s{S_IDX}, 3")
    a(f"s_lshl_b32 s63, s{S_XCD}, 1")
    a("s_lshr_b32 s62, s60, 1")
    a("s_add_u32 s63, s63, s62")
    a(f"s_lshl_b32 s{S_F2}, s63, 13")
    a(f"s_mul_i32 s62, s3, {14*128}")
    a(f"s_add_u32 s{S_F2}, s{S_F2}, s62")
    a("s_and_b32 s60, s60, 1")
    a("s_lshl_b32 s60, s60, 4")
    a(f"s_add_u32 s{S_T2}, s60, s63")
    a(f"s_mul_i32 s{S_HS}, s{S_T2}, 56")
    a("s_mul_i32 s60, s3, 14")
    a(f"s_add_u32 s{S_HS}, s{S_HS}, s60")
    a(f"s_lshl_b32 s{S_HS}, s{S_HS}, 10")
    a(f"s_add_u32 s{S_HS}, s{S_HS}, {WS_HH}")
    a(f"s_mul_i32 s60, s{S_RB}, 56")
    a(f"s_add_u32 s60, s60, s{S_CT}")
    a("s_lshl_b32 s60, s60, 10")
    a(f"s_add_u32 s60, s60, s{S_SPARE}")
    a(f"s_add_u32 s{S_HO}, s60, {WS_HH}")
    a(f"s_lshl_b32 s{S_PF}, s{S_RB}, 13")
    a(f"s_lshl_b32 s60, s{S_CT}, 7")
    a(f"s_add_u32 s{S_PF}, s{S_PF}, s60")
    a(f"s_and_b32 s60, s{S_FO}, {OOB}")
    a(f"s_lshl_b32 s62, s{S_ROW}, 7")
    a(f"s_add_u32 s{S_FO}, s62, s60")
    ZA = 104
    a("v_xor_b32 v3, v6, v5")
    a("v_lshlrev_b32 v3, 4, v3")
    a("v_lshl_add_u32 v3, v5, 10, v3")
    a(f"v_add_u32 v{ZA}, {L_Z}, v3")
    for i in range(1, 4): a(f"v_xor_b32 v{ZA+i}, {64*i}, v{ZA}")
    a(f"v_add_u32 v3, s{S_ZM}, v2")
    a.wait(tf1)
    for o in flag_chk(236): a(o)
    k.retry(ld_f1, flag_chk(236))
    a("s_barrier")
    print("W1b left:", len(a.bg), file=sys.stderr)
    a.flush_bg()
    stamp(a, "w2")
    ld_yb = [f"s_add_u32 s62, s{S_YL}, {64*16384}", f"buffer_load_dwordx4 v[156:159], v{A_YL}, s[4:7], s62 offen sc1"]
    zops = ld_z(0) + (named("YB", ld_yb) if OPT["ybat"] == 0 else []) + ld_z(1) + (named("YB", ld_yb) if OPT["ybat"] == 1 else [])
    if OPT["zat"] < 0:
        for o in zops: a(o)
    if OPT["ddef"]:
        srd(a, 52, P_WD, 1792 * 1024)
        a("s_lshl2_add_u32 s72, s2, s3")
        a("s_mul_i32 s72, s72, 1792")
        a("v_min_u32 v18, 13, v1")
        a("v_lshlrev_b32 v18, 7, v18")
        a("buffer_load_dword v237, v18, s[52:55], s72 offen")
    srd(a, 48, P_WD, 1792 * 1024)
    a(f"s_mul_i32 s{S_WS}, s3, {448*1024}")
    a(f"s_lshl_b32 s60, s{S_DB}, 7")
    a(f"s_add_u32 s{S_WS}, s{S_WS}, s60")
    if OPT.get("x_lin"):
        a(f"s_lshl2_add_u32 s{S_WS}, s{S_DB}, s3")
        a(f"s_mul_i32 s{S_WS}, s{S_WS}, 57344")
    a(f"s_mul_i32 s{S_WM}, s3, 24576")
    VD, VT = 116, 124
    setup2 = Rec()
    setup2("v_bfe_u32 v120, v1, 1, 2")
    setup2("v_xor_b32 v120, v120, v6")
    setup2("v_and_b32 v121, 1, v1")
    setup2("v_lshl_add_u32 v120, v120, 1, v121")
    setup2("v_lshlrev_b32 v121, 10, v4")
    setup2(f"v_lshl_add_u32 v{VD}, v120, 4, v121")
    for j in range(1, 4): setup2(f"v_add_u32 v{VD+j}, {j*(8192-1024)}, v{VD}")
    setup2("v_lshrrev_b32 v120, 2, v1")
    setup2("v_lshlrev_b32 v120, 7, v120")
    setup2("v_and_b32 v121, 3, v1")
    setup2("v_lshl_add_u32 v120, v121, 3, v120")
    setup2(f"v_add_u32 v120, s{S_WM}, v120")
    setup2("v_bfe_u32 v121, v1, 3, 2")
    for dt in range(4):
        setup2(f"v_xor_b32 v122, {dt}, v121")
        setup2(f"v_lshl_add_u32 v{VT+dt}, v122, 5, v120")
    def wd_dma(u):
        l = [f"s_add_u32 m0, s{S_WM}, {(u % 6)*4096}"]
        for j in range(4): l.append((f"WD{u}", f"buffer_load_dwordx4 v{2 if OPT.get('x_lin') else VD+j}, s[48:51], s{S_WS} offen offset:{j*1024} lds"))
        l.append(f"s_add_u32 s{S_WS}, s{S_WS}, {4096 if OPT.get('x_lin') else 32768}")
        return l
    WR = lambda u, dt: ("v", 128 + (u * 4 + dt) * 4) if u < 8 else ("a", 112 + ((u - 8) * 4 + dt) * 4)
    def wd_tr(u):
        l = []
        for dt in range(4):
            kk, r = WR(u, dt)
            for h in range(2):
                l.append((f"WT{u}", f"ds_read_b64_tr_b16 {kk}[{r+2*h}:{r+2*h+1}], v{VT+dt} offset:{(u % 6)*4096 + h*2048}"))
        return l
    H3R = [64, 68, 72, 76, 96, 100, 104, 108, 4, 12, 116, 120, 112, 124]
    H0V = [100, 64, 68, 72, 76, 96][:OPT["h0v"]]
    HB = lambda p, s: ("v", H3R[s]) if p == 3 else ("v", H0V[s]) if (p == 0 and s < len(H0V)) else ("a", (208 + 4 * s) % 256) if p == 2 else ("a", p * 56 + 4 * s)
    def ld_h(p, s, sr=63):
        o = []
        if s % 4 == 0: o.append(f"s_add_u32 s{sr}, s{S_HS}, {(0 if OPT.get('x_h') else p)*32*56*1024 + s*1024 + (OOB if OPT.get('x_h') == 2 else 0)}")
        kk, r = HB(p, s)
        o.append((f"H{p}_{s}", f"buffer_load_dwordx4 {Q4(r, kk)}, v2, s[4:7], s{sr} offen offset:{(s%4)*1024} sc1"))
        return o
    def ld_f2(base, vd, va):
        return [f"v_min_u32 v{va}, 13, v1", f"v_lshlrev_b32 v{va}, 7, v{va}", f"s_add_u32 s62, s{S_F2}, {base}",
                f"buffer_load_dword v{vd}, v{va}, s[4:7], s62 offen sc1"]
    def ht_ops(p0, np_, va, vb):
        r = Rec()
        r(f"v_min_u32 v{va}, 13, v5")
        r(f"v_lshlrev_b32 v{va}, 7, v{va}")
        if np_ > 1:
            r(f"v_and_b32 v{vb}, {np_-1}, v6")
            r(f"v_mul_u32_u24 v{vb}, {32*56*1024}, v{vb}")
            r(f"v_add_u32 v{va}, v{va}, v{vb}")
        r(f"s_mul_i32 s62, s{S_DB}, {14*128}")
        r(f"s_add_u32 s62, s62, s{S_HS}")
        if p0: r(f"s_add_u32 s62, s62, {p0*32*56*1024}")
        r(f"buffer_load_dword v{vb}, v{va}, s[4:7], s62 offen sc1")
        return r.l
    chk1 = lambda vd: [f"v_cmp_ne_u32 vcc, v{vd}, v{vd}" if OPT.get("x_nof") else f"v_cmp_ne_u32 vcc, s{S_TAG}, v{vd}"]
    def ld_fb(vd, va, sr=62):
        return [f"v_bfe_u32 v{va}, v1, 2, 1", f"v_lshlrev_b32 v{va}, 7, v{va}", f"v_and_b32 v{vd}, 3, v1", f"v_add_lshl_u32 v{va}, v{va}, v{vd}, 7",
                f"s_lshl_b32 s{sr}, s{S_T2}, 9", f"s_add_u32 s{sr}, s{sr}, {WS_FB}", f"buffer_load_dword v{vd}, v{va}, s[4:7], s{sr} offen sc1"]
    RB0 = 131072
    XV, GV, WV = 80, 88, 92
    rec = Rec()
    srd(rec, 8, P_OUT, 0x200000)
    rec("v_lshrrev_b32 v96, 4, v0")
    rec("v_lshlrev_b32 v11, 10, v96")
    rec("v_lshl_add_u32 v11, v5, 3, v11")
    rec("v_lshrrev_b32 v97, 2, v5")
    rec("v_lshlrev_b32 v97, 3, v97")
    rec("v_and_b32 v98, 3, v5")
    rec("v_add_lshl_u32 v97, v97, v98, 3")
    rec(f"s_lshl_b32 s72, s{S_T2}, 14")
    rec(f"s_lshl_b32 s73, s{S_DB}, 7")
    rec("s_add_u32 s71, s72, s73")
    rec(f"s_lshl_b32 s73, s{S_DB}, 8")
    rec(f"s_add_u32 s66, s73, {WS_MOD + 5*2048}")
    rec("v_xor_b32 v98, v6, v5")
    rec("v_lshlrev_b32 v98, 4, v98")
    rec("v_lshl_add_u32 v98, v5, 8, v98")
    rec("s_lshl_b32 s72, s3, 12")
    rec(f"s_add_u32 s72, s72, {RB0}")
    rec(f"v_add_u32 v{WV}, s72, v98")
    for dt in range(1, 4): rec(f"v_xor_b32 v{WV+dt}, {64*dt}, v{WV}")
    rec("v_xor_b32 v10, v5, v96")
    rec("v_lshlrev_b32 v10, 4, v10")
    rec("v_lshl_add_u32 v10, v96, 8, v10")
    rec(f"v_add_u32 v10, {RB0}, v10")
    setup3 = rec.l
    ld_g = [f"buffer_load_dwordx2 {P2(GV+2)}, v97, s[4:7], s66 offen sc1"]
    ld_r = []
    for p in range(4):
        ld_r.append(f"s_add_u32 s62, s71, {WS_X1 + p*32*16384}")
        ld_r.append(f"buffer_load_dwordx2 {P2(XV+2*p)}, v11, s[4:7], s62 offen sc1")
    ckg = check_ops(range(GV + 2, GV + 4), 14)
    res1 = setup3 + ld_fb(99, 98, 72) + named("GB", ld_g)
    res2 = [lambda: a.wait(T["GB"])] + chk1(99) + [lambda: k.retry(ld_fb(99, 98), chk1(99))] + ld_r + ckg + [lambda: k.retry(ld_g, ckg)] + \
           [f"v_lshlrev_b32 v{GV}, 16, v{GV+2}", f"v_and_b32 v{GV+1}, s{S_HI}, v{GV+2}", f"v_lshlrev_b32 v{GV+2}, 16, v{GV+3}", f"v_and_b32 v{GV+3}, s{S_HI}, v{GV+3}"]
    xs_ops = [f"s_add_u32 s60, s68, {WS_X1}", f"buffer_store_dwordx4 {Q4(XR[0])}, v2, s[4:7], s60 offen sc1",
              "s_add_u32 s60, s60, 0x100000", ("XS", f"buffer_store_dwordx4 {Q4(XR[1])}, v2, s[4:7], s60 offen sc1")]
    for o in setup2.l: a(o)
    L_RS2 = L_Z - 4096
    a(f"v_add_u32 v{A_RW}, {L_RS2}, v{A_RW}")
    a(f"v_add_u32 v{A_RR}, {L_RS2}, v{A_RR}")
    ckyb = check_ops(range(156, 160), 14)
    yb1 = [lambda: a.wait(T["YB"])] + ckyb + [lambda: k.retry(ld_yb, ckyb),
           f"ds_write2st64_b32 v{A_RW}, v156, v157 offset0:0 offset1:4", ("YW", f"ds_write2st64_b32 v{A_RW}, v158, v159 offset0:8 offset1:12"),
           Delay(3), lambda: a.wait(T["YW"])]
    yb2 = [("YR", f"ds_read_b128 v[156:159], v{A_RR}"), Delay(5), lambda: a.wait(T["YR"])]
    if OPT["hop"]:
        a("s_branch L_hop0")
        a.label("L_hopback")
    a.wait(T["W1"])
    if OPT["ybat"] == 2:
        for o in named("YB", ld_yb): a(o)
    stamp(a, "y1")
    a("s_barrier")
    a(f"s_mov_b32 s27, s{S_HO}")
    for i in range(4): a(f"v_mov_b32 v{100+i}, -1")
    trb = w1_tr(1, A_TR)
    if OPT["zat"] >= 0:
        for _ in range(OPT["zat"]): a(trb.pop(0))
        if OPT["zsleep"]: a(f"s_sleep {OPT['zsleep']}")
        for o in zops: a(o)
    a(f"s_cmp_lg_u32 s{S_SPARE}, 0")
    a("s_cbranch_scc1 L_spare")
    for o in trb: a(o)
    def verify_ops(t):
        rd = [("ZV", f"ds_read_b128 {Q4(64+4*i)}, v3 offset:{SL(t) + i*1024}") for i in range(4)]
        ck = check_ops(range(64, 80), 14)
        return [lambda: a.wait(T[f"Z{t}"])] + rd + [Delay(5), lambda: a.wait(T["ZV"])] + ck + [lambda: k.retry(ld_z(t, 62), ck, mid=rd)]
    stamp(a, 10)
    for o in verify_ops(0): a(o)
    a("s_barrier")
    for o in yb1: a(o)
    a("s_barrier")
    a(yb2[0])
    stamp(a, 11)
    npad = [0]
    def pad(last=False):
        i = npad[0]; npad[0] += 1
        a.emit(f"s_branch L_skip{i}")
        a.label(f"L_hop{i}")
        a.emit("s_branch L_hopback" if last else f"s_branch L_hop{i+1}")
        a.label(f"L_skip{i}")
    NB = 4
    BF = lambda n: 16 + (n % NB) * 4
    tok = {}
    def loadZ(n):
        t, s = divmod(n, 16)
        tok[n] = a.emit(f"ds_read_b128 {Q4(BF(n))}, v{ZA + (s & 3)} offset:{SL(t) + (s >> 2)*256}")
    for n in range(NB - 1): loadZ(n)
    GA = lambda t: 32 + (t & 1) * 16
    def epi_ops(t):
        acc = GA(t)
        ops = [f"v_mul_f32 v{acc+i}, v{acc+i}, v{acc+8+i}" for i in range(8)]
        ops += [f"v_cvt_pk_bf16_f32 v{112+i}, v{acc+2*i}, v{acc+2*i+1}" for i in range(4)]
        if t >= 6: ops += [f"v_min_u32 v{112+i}, s{S_SENT}, v{112+i}" for i in range(4)]
        ops.append((f"HS{t}", f"buffer_store_dwordx4 v[112:115], v2, s[4:7], s{S_HO} offen sc1"))
        ops.append(f"s_add_u32 s{S_HO}, s{S_HO}, {16*56*1024}")
        return ops
    G = Gaps(a, 5)
    G.order = [0, 3, 4, 1, 2]
    G.pace[1] = OPT.get("p3", 4)
    a.wait(tok[0])
    for t in range(8):
        stamp(a, f"t{t}")
        if OPT["hop"] and t in (2, 4, 6): pad()
        if t >= 1: G.add(0, [Delay(OPT["epd"])] + epi_ops(t - 1))
        if t >= 1 and OPT.get("sfirst"): G.add(1, [Delay(0, lambda t=t: f"HS{t-1}" in T)])
        if t + 2 < 8 and not (t == 2 and OPT["z4late"]): G.add(1, ld_z(t + 2))
        if t == 0:
            pass
        for j, tc in enumerate(OPT["hct"]):
            if t == tc:
                gate = [Delay(OPT["hcd"])] if t == 0 else [Delay(0, lambda t=t: f"HS{t-1}" in T)]
                G.add(3, gate + [f"s_add_u32 s60, s27, {(6+j)*16*56*1024}", "buffer_store_dwordx4 v[100:103], v2, s[4:7], s60 offen sc1"])
        for j, tc in enumerate(OPT["xst"]):
            if t == tc: G.add(3, [Delay(0, lambda t=t: f"HS{t-1}" in T), f"s_add_u32 s60, s68, {WS_X1 + j*0x100000}", ("XS", txt(xs_ops[1 + 2*j]))])
        if 2 <= t <= 5:
            u = 2 * (t - 2)
            G.add(2, [lambda u=u: a.wait(T[f"WD{u+1}"])] + wd_tr(u) + wd_tr(u + 1))
        if t <= 6:
            u = 2 * t
            if u >= 6: G.add(1, [lambda u=u: a.wait(T[f"WT{u-5}"])])
            G.add(1, wd_dma(u) + wd_dma(u + 1))
            if t == 2 and OPT["z4late"]: G.add(1, ld_z(4))
        for s in range(16):
            n = t * 16 + s
            if s == (8 if t == 3 else 6) and t + 1 < 8: G.add(0, verify_ops(t + 1))
            if n - OPT["fset"] in (48, 80, 112):
                tt = (n - OPT["fset"]) // 16
                G.add(3, [lambda tt=tt: a.wait(T[f"HS{tt-2}"])] + flag_store({3: WS_F20, 5: WS_F2A, 7: WS_F2B}[tt], 8, 7, off=f"s{S_PF}"))
            if (t, s) == OPT["f0ld"]: G.add(0, named("F20", ld_f2(WS_F20, 12, 13)))
            if (t, s) == OPT["f0ck"]:
                G.add(0, [lambda: a.wait(T["F20"])] + chk1(12) + [lambda: k.retry(ld_f2(WS_F20, 12, 13), chk1(12))] + (ht_ops(0, 1, 96, 97) if OPT["ht"] else []))
            if (t, s) == (6, 13) and H0V: G.add(1, [Delay(0, lambda: not G.st[0])] + sum((ld_h(0, ss) for ss in range(len(H0V))), []))
            if (t, s) == (7, OPT["h0s"]):
                G.pace[1] = OPT["hp"]
                G.add(1, sum((ld_h(0, ss) for ss in range(len(H0V), 14)), []))
            if (t, s) == (0, 0): G.add(2, row_ops(1, 156, False))
            if (t, s) == OPT["r1at"]: G.add(4, res1)
            if (t, s) == OPT["r2at"]: G.add(0, res2)
            if t == 7 and s == 8: G.add(2, [lambda: a.wait(T["WD13"])])
            if t == 7 and 8 <= s <= 13: G.add(2, wd_tr(s))
            if (t, s) == OPT["f2ld"]: G.add(0, named("F2", ld_f2(WS_F2A, 15, 9)))
            if (t, s) == OPT["f2ck"]:
                G.add(0, [lambda: a.wait(T["F2"])] + chk1(15) + [lambda: (k.retry(ld_f2(WS_F2A, 15, 9), chk1(15)), T.__setitem__("F2Adone", 1))] + (ht_ops(1, 1, 96, 97) if OPT["ht"] else []))
            if (t, s) == OPT["f2bld"]: G.add(0, named("F2", ld_f2(WS_F2B, 12, 13)))
            if t == 7 and s >= OPT["hstart"] and "F2Adone" in T and "Hgo" not in T:
                T["Hgo"] = 1
                G.pace[1] = OPT["hp"]
                G.add(1, sum((ld_h(1, ss) for ss in range(14)), []))
            if s == 13:
                if G.left([0]): print("tile", t, "pre-barrier drain", G.left([0]), file=sys.stderr)
                G.drain([0])
                if t == max(OPT["xst"]) + 1: a.wait(T["XS"])
                a.emit("s_barrier")
                if t == max(OPT["xst"]) + 1: G.add(3, flag_store(WS_FB, 8, 7))
            for ct in range(4):
                d = Q4(GA(t) + 4 * ct)
                a.emit(f"v_mfma_f32_16x16x32_bf16 {d}, {Q4((s*4+ct)*4,'a')}, {Q4(BF(n))}, {'0' if s == 0 else d}")
                nn = n + NB - 1
                fm = (lambda: loadZ(nn)) if (ct == 0 and nn < 128) else None
                fs = (lambda: a.wait(tok[n + 1])) if (ct == 3 and n + 1 < 128) else None
                G.gap(fs, fm)
        if G.left(): print("tile", t, "leftover", [len(x) for x in G.st], file=sys.stderr)
        if t < 7: G.drain([0, 2, 3, 4] if (t == 6 and H0V) else None)
    G.drain([0, 3])
    wtleft = G.st[2]
    nwtleft = len(wtleft)
    while f"H0_13" not in T: a.item(G.st[1].pop(0))
    h1left = G.st[1]
    nh1left = len(h1left)
    a.label("L_gemm2")
    stamp(a, 12)
    G = Gaps(a, 3)
    G.pace[1] = OPT["hp"]
    G.add(1, h1left)
    G.add(2, wtleft)
    def ost(p, sr=60):
        return [f"s_add_u32 s{sr}, s71, {p*32*16384}", f"buffer_store_dwordx2 {P2(XV+2*p)}, v11, s[8:11], s{sr} offen {OPT['outf'] if p < OPT['outp'] else ''}"]
    rw = lambda p, dt: ("RW", f"ds_write_b128 v{WV+dt}, {Q4(GA(p)+4*dt)} offset:{(p & 1)*16384}")
    def red_ops(p, pk=False):
        ops = [lambda: a.wait(T["RW"]), "s_barrier"]
        ro = (p & 1) * 16384
        for w in range(4): ops.append(("RR", f"ds_read_b128 {Q4(16+4*w)}, v10 offset:{ro + w*4096}"))
        u = GA(p)
        for e in range(2):
            ops.append(f"v_lshlrev_b32 v{u+2*e}, 16, v{XV+2*p+e}")
            ops.append(f"v_and_b32 v{u+1+2*e}, s{S_HI}, v{XV+2*p+e}")
        ops += [Delay(4), lambda: a.wait(T["RR"])]
        if pk:
            for j in (0, 2): ops += [f"v_pk_add_f32 {P2(16+j)}, {P2(16+j)}, {P2(20+j)}", f"v_pk_add_f32 {P2(24+j)}, {P2(24+j)}, {P2(28+j)}"]
            for j in (0, 2): ops.append(f"v_pk_add_f32 {P2(16+j)}, {P2(16+j)}, {P2(24+j)}")
            for j in (0, 2): ops.append(f"v_pk_fma_f32 {P2(16+j)}, {P2(16+j)}, {P2(GV+j)}, {P2(u+j)}")
        else:
            for j in range(4): ops += [f"v_add_f32 v{16+j}, v{16+j}, v{20+j}", f"v_add_f32 v{24+j}, v{24+j}, v{28+j}"]
            for j in range(4): ops.append(f"v_add_f32 v{16+j}, v{16+j}, v{24+j}")
            for j in range(4): ops.append(f"v_fma_f32 v{16+j}, v{16+j}, v{GV+j}, v{u+j}")
        for j in (0, 2): ops.append(f"v_cvt_pk_bf16_f32 v{XV+2*p+j//2}, v{16+j}, v{17+j}")
        if p >= OPT["defer"]: ops += ost(p)
        return ops
    ck3 = check_ops(sum((list(range(r, r + 4)) for r in H3R), []), 1)
    def flush1(name):
        while name not in T: a.item(G.st[1].pop(0))
    def ld_h1(p, s):
        kk, r = HB(p, s)
        return [f"s_add_u32 s62, s{S_HS}, {p*32*56*1024 + s*1024}", f"buffer_load_dwordx4 {Q4(r, kk)}, v2, s[4:7], s62 offen sc1"]
    a.wait(T["H0_0"])
    for p in range(4):
        stamp(a, f"p{p}")
        if OPT["hop"] and p in (0, 2): pad(last=(p == 2))
        if p == 0: G.add(0, [Delay(3)] + epi_ops(7))
        else: G.add(0, [Delay(3)] + [rw(p - 1, dt) for dt in range(4)] + [Delay(6)] + red_ops(p - 1))
        if p == 3: G.add(1, sum((ost(pp, 63) for pp in range(OPT["defer"])), []))
        order = [(s, dt) for s in range(14) for dt in range(4)] if p < 3 else [(s, dt) for dt in range(4) for s in range(14)]
        for ii, (s, dt) in enumerate(order):
            if dt == 0 and p < 3:
                if (8 + p, s) == OPT["f2bld"]: G.add(0, named("F2", ld_f2(WS_F2B, 12, 13)))
                if (p, s) == OPT["f2bck"]:
                    G.add(0, [lambda: a.wait(T["F2"])] + chk1(12) + [lambda: k.retry(ld_f2(WS_F2B, 12, 13), chk1(12))] +
                          (ht_ops(2, 1, 96, 97) if OPT["ht"] else []) + [lambda: G.add(1, sum((ld_h(2, ss) for ss in range(14)), []))])
                if (p, s) == OPT["h3t"]: G.add(1, ht_ops(3, 1, 8, 9))
                if (p, s) == OPT["h3at"]: G.add(1, sum((ld_h(3, ss) for ss in range(14)), []))
                if (p, s) == OPT["h3ck"]:
                    cks = []
                    for lo, hi in ((0, 5), (5, 10), (10, 14)):
                        ck = check_ops(sum((list(range(r, r + 4)) for r in H3R[lo:hi]), []), 1)
                        cks += [Delay(OPT["h3d"], lambda hi=hi: f"H3_{hi-1}" in T), lambda hi=hi: (flush1(f"H3_{hi-1}"), a.wait(T[f"H3_{hi-1}"]))] + ck + \
                               [lambda ck=ck, lo=lo, hi=hi: k.retry(sum((ld_h1(3, ss) for ss in range(lo, hi)), []), ck)]
                    G.add(2, cks)
            if p == 3 and s == 3 and dt > 0: G.add(0, [rw(3, dt - 1)])
            d = Q4(GA(p) + 4 * dt)
            wk, wr = WR(s, dt); hk, hr = HB(p, s)
            a.emit(f"v_mfma_f32_16x16x32_bf16 {d}, {Q4(wr, wk)}, {Q4(hr, hk)}, {'0' if s == 0 else d}")
            fs = None
            if dt == 3 and p < 3:
                np_, ns = (p, s + 1) if s < 13 else (p + 1, 0)
                toks = []
                if np_ < 3:
                    while f"H{np_}_{ns}" not in T: a.item(G.st[1].pop(0))
                    toks.append(f"H{np_}_{ns}")
                if np_ == 0 and ns >= 8:
                    while any(isinstance(o, tuple) and o[0] == f"WT{ns}" for o in G.st[2]): a.item(G.st[2].pop(0))
                    toks.append(f"WT{ns}")
                if toks: fs = lambda toks=toks: a.wait(*[T[x] for x in toks])
            G.gap(fs, None)
        if G.left(): print("gemm2 p", p, "leftover", [len(x) for x in G.st], file=sys.stderr)
        G.drain([0, 2] if p < 3 else None)
    stamp(a, "p4")
    a(rw(3, 3))
    for o in red_ops(3, True): a(o)
    if STAMP and DIAG is None:
        a("s_waitcnt vmcnt(0)")
        a("s_memrealtime s[72:73]")
        a("s_waitcnt lgkmcnt(0)")
        a("s_lshl_b32 s60, s2, 2")
        a("s_add_u32 s60, s60, s3")
        a("s_lshl_b32 s60, s60, 6")
        a(f"s_add_u32 s60, s60, {WS_STAMP}")
        a("s_mov_b64 exec, 1")
        for i in range(16):
            a(f"v_mov_b32 v2, s{76+2*i if i < 13 else (72, 20, 21)[i-13]}")
            a(f"buffer_store_dword v2, off, s[4:7], s60 offset:{4*i}")
    if DIAG is not None:
        a("s_waitcnt vmcnt(0)")
        a("s_memrealtime s[72:73]")
        a("s_waitcnt lgkmcnt(0)")
        a(f"s_cmp_lg_u32 s2, {OPT.get('dwg', 100)}")
        a("s_cbranch_scc1 L_end")
        src = 72 if DIAG == 13 else 76 + 2 * DIAG
        a(f"s_sub_u32 s60, s{src}, s76")
        a("s_add_u32 s60, s60, 6000")
        a("s_min_u32 s60, s60, 20000")
        a.label("L_diag")
        a("s_memrealtime s[72:73]")
        a("s_waitcnt lgkmcnt(0)")
        a("s_sub_u32 s61, s72, s76")
        a("s_cmp_lt_u32 s61, s60")
        a("s_cbranch_scc1 L_diag")
    a.label("L_end")
    a("s_endpgm")
    a.label("L_spare")
    a("s_waitcnt vmcnt(0)")
    for o in yb1[1:]: a(o)
    a("s_barrier")
    for o in yb2: a(o)
    for o in row_ops(1, 156, True): a(o)
    for o in xs_ops: a(o)
    if OPT["dpost"] == 2: ld_touchd()
    a("s_waitcnt vmcnt(0)")
    a("s_barrier")
    for o in flag_store(WS_FB, 9, 7): a(o)
    for grp in ((range(0, 6), range(0, 6)), (range(6, 12), range(6, 8)), (range(12, 14), ())):
        for u in grp[0]:
            for o in wd_dma(u): a(txt(o))
        a("s_waitcnt vmcnt(0)")
        for u in grp[1]:
            for o in wd_tr(u): a(txt(o))
        a("s_waitcnt lgkmcnt(0)")
    allw = sum((wd_tr(u) for u in range(8, 14)), [])
    for o in allw[:len(allw) - nwtleft]: a(txt(o))
    a(f"s_sleep {OPT['spsl']}")
    for o in res1: a(txt(o))
    a("s_waitcnt vmcnt(0)")
    for o in res2[1:]: a(o)
    def spf(p, base):
        ld = [f"s_add_u32 s62, s30, {base}", "buffer_load_dword v15, v9, s[4:7], s62 offen sc1"]
        for o in ld: a(o)
        a("s_waitcnt vmcnt(0)")
        for o in chk1(15): a(o)
        k.retry(ld, chk1(15), sleep=6)
        a(f"s_add_u32 s62, s31, {p*32*56*1024}")
        a("buffer_load_dword v100, v101, s[4:7], s62 offen sc1")
        a("s_add_u32 s62, s62, 6144")
        a("buffer_load_dword v100, v101, s[4:7], s62 offen sc1")
    if OPT["spf"]:
        a(f"s_and_b32 s60, s{S_IDX}, 3")
        a("s_lshr_b32 s62, s60, 1")
        a(f"s_lshl1_add_u32 s62, s{S_XCD}, s62")
        a("s_lshl_b32 s30, s62, 13")
        a(f"s_mul_i32 s63, s3, {14*128}")
        a("s_add_u32 s30, s30, s63")
        a("s_and_b32 s60, s60, 1")
        a("s_lshl4_add_u32 s62, s60, s62")
        a("s_mul_i32 s31, s62, 56")
        a("s_mul_i32 s63, s3, 14")
        a("s_add_u32 s31, s31, s63")
        a("s_lshl_b32 s31, s31, 10")
        a(f"s_add_u32 s31, s31, {WS_HH}")
        a("v_min_u32 v9, 13, v1")
        a("v_lshlrev_b32 v9, 7, v9")
        a("v_lshlrev_b32 v101, 7, v1")
        spf(0, WS_F20)
        spf(1, WS_F2A)
    for o in ld_f2(WS_F2A, 15, 9): a(o)
    a("s_waitcnt vmcnt(0)")
    for o in chk1(15): a(o)
    k.retry(ld_f2(WS_F2A, 15, 9), chk1(15), sleep=8)
    allh = sum((ld_h(p, s) for p in range(2) for s in range(14)), [])
    for o in allh[:len(allh) - nh1left]: a(txt(o))
    if OPT["spf"]: spf(2, WS_F2B)
    for o in ld_f2(WS_F2B, 12, 13): a(o)
    a("s_waitcnt vmcnt(0) lgkmcnt(0)")
    a("s_nop 4")
    a("s_branch L_gemm2")
    k.emit_slow()
    a.label("L_codeend")
    print("instrs", a.ninstr, "nops", a.nnop, file=sys.stderr)
    return a.text()

def main(path):
    t = f"; @launch grid=(256,1,1) block=(256,1,1) lds={LDS_BYTES}\n"
    t += '.amdgcn_target "amdgcn-amd-amdhsa--gfx950"\n.text\n'
    t += build()
    t += f""".section .rodata,"a"
.p2align 6
.amdhsa_kernel {NAME}_kernel
  .amdhsa_next_free_vgpr 512
  .amdhsa_next_free_sgpr 102
  .amdhsa_accum_offset 256
  .amdhsa_group_segment_fixed_size 0
  .amdhsa_kernarg_size 120
  .amdhsa_user_sgpr_count 2
  .amdhsa_user_sgpr_kernarg_segment_ptr 1
  .amdhsa_system_sgpr_workgroup_id_x 1
  .amdhsa_float_denorm_mode_32 3
.end_amdhsa_kernel
"""
    open(path, "w").write(t)

if __name__ == "__main__":
    for x in "ht=0 dpost=0 spf=0 modat=-1 rot=0 n0=0 f0at=15 aftat=24 n2=2 p2=24 p2b=7 cf=1 fs=6 h3at=1:8 p1=2 p3=4 fset=-3 hcd=30 h3d=8 h3ck=2:2 z4late=1 defer=2 f2bld=7:14 f2bck=0:10 hp=3 f0ld=5:10 f0ck=6:10 f2ld=6:10 f2ck=7:5 hstart=7 n1=0 f1at=3 ord=/m/y/n/ cord=cqWzD bg1=0 b4lag=20 ln1at=4 yat=12 mat=1".split() + sys.argv[2:]:
        kk, _, vv = x.partition("=")
        if kk == "stamp":
            STAMP = True
            if vv: SLIST = [int(y) if y.isdigit() else y for y in vv.split(",")]
        elif kk == "diag":
            STAMP = True; DIAG = int(vv)
        elif vv == "none": OPT[kk] = ""
        elif ":" in vv: OPT[kk] = tuple(int(y) for y in vv.split(":"))
        else: OPT[kk] = int(vv) if vv.lstrip("-").isdigit() else vv
    main(sys.argv[1])
```
